```python
import torch

def _softmax(x, axis=-1):
    return torch.softmax(x, dim=axis)
def _gelu(x):
    return torch.nn.functional.gelu(x, approximate="tanh")
def _silu(x):
    return torch.nn.functional.silu(x)
def _sigmoid(x):
    return torch.sigmoid(x)
def _layernorm(x, axis=-1, eps=1e-5):
    m = x.mean(dim=axis, keepdim=True)
    v = x.var(dim=axis, keepdim=True, unbiased=False)
    return (x - m) / torch.sqrt(v + eps)
def _scatter_add(tgt, idx, src, axis=0):
    return tgt.clone().index_add_(axis, idx, src)
def _segment_sum(src, seg, n):
    out = torch.zeros((n,) + src.shape[1:], dtype=src.dtype)
    return out.index_add_(0, seg, src)
def _pad(x, pw):
    flat = tuple(v for pair in reversed(pw) for v in pair)
    return torch.nn.functional.pad(x, flat)

kernel_name = 'concat_heads__spectral_fnet__sliding_local_dilated__prompt'

def setup_inputs():

    _w = (lambda a: (lambda t: t.to(torch.bfloat16) if t.is_floating_point() else t)(torch.as_tensor(a)))
    def _A_setup():
        B, S, D = 1, 2048, 576
        ns = torch.arange(S)[:, None] * torch.arange(S)[None, :]
        nd = torch.arange(D)[:, None] * torch.arange(D)[None, :]
        Ws_re = torch.cos(-2.0 * torch.pi * ns / S).to(float)
        Ws_im = torch.sin(-2.0 * torch.pi * ns / S).to(float)
        Wd_re = torch.cos(-2.0 * torch.pi * nd / D).to(float)
        Wd_im = torch.sin(-2.0 * torch.pi * nd / D).to(float)
        return {
            "x": _w((lambda *s: torch.randn(*s, dtype=torch.bfloat16) * 0.05)(B, S, D)),
            "dft_seq_re": _w(Ws_re),
            "dft_seq_im": _w(Ws_im),
            "dft_hid_re": _w(Wd_re),
            "dft_hid_im": _w(Wd_im),
        }
    _A_in = _A_setup()

    def _B_setup():
        B, S, D = 1, 2048, 576
        return {
            "x": _w((lambda *s: torch.randn(*s, dtype=torch.bfloat16) * 0.2)(B, S, D)),
            "wqkv": _w((lambda *s: torch.randn(*s, dtype=torch.bfloat16) * 0.8)(D, 3 * D)),
            "wo": _w((lambda *s: torch.randn(*s, dtype=torch.bfloat16) * 0.2)(D, D)),
        }
    _B_in = _B_setup()

    return {
        "A_x": _A_in["x"],
        "A_dft_seq_re": _A_in["dft_seq_re"],
        "A_dft_seq_im": _A_in["dft_seq_im"],
        "A_dft_hid_re": _A_in["dft_hid_re"],
        "A_dft_hid_im": _A_in["dft_hid_im"],
        "B_x": _B_in["x"],
        "B_wqkv": _B_in["wqkv"],
        "B_wo": _B_in["wo"],
    }

def reference(A_x, A_dft_seq_re, A_dft_seq_im, A_dft_hid_re, A_dft_hid_im, B_x, B_wqkv, B_wo):
    def _A_ref(x, dft_seq_re, dft_seq_im, dft_hid_re, dft_hid_im):
        a = torch.einsum("bsd,ed->bse", x, dft_hid_re)
        b = torch.einsum("bsd,ed->bse", x, dft_hid_im)
        y = torch.einsum("ts,bse->bte", dft_seq_re, a) - torch.einsum("ts,bse->bte", dft_seq_im, b)
        return y

    def _B_ref(x, wqkv, wo):
        B, S, D = x.shape
        H = 32; Dh = D // H
        W, dil = 8, 2
        qkv = (lambda x, *d: x.permute(*d))((x @ wqkv).reshape(B, S, 3, H, Dh), 2, 0, 3, 1, 4)
        q, k, v = qkv[0], qkv[1], qkv[2]
        scale = Dh ** -0.5
        pos = torch.arange(S)
        off = torch.arange(W) * dil
        idx = pos[:, None] - off[None, :]
        mask = idx >= 0
        idx_c = torch.where(mask, idx, 0).reshape(-1)
        kg = k[:, :, idx_c, :].reshape(B, H, S, W, Dh)
        vg = v[:, :, idx_c, :].reshape(B, H, S, W, Dh)
        logits = torch.einsum("bhsd,bhswd->bhsw", q, kg) * scale
        logits = torch.where(mask[None, None, :, :], logits, -1e9)
        attn = _softmax(logits, axis=-1)
        o = torch.einsum("bhsw,bhswd->bhsd", attn, vg)
        return (lambda x, *d: x.permute(*d))(o, 0, 2, 1, 3).reshape(B, S, D) @ wo

    a = _A_ref(A_x, A_dft_seq_re, A_dft_seq_im, A_dft_hid_re, A_dft_hid_im)
    b = _B_ref(B_x, B_wqkv, B_wo)
    return torch.concatenate([a, b], axis=-1)
```

```python
NAME = 'concat_heads__spectral_fnet__sliding_local_dilated__prompt'
class Asm:
    def __init__(self):
        self.lines = []
    def __call__(self, s=''):
        for l in s.split('\n'):
            self.lines.append('    ' + l.strip() if l.strip() and not l.strip().endswith(':') else l.strip())
    def label(self, s): self.lines.append(s + ':')
    def text(self): return '\n'.join(self.lines) + '\n'
def vr(b, n=1, p='v'):
    return f'{p}{b}' if n == 1 else f'{p}[{b}:{b+n-1}]'
def sr(b, n=1): return vr(b, n, 's')
def ar(b, n=1): return vr(b, n, 'a')
def kernel_head(label):
    return f'.globl {label}\n.p2align 8\n.type {label},@function\n{label}:\n'
def kernel_desc(label, vgpr=256, accum=256, sgpr=102):
    return f'''.p2align 6
.amdhsa_kernel {label}
  .amdhsa_next_free_vgpr {vgpr}
  .amdhsa_next_free_sgpr {sgpr}
  .amdhsa_accum_offset {accum}
  .amdhsa_group_segment_fixed_size 0
  .amdhsa_kernarg_size 88
  .amdhsa_user_sgpr_count 2
  .amdhsa_user_sgpr_kernarg_segment_ptr 1
  .amdhsa_system_sgpr_workgroup_id_x 1
.end_amdhsa_kernel
'''
def single_file(body, grid, block, lds, vgpr=256, accum=256):
    lab = NAME + '_kernel'
    return (f'; @launch grid=({grid},1,1) block=({block},1,1) lds={lds}\n.amdgcn_target "amdgcn-amd-amdhsa--gfx950"\n.text\n'
            + kernel_head(lab) + body + '.section .rodata,"a"\n' + kernel_desc(lab, vgpr, accum))
```

```python
import sys
sys.path.insert(0, 'exp')
from asmlib import *
KA = dict(A_x=0, sre=8, sim=16, hre=24, him=32, B_x=40, wqkv=48, wo=56, out=64, dbg=72, ws=80)
SZ = dict(A_x=2359296, sre=8388608, sim=8388608, hre=663552, him=663552, B_x=2359296, wqkv=1990656, wo=663552, out=4718592)
WS = dict(wqkvT=(0, 1990656), woT=(2<<20, 663552), aT=(4<<20, 2359296), bT=(8<<20, 2359296), qkv=(12<<20, 7077888), o=(20<<20, 2359296))
def srd(a, s, name, tmp):
    if name in WS:
        off, sz = WS[name]
        a(f's_load_dwordx2 s[{tmp}:{tmp+1}], s[0:1], 80\n s_waitcnt lgkmcnt(0)')
        a(f's_add_u32 s{s}, s{tmp}, {off}\n s_addc_u32 s{s+1}, s{tmp+1}, 0')
    else:
        sz = SZ[name]
        a(f's_load_dwordx2 s[{tmp}:{tmp+1}], s[0:1], {KA[name]}\n s_waitcnt lgkmcnt(0)')
        a(f's_mov_b32 s{s}, s{tmp}\n s_mov_b32 s{s+1}, s{tmp+1}')
    a(f's_mov_b32 s{s+2}, {sz}\n s_mov_b32 s{s+3}, 0x20000')
def k_tr(lab, src, dst, R, C):
    a = Asm()
    a(f's_cmp_ge_u32 s2, {C}\n s_cbranch_scc1 {lab}_end')
    srd(a, 8, src, 4); srd(a, 12, dst, 4)
    a(f'v_mul_u32_u24 v1, {C*2}, v0\n s_lshl_b32 s3, s2, 1\n v_add_u32 v1, s3, v1')
    a(f's_mul_i32 s3, s2, {R*2}\n v_lshlrev_b32 v2, 1, v0\n v_add_u32 v2, s3, v2')
    a('buffer_load_ushort v3, v1, s[8:11], 0 offen\n s_waitcnt vmcnt(0)\n buffer_store_short v3, v2, s[12:15], 0 offen')
    a(f'{lab}_end:\n s_endpgm')
    return (lab, a.text(), C, R, 0)
def k_gemm(lab, pairs, K, Cn, ldc, coff, M, N):
    a = Asm()
    nb = N//32; nwg = (M//32)*nb
    a(f's_cmp_ge_u32 s2, {nwg}\n s_cbranch_scc1 {lab}_end')
    magic = ((1<<32) + nb - 1)//nb
    a(f's_mul_hi_u32 s20, s2, {magic}\n s_mul_i32 s21, s20, {nb}\n s_sub_u32 s21, s2, s21')
    a('s_lshl_b32 s20, s20, 5\n s_lshl_b32 s21, s21, 5')
    a('v_and_b32 v1, 15, v0\n v_lshrrev_b32 v2, 4, v0')
    a(f's_mov_b32 s22, {K*2}')
    a('v_add_u32 v3, s20, v1\n v_mul_lo_u32 v3, v3, s22\n v_lshl_add_u32 v3, v2, 4, v3')
    a('v_add_u32 v5, s21, v1\n v_mul_lo_u32 v5, v5, s22\n v_lshl_add_u32 v5, v2, 4, v5')
    a(f'v_add_u32 v4, {16*K*2}, v3\n v_add_u32 v6, {16*K*2}, v5')
    for p, (A, B) in enumerate(pairs):
        srd(a, 8, A, 4); srd(a, 12, B, 4)
        acc = 32 + 16*p
        for i in range(16): a(f'v_mov_b32 v{acc+i}, 0')
        a('s_mov_b32 s23, 0')
        a(f'{lab}_l{p}:')
        a('buffer_load_dwordx4 v[8:11], v3, s[8:11], s23 offen\n buffer_load_dwordx4 v[12:15], v4, s[8:11], s23 offen')
        a('buffer_load_dwordx4 v[16:19], v5, s[12:15], s23 offen\n buffer_load_dwordx4 v[20:23], v6, s[12:15], s23 offen')
        a('s_waitcnt vmcnt(0)')
        for i in range(2):
            for j in range(2):
                d = acc + (i*2+j)*4
                a(f'v_mfma_f32_16x16x32_bf16 {vr(d,4)}, {vr(8+4*i,4)}, {vr(16+4*j,4)}, {vr(d,4)}')
        a(f's_add_u32 s23, s23, 64\n s_cmp_lt_u32 s23, {K*2}\n s_cbranch_scc1 {lab}_l{p}')
    a('s_nop 15')
    if len(pairs) == 2:
        for i in range(16): a(f'v_sub_f32 v{32+i}, v{32+i}, v{48+i}')
    srd(a, 8, Cn, 4)
    a(f's_mov_b32 s22, {ldc*2}')
    a('v_lshl_add_u32 v3, v2, 2, s20\n v_mul_lo_u32 v3, v3, s22\n v_add_u32 v4, s21, v1\n v_lshl_add_u32 v3, v4, 1, v3')
    a(f'v_add_u32 v3, {coff*2}, v3')
    for i in range(2):
        for j in range(2):
            for r in range(4):
                d = 32 + (i*2+j)*4 + r
                a(f'v_cvt_pk_bf16_f32 v{d}, v{d}, v{d}')
                a(f's_mov_b32 s23, {(i*16+r)*ldc*2 + j*32}')
                a(f'buffer_store_short v{d}, v3, s[8:11], s23 offen')
    a(f'{lab}_end:\n s_endpgm')
    return (lab, a.text(), nwg, 64, 0)
def k_attn(lab):
    a = Asm()
    a(f's_cmp_ge_u32 s2, 1024\n s_cbranch_scc1 {lab}_end')
    srd(a, 8, 'qkv', 4); srd(a, 12, 'o', 4)
    a('v_lshrrev_b32 v1, 5, v0\n s_lshl_b32 s3, s2, 1\n v_add_u32 v1, s3, v1\n v_and_b32 v2, 31, v0')
    a('v_mul_u32_u24 v3, 3456, v1\n v_mul_u32_u24 v4, 36, v2\n v_add_u32 v3, v3, v4')
    for i in range(9): a(f'buffer_load_dword v{10+i}, v3, s[8:11], 0 offen offset:{4*i}')
    for w in range(8):
        a(f'v_subrev_u32 v5, {2*w*3456}, v3')
        for i in range(9): a(f'buffer_load_dword v{20+i}, v5, s[8:11], 0 offen offset:{1152+4*i}')
        for i in range(9): a(f'buffer_load_dword v{64+w*9+i}, v5, s[8:11], 0 offen offset:{2304+4*i}')
        a('s_waitcnt vmcnt(0)')
        a(f'v_mov_b32 v{30+w}, 0')
        for i in range(9):
            a(f'v_lshlrev_b32 v6, 16, v{10+i}\n v_lshlrev_b32 v7, 16, v{20+i}\n v_fmac_f32 v{30+w}, v6, v7')
            a(f'v_and_b32 v6, 0xffff0000, v{10+i}\n v_and_b32 v7, 0xffff0000, v{20+i}\n v_fmac_f32 v{30+w}, v6, v7')
        a(f'v_mul_f32 v{30+w}, 0x3eae1c5f, v{30+w}')
        a(f'v_cmp_le_u32 vcc, {2*w}, v1\n v_mov_b32 v6, 0xce6e6b28\n s_nop 1\n v_cndmask_b32 v{30+w}, v6, v{30+w}, vcc')
    a('v_max_f32 v8, v30, v31')
    for w in range(2, 8): a(f'v_max_f32 v8, v8, v{30+w}')
    a('v_mov_b32 v9, 0')
    for w in range(8):
        a(f'v_sub_f32 v{30+w}, v{30+w}, v8\n v_exp_f32 v{30+w}, v{30+w}\n s_nop 0\n v_add_f32 v9, v9, v{30+w}')
    a('v_rcp_f32 v9, v9\n s_nop 0')
    for w in range(8): a(f'v_mul_f32 v{30+w}, v{30+w}, v9')
    a('v_mul_u32_u24 v3, 1152, v1\n v_add_u32 v3, v3, v4')
    for i in range(9):
        a('v_mov_b32 v40, 0\n v_mov_b32 v41, 0')
        for w in range(8):
            a(f'v_lshlrev_b32 v6, 16, v{64+w*9+i}\n v_fmac_f32 v40, v6, v{30+w}')
            a(f'v_and_b32 v6, 0xffff0000, v{64+w*9+i}\n v_fmac_f32 v41, v6, v{30+w}')
        a(f'v_cvt_pk_bf16_f32 v{44+i}, v40, v41')
        a(f'buffer_store_dword v{44+i}, v3, s[12:15], 0 offen offset:{4*i}')
    a(f'{lab}_end:\n s_endpgm')
    import struct, math
    c = struct.unpack('<I', struct.pack('<f', math.log2(math.e)/math.sqrt(18)))[0]
    return (lab, a.text().replace('0x3eae1c5f', hex(c)), 1024, 64, 0)
def base_kernels():
    return [
        k_tr('tr1_kernel', 'wqkv', 'wqkvT', 576, 1728),
        k_tr('tr2_kernel', 'wo', 'woT', 576, 576),
        k_gemm('ga_kernel', [('hre', 'A_x')], 576, 'aT', 2048, 0, 576, 2048),
        k_gemm('gb_kernel', [('him', 'A_x')], 576, 'bT', 2048, 0, 576, 2048),
        k_gemm('gq_kernel', [('B_x', 'wqkvT')], 576, 'qkv', 1728, 0, 2048, 1728),
        k_attn('at_kernel'),
        k_gemm('gy_kernel', [('sre', 'aT'), ('sim', 'bT')], 2048, 'out', 1152, 0, 2048, 576),
        k_gemm('go_kernel', [('o', 'woT')], 576, 'out', 1152, 576, 2048, 576),
    ]
def build(ks, order=None):
    s = ''
    for k in (order or ks):
        s += f'; @launch kernel={k[0]} grid=({k[2]},1,1) block=({k[3]},1,1) lds={k[4]}\n'
    s += '.amdgcn_target "amdgcn-amd-amdhsa--gfx950"\n.text\n'
    for k in ks: s += kernel_head(k[0]) + k[1]
    s += '.section .rodata,"a"\n'
    for k in ks:
        vg = k[5] if len(k) > 5 else (160 if k[0].startswith('at') else 64)
        s += kernel_desc(k[0], vg, vg)
    return s
if __name__ == '__main__':
    open('slow.s', 'w').write(build(base_kernels()))
```

```python
import sys
sys.path.insert(0, 'exp')
from slow import *
def k_empty(lab, grid=256, block=256):
    return (lab, '    s_endpgm\n', grid, block, 0)
def k_chain(lab, name, n, stride):
    a = Asm()
    a(f's_cmp_ge_u32 s2, 1\n s_cbranch_scc1 {lab}_end')
    srd(a, 8, name, 4)
    a('v_mov_b32 v1, 0\n s_mov_b32 s20, 0\n s_mov_b64 exec, 1')
    a(f'{lab}_l:')
    a('buffer_load_dword v2, v1, s[8:11], s20 offen\n s_waitcnt vmcnt(0)')
    a(f's_add_u32 s20, s20, {stride}\n s_cmp_lt_u32 s20, {n*stride}\n s_cbranch_scc1 {lab}_l')
    a(f'{lab}_end:\n s_endpgm')
    return (lab, a.text(), 1, 64, 0)
def k_code(lab, nbytes, grid):
    a = Asm()
    a(f's_cmp_ge_u32 s2, {grid}\n s_cbranch_scc1 {lab}_end')
    a(f'.rept {nbytes//8}\n v_add3_u32 v1, v0, v0, v0\n .endr')
    a(f'{lab}_end:\n s_endpgm')
    return (lab, a.text(), grid, 256, 0)
b = base_kernels()
W = lambda n, s: open(f'exp/{n}.s', 'w').write(s)
e = k_empty('emp_kernel')
W('p_empty20', build([e]+b, [e]*20+b))
c = k_chain('ch_kernel', 'B_x', 1000, 2304)
W('p_chain_bx', build([c]+b))
c = k_chain('ch_kernel', 'sre', 1000, 8192+128)
W('p_chain_sre', build([c]+b))
c = k_chain('ch_kernel', 'wo', 1000, 640)
W('p_chain_wo', build([c]+b))
c = k_code('cd_kernel', 65536, 256)
W('p_code64k', build([c]+b))
```

```python
from gen import *
AST = 4*BL
def a_part(s):
    a = s.a; o = s.o
    a(f'''s_sub_u32 s33, s33, 18
    s_mul_i32 s40, s32, 6
    s_add_u32 s40, s40, s33
    s_cmp_ge_u32 s33, 6
    s_cselect_b32 s6, 6, 0
    s_addc_u32 s32, s32, 0
    s_sub_u32 s33, s33, s6
    s_mul_i32 s34, s33, 3
    s_lshr_b32 s34, s34, 1
    s_mul_i32 s34, s34, {o.rota}
    s_cmp_lt_u32 s3, 4
    s_cbranch_scc1 L_Ac''')
    a(f'''s_sub_u32 s39, s3, 4
    v_and_b32 v1, 7, v0
    v_lshlrev_b32 v1, 4, v1
    v_bfe_u32 v2, v0, 3, 1
    v_bfe_u32 v3, v0, 4, 1
    v_lshrrev_b32 v4, 5, v0
    v_lshl_add_u32 v2, v3, 4, v2
    v_lshl_add_u32 v2, v4, 2, v2
    s_and_b32 s6, s39, 1
    s_lshl_b32 s6, s6, 1
    s_lshr_b32 s7, s39, 1
    s_lshl_b32 s7, s7, 3
    s_add_u32 s6, s6, s7
    v_add_u32 v2, s6, v2
    v_mul_u32_u24 v2, {32*1152}, v2
    v_add_u32 v2, v2, v1
    s_mul_i32 s63, s32, 2304
    s_mul_i32 s64, s39, 1056
    s_mov_b32 s66, 0
    s_waitcnt lgkmcnt(0)
    s_mov_b32 s8, s4
    s_mov_b32 s9, s5
    L_Ald:
    s_lshl_b32 s68, s34, 7
    s_add_u32 s68, s68, s63''')
    for b in range(4):
        s.dma('s64', b*BL, 's68', (1024*(b & 1) + (b >> 1))*1152, 'v2', 's[8:11]')
    a(f'''s_add_u32 s34, s34, 1
    s_cmp_eq_u32 s34, 9
    s_cselect_b32 s34, 0, s34
    s_add_u32 s64, s64, {AST}
    s_add_u32 s66, s66, 1
    s_cmp_lt_u32 s66, 9
    s_cbranch_scc1 L_Ald''')
    for i in range(9): a(f's_waitcnt vmcnt({32-4*i})\n s_barrier')
    a('s_endpgm')
    ACC, HID, XB, FF = 8, 72, 144, 208
    a('L_Ac:')
    s.prefetch(250)
    a('s_cmp_eq_u32 s3, 3\n s_cbranch_scc1 L_end')
    a(f'''v_and_b32 v240, 15, v0
    v_lshrrev_b32 v241, 4, v0
    s_mul_i32 s41, s33, 3
    s_add_u32 s41, s41, s3
    s_lshl_b32 s6, s41, 4
    v_add_u32 v242, s6, v240
    v_mul_u32_u24 v243, 911, v242
    v_lshrrev_b32 v243, 16, v243
    v_mul_u32_u24 v244, 287, v243
    v_lshlrev_b32 v245, 2, v242
    v_sub_u32 v244, v245, v244
    v_cvt_f32_u32 v245, v244
    v_mul_f32 v245, {fb(1/576)}, v245
    v_and_b32 v246, 1, v244
    v_mul_u32_u24 v246, 0x8000, v246
    v_lshl_or_b32 v246, v246, 16, v246
    s_lshl_b32 s6, s34, 6
    v_lshl_add_u32 v247, v241, 3, s6
    v_cvt_f32_u32 v247, v247''')
    T = XB
    for i in range(9):
        a(f'v_mul_f32 v{T}, v247, v245\n v_add_f32 v247, {fb(32.0)}, v247\n v_fract_f32 v{T}, v{T}')
        for j in range(1, 8): a(f'v_add_f32 v{T+j}, v{T+j-1}, v245')
        for j in range(8): a(f'v_cos_f32 v{T+8+j}, v{T+j}')
        for j in range(8): a(f'v_sin_f32 v{T+j}, -v{T+j}')
        for h in range(4): a(f'v_cvt_pk_bf16_f32 v{HID+8*i+h}, v{T+8+2*h}, v{T+9+2*h}')
        for h in range(4): a(f'v_cvt_pk_bf16_f32 v{HID+8*i+4+h}, v{T+2*h}, v{T+1+2*h}')
    a('s_cmp_lg_u32 s41, 0\n s_cbranch_scc1 L_Ac1\n s_mov_b32 exec_lo, 0x10001\n s_mov_b32 exec_hi, 0x10001\n s_mov_b32 s6, 0xbf803f80')
    for i in range(9):
        for h in range(4): a(f'v_mov_b32 v{HID+8*i+4+h}, s6')
    a('s_mov_b64 exec, -1\n L_Ac1:')
    a(f'''v_lshrrev_b32 v1, 1, v240
    v_cvt_f32_u32 v1, v1
    v_mul_f32 v1, {fb(1/64)}, v1
    v_and_b32 v2, 1, v240
    v_cvt_f32_u32 v2, v2
    v_mul_f32 v2, {fb(0.25)}, v2
    v_lshlrev_b32 v3, 3, v241
    v_cvt_f32_u32 v3, v3
    v_add_f32 v4, {fb(32.0)}, v3
    v_cmp_eq_u32 vcc, 1, v240
    v_cndmask_b32 v5, v1, 0.5, vcc
    v_cndmask_b32 v6, v2, 0, vcc''')
    for m in range(4):
        w, ph = ('v5', 'v6') if m == 0 else ('v1', 'v2')
        if m: a(f'v_add_f32 v1, {fb(0.125)}, v1')
        for q in range(2):
            a(f'v_fma_f32 v{T}, v{3+q}, {w}, {ph}')
            for j in range(1, 8): a(f'v_add_f32 v{T+j}, v{T+j-1}, {w}')
            for j in range(8): a(f'v_cos_f32 v{T+j}, v{T+j}')
            for h in range(4): a(f'v_cvt_pk_bf16_f32 v{FF+8*m+4*q+h}, v{T+2*h}, v{T+1+2*h}')
    a(f'''v_bfe_u32 v6, v0, 1, 2
    v_and_b32 v7, 1, v0
    v_bfe_u32 v4, v0, 3, 1
    v_lshl_add_u32 v7, v4, 1, v7
    v_and_b32 v4, 0x30, v0
    v_lshl_add_u32 v7, v7, 7, v4
    v_mul_u32_u24 v2, 1056, v6
    v_add_u32 v2, v2, v7
    v_add_u32 v3, {3*AST}, v2
    v_add_u32 v4, {6*AST}, v2
    s_waitcnt lgkmcnt(0)''')
    s.ts(1)
    a('s_barrier')
    s.ts(2)
    def rdx(ks):
        st = ks >> 1
        return [('r', f'ds_read_b128 {vr(XB+32*(ks&1)+4*t,4)}, v{2+st//3} offset:{(st%3)*AST+(t>>1)*BL+(t&1)*512+(ks&1)*64}', R(XB+32*(ks&1)+4*t, 4)) for t in range(8)]
    ops = rdx(0)
    for ks in range(18):
        pend = []
        if ks == 12: pend.append(('t', 'buffer_load_dword v249, off, s[28:31], 0 sc1'))
        if ks < 17:
            if ks & 1: ops.append(('t', 's_barrier'))
            pend += rdx(ks+1)
        if 1 <= ks <= 9: pend += [('t', f'v_xor_b32 v{HID+8*(ks-1)+h}, v246, v{HID+8*(ks-1)+h}') for h in range(8)]
        for t in range(8):
            for ab in range(2):
                x = XB+32*(ks&1)+4*t; acc = ACC + 32*ab + 4*t
                ops.append(('m', f'{MF} {vr(acc,4)}, {vr(x,4)}, {vr(HID+8*(ks%9)+4*ab,4)}, {vr(acc,4) if ks else 0}', R(x, 4)))
                if pend: ops.append(pend.pop(0))
        ops += pend
    a(resolve(ops, loop=False, cap=4))
    s.ts(3)
    Z, U = XB, HID
    a(f'''s_mul_i32 s6, s32, 4608
    v_mul_u32_u24 v5, 147456, v241
    v_lshl_add_u32 v5, v242, 4, v5
    v_add_u32 v5, s6, v5''')
    for k in range(8):
        for h in range(4): a(f'v_cvt_pk_bf16_f32 v{Z+4*k+h}, v{ACC+8*k+2*h}, v{ACC+8*k+2*h+1}')
    for m in range(4):
        for q in range(2):
            for ab in range(2):
                for s2 in range(2):
                    u = U + 16*m + 8*ab + 4*s2
                    a(f'{MF} {vr(u,4)}, {vr(FF+8*m+4*q,4)}, {vr(Z+16*ab+8*s2+4*q,4)}, {vr(u,4) if q else 0}')
        for mm in ([m-1] if m else []) + ([3] if m == 3 else []):
            for cl in range(2):
                g = ACC + 8*mm + 4*cl
                for ab in range(2):
                    for ri in range(2):
                        u = U + 16*mm + 8*ab + 2*cl + ri
                        a(f'v_cvt_pk_bf16_f32 v{g+2*ab+ri}, v{u}, v{u+4}')
                a(f's_mov_b32 s6, {WS_U + (8*mm+cl)*73728}\n buffer_store_dwordx4 {vr(g,4)}, v5, s[24:27], s6 offen sc1')
    s.ts(4)
    CF, UD, AC2, AD = 72, 136, 8, 216
    CS = 200
    a(f'''s_mul_i32 s42, s40, 43
    s_lshr_b32 s42, s42, 7
    s_mul_i32 s6, s42, 3
    s_sub_u32 s43, s40, s6
    s_mul_i32 s43, s43, 3
    s_add_u32 s43, s43, s3
    v_lshlrev_b32 v3, 3, v241
    v_cvt_f32_u32 v3, v3
    s_mov_b32 s44, 0x80008000''')
    def trig(cl):
        a(f'v_lshl_add_u32 v1, v240, 6, {cl}\n v_cvt_f32_u32 v1, v1\n v_mul_f32 v1, {fb(1/2048)}, v1')
        for tt in range(2):
            if tt: a('v_add_f32 v1, 0.5, v1')
            a(f'v_mul_f32 v{UD}, v3, v1')
            for j in range(1, 8): a(f'v_add_f32 v{UD+j}, v{UD+j-1}, v1')
            for j in range(8): a(f'v_cos_f32 v{UD+8+j}, v{UD+j}')
            for j in range(8): a(f'v_sin_f32 v{UD+j}, v{UD+j}')
            for q in range(4): a(f'v_cvt_pk_bf16_f32 v{CS+8*tt+q}, v{UD+8+2*q}, v{UD+9+2*q}')
            for q in range(4): a(f'v_cvt_pk_bf16_f32 v{CS+8*tt+4+q}, v{UD+2*q}, v{UD+1+2*q}')
    trig('s42')
    for tt in range(2):
        for q in range(4):
            c = CS+8*tt+q; sn = c+4; M = CF + 16*tt + 4*q; N = M + 32
            a(f'''v_mov_b32 v{M}, v{c}
            v_mov_b32 v{M+1}, v{sn}
            v_mov_b32 v{M+2}, v{sn}
            v_xor_b32 v{M+3}, s44, v{c}
            v_mov_b32 v{N}, v{c}
            v_mov_b32 v{N+1}, v{sn}
            v_xor_b32 v{N+2}, s44, v{sn}
            v_mov_b32 v{N+3}, v{c}''')
    a('s_mov_b32 s45, s42\n s_cmp_lg_u32 s42, 0\n s_cbranch_scc1 L_Ac2\n s_mov_b32 s45, 32')
    trig('32')
    for tt in range(2):
        for q in range(4):
            c = CS+8*tt+q; sn = c+4; M = CF + 16*tt + 4*q; N = M + 32
            a(f'''v_mov_b32 v{M+1}, 0
            v_mov_b32 v{M+3}, 0
            v_mov_b32 v{N}, 0
            v_mov_b32 v{N+1}, v{c}
            v_mov_b32 v{N+2}, 0
            v_xor_b32 v{N+3}, s44, v{sn}''')
    a('L_Ac2:')
    a('s_cmp_lg_u32 s3, 0\n s_cbranch_scc1 L_An2')
    s.nonce_wait('L_An', 249)
    a('L_An2:\n s_waitcnt vmcnt(0)\n s_barrier')
    s.ts(5)
    a(f'''s_cmp_lg_u32 s3, 0
    s_cbranch_scc1 L_Af
    s_lshl_b32 s6, s40, 7
    s_add_u32 s6, s6, {WS_FU}
    s_mov_b64 exec, 1
    buffer_store_dword v249, off, s[24:27], s6 sc1
    s_mov_b64 exec, -1
    L_Af:
    s_lshl_b32 s6, s43, 6
    v_lshl_add_u32 v1, v240, 2, s6
    v_mul_u32_u24 v2, 18432, v241
    s_movk_i32 s7, 288
    v_cmp_gt_u32 s[46:47], s7, v1
    v_cmp_eq_u32 s[48:49], s7, v1
    v_cmp_eq_u32 s[50:51], 0, v1''')
    for j in range(4):
        a(f'''v_add_u32 v3, {j}, v1
        v_sub_u32 v4, 576, v3
        v_cndmask_b32 v3, v4, v3, s[46:47]''')
        if j == 0: a('v_cndmask_b32 v3, v3, 0, s[48:49]')
        a(f'''v_and_b32 v4, 3, v3
        v_lshrrev_b32 v3, 2, v3
        v_mul_u32_u24 v4, 72, v4
        v_add_u32 v3, v3, v4
        v_lshl_add_u32 v{232+j}, v3, 4, v2''')
    a(f'''s_or_b64 s[50:51], s[50:51], s[48:49]
    v_lshlrev_b32 v1, 1, v1
    v_lshlrev_b32 v2, 8, v241
    v_add_u32 v3, s42, v2
    v_sub_u32 v4, 2048, v3
    v_cndmask_b32 v3, v4, v3, s[46:47]
    v_add_u32 v5, s45, v2
    v_sub_u32 v4, 2048, v5
    v_cndmask_b32 v5, v5, v4, s[46:47]
    v_mov_b32 v6, {64*2304}
    v_mov_b32 v7, {-64*2304 & 0xffffffff}
    v_cndmask_b32 v6, v7, v6, s[46:47]
    v_lshlrev_b32 v7, 4, v6
    s_movk_i32 s6, 2304
    v_mad_u32_u24 v{AD}, v3, s6, v1
    v_mad_u32_u24 v{AD+8}, v5, s6, v1''')
    for i in range(1, 4): a(f'v_add_u32 v{AD+i}, v{AD+i-1}, v6\n v_sub_u32 v{AD+8+i}, v{AD+8+i-1}, v6')
    for i in range(4): a(f'v_add_u32 v{AD+4+i}, v{AD+i}, v7\n v_sub_u32 v{AD+12+i}, v{AD+8+i}, v7')
    a(f'''v_and_b32 v3, 2047, v3
    v_mad_u32_u24 v{AD}, v3, s6, v1
    s_mul_i32 s52, s42, 73728
    s_cmp_lg_u32 s3, 0
    s_cbranch_scc1 L_Apd
    v_lshlrev_b32 v1, 8, v0
    s_mov_b32 s6, {WS_FU}
    s_movk_i32 s5, {SPIN}
    s_mov_b32 exec_hi, 0xffff
    L_Ap:
    buffer_load_dword v2, v1, s[24:27], s6 offen sc1
    buffer_load_dword v3, v1, s[24:27], s6 offen offset:128 sc1
    s_sub_u32 s5, s5, 1
    s_cbranch_scc1 L_Ap1
    s_waitcnt vmcnt(0)
    v_cmp_ne_u32 vcc, v2, v249
    v_cmp_ne_u32 s[54:55], v3, v249
    s_or_b64 vcc, vcc, s[54:55]
    s_cbranch_scc1 L_Ap
    L_Ap1:
    s_waitcnt vmcnt(0)
    s_mov_b32 exec_hi, -1
    L_Apd:
    s_barrier''')
    s.ts(6)
    order = [1, 2, 3, 0]
    for q in range(4):
        a(f's_add_u32 s6, s52, {WS_U + q*4608}')
        for j in [0, 1, 2, 3]: a(f'buffer_load_dwordx4 {vr(UD+16*q+4*j,4)}, v{232+j}, s[24:27], s6 offen sc1')
    for q in range(4):
        a(f's_waitcnt vmcnt({12-4*q})')
        u = UD + 16*q
        a(f'''v_cndmask_b32 v{u}, v{u}, v{u+2}, s[48:49]
        v_cndmask_b32 v{u+1}, v{u+1}, v{u+3}, s[48:49]
        v_cndmask_b32 v{u+2}, v{u+2}, 0, s[50:51]
        v_cndmask_b32 v{u+3}, v{u+3}, 0, s[50:51]''')
        for st in range(4):
            for j in order:
                acc = AC2 + 16*st + 4*j
                a(f'{MF} {vr(acc,4)}, {vr(CF+16*st+4*q,4)}, {vr(u+4*j,4)}, {vr(acc,4) if q else 0}')
    s.ts(7)
    for st in range(4):
        for i in range(4):
            b = AC2 + 16*st + i; d = UD + 8*st + 2*i
            a(f'v_cvt_pk_bf16_f32 v{d}, v{b}, v{b+4}\n v_cvt_pk_bf16_f32 v{d+1}, v{b+8}, v{b+12}')
            a(f'buffer_store_dwordx2 {vr(d,2)}, v{AD+4*st+i}, s[20:23], 0 offen')
    s.ts(8)
    s.ts_dump(10)
    a('s_endpgm')
```

```python
import re
TRANS = ('v_exp_', 'v_log_', 'v_rcp_', 'v_rsq_', 'v_sqrt_', 'v_sin_', 'v_cos_')
def regs(tok):
    tok = tok.strip().lstrip('-').strip('|')
    m = re.fullmatch(r'([vsa])(\d+)', tok)
    if m: return {(m.group(1), int(m.group(2)))}
    m = re.fullmatch(r'([vsa])\[(\d+):(\d+)\]', tok)
    if m: return {(m.group(1), i) for i in range(int(m.group(2)), int(m.group(3)) + 1)}
    if tok in ('vcc', 'exec', 'm0'): return {('x', tok)}
    if tok in ('vcc_lo', 'vcc_hi'): return {('x', 'vcc')}
    if tok in ('exec_lo', 'exec_hi'): return {('x', 'exec')}
    return set()
class I:
    def __init__(s, line):
        s.line = line
        t = line.split(';')[0].strip()
        s.label = t[:-1] if t.endswith(':') else None
        s.isins = bool(t) and not s.label and not t.startswith('.')
        s.op = ''; s.d = set(); s.s = set(); s.ws = 0; s.k = ''
        if not s.isins: return
        p = t.split(None, 1); s.op = p[0]
        ops = [o.strip() for o in p[1].split(',')] if len(p) > 1 else []
        if ops:
            last = ops[-1].split()
            mods = last[1:]; ops[-1] = last[0]
        else: mods = []
        s.mods = mods; s.ops = ops
        R = [regs(o) for o in ops]
        U = lambda l: set().union(*l) if l else set()
        op = s.op; s.ws = 1
        if op == 's_nop': s.ws = int(ops[0]) + 1; s.k = 'nop'
        elif op.startswith('v_mfma'):
            s.k = 'mfma'; s.d = R[0]; s.ab = R[1] | R[2]; s.c = R[3]; s.s = s.ab | s.c
            s.passes = 8 if '32x32' in op else (2 if '4x4' in op else 4)
        elif op.startswith('v_'):
            s.k = 'valu'
            if 'permlane' in op and 'swap' in op: s.d = U(R); s.s = U(R)
            elif '_co_' in op: s.d = R[0] | R[1]; s.s = U(R[2:])
            else:
                s.d = R[0]; s.s = U(R[1:])
                if op.startswith(('v_fmac', 'v_mac', 'v_dot2c', 'v_writelane')): s.s |= R[0]
        elif op.startswith('ds_'):
            s.k = 'ds'
            if op.startswith(('ds_read', 'ds_bperm', 'ds_perm', 'ds_swiz')): s.d = R[0]; s.s = U(R[1:])
            else: s.s = U(R)
        elif op.startswith(('buffer_', 'global_')):
            s.k = 'vmem'; s.dma = 'lds' in mods or '_lds_' in op
            if '_load' in op and not s.dma: s.d = R[0]; s.s = U(R[1:])
            else: s.s = U(R)
            s.wide = set()
            if '_store_dwordx4' in op or '_store_dwordx3' in op:
                s.wide = R[0] if op.startswith('buffer') else R[1]
        elif op.startswith('s_'):
            s.k = 'salu'
            if op.startswith(('s_cmp', 's_cbranch', 's_branch', 's_waitcnt', 's_barrier', 's_endpgm', 's_sleep', 's_setprio', 's_bitcmp')): s.s = U(R)
            else:
                s.d = R[0] if R else set(); s.s = U(R[1:])
        else: raise ValueError(line)
def need(p, c):
    n = 0
    vd = {r for r in p.d if r[0] in 'va'}
    sd = {r for r in p.d if r[0] == 's' or r == ('x', 'vcc')}
    if p.k == 'valu':
        if c.k == 'mfma' and vd & c.s: n = max(n, 2)
        if c.k == 'valu':
            if vd & c.s:
                if 'permlane' in c.op or any('row_' in m or 'quad_perm' in m for m in c.mods): n = max(n, 2)
                if c.op.startswith(('v_readlane', 'v_readfirstlane')): n = max(n, 1)
                if p.op.startswith(TRANS): n = max(n, 1)
            if sd & c.s: n = max(n, 4 if c.op.startswith(('v_readlane', 'v_writelane')) else 2)
        if c.k == 'vmem' and sd & c.s: n = max(n, 5)
    if p.k == 'mfma':
        P = p.passes
        if c.k == 'mfma':
            if p.d & c.ab: n = max(n, {2: 5, 4: 8, 8: 12}[P])
            if p.d & c.c:
                if not (p.d == c.c and P == c.passes): n = max(n, {2: 4, 4: 6, 8: 10}[P])
                elif P == 2: n = max(n, 2)
            if p.d & c.d and not (p.d == c.d and p.d == c.c): n = max(n, {2: 4, 4: 6, 8: 10}[P])
        elif c.k in ('valu', 'ds', 'vmem'):
            if p.d & (c.s | c.d): n = max(n, {2: 5, 4: 8, 8: 12}[P])
            if c.k == 'valu' and p.c & c.d: n = max(n, {2: 1, 4: 3, 8: 7}[P])
    if p.k == 'salu' and ('x', 'm0') in p.d and c.k == 'vmem' and c.dma: n = max(n, 1)
    if p.k == 'vmem' and p.wide & c.d: n = max(n, 2)
    return n
def deficit(hist, c):
    dist = 0; d = 0
    for p in reversed(hist):
        if dist >= 12: break
        d = max(d, need(p, c) - dist)
        dist += p.ws
    return d
def fix(text, verbose=False):
    ins = [I(l) for l in text.split('\n')]
    lab = {x.label: i for i, x in enumerate(ins) if x.label}
    out = []; hist = []; nn = 0
    for i, x in enumerate(ins):
        if not x.isins:
            out.append(x.line); continue
        d = deficit(hist, x)
        if x.op.startswith(('s_cbranch', 's_branch')):
            h = hist[-12:] + [x]; n0 = len(h); j = lab[x.ops[0]]; dist = 0
            while j < len(ins) and dist < 12:
                y = ins[j]; j += 1
                if not y.isins: continue
                dd = 0; ds = dist
                for p in reversed(h):
                    if ds >= 12: break
                    dd = max(dd, need(p, y) - ds); ds += p.ws
                d = max(d, dd); dist += y.ws
                if y.op in ('s_branch', 's_endpgm'): break
        if d > 0:
            nop = I(f'    s_nop {d-1}'); out.append(nop.line); hist.append(nop); nn += 1
        out.append(x.line); hist.append(x)
        if x.op in ('s_branch', 's_endpgm'): hist = []
        hist = hist[-16:]
    if verbose: print('nops inserted', nn)
    return '\n'.join(out)
```

```python
import sys, struct, math
sys.path.insert(0, 'exp')
from asmlib import *
import haz
def fb(x): return hex(struct.unpack('<I', struct.pack('<f', x))[0])
WS_U, WS_O, WS_XC, WS_FO, WS_FU, WS_TS = 0, 0x400000, 0x800000, 0xC00000, 0xC40000, 0xD00000
SL = 44416; L_X = 0; L_WV = 16896; L_XH = 25344; L_WQK = 27520; BL = 4224
QS = L_WQK; KS = SL + L_WQK; VS = 2*SL + L_WQK
HS = 3*SL; TR = HS + 4096; L_NON = TR + 8*2304; LDS_BYTES = L_NON + 128
NWG = 240
SPIN = 30000
class Opt:
    prof = False; clk = 's_memrealtime'; rotc = 1; rota = 1; ldf = ''; doA = True; doB = True; pre = True
MF = 'v_mfma_f32_16x16x32_bf16'
MF16 = 'v_mfma_f32_16x16x16_bf16'

def resolve(ops, loop=True, cap=8):
    out = []
    seq = 0; last = {}; done = -1
    for it in range(2 if loop else 1):
        out = []
        for o in ops:
            if o[0] == 'r':
                for r in o[2]: last[r] = seq
                seq += 1; out.append(o[1])
            elif o[0] == 'm':
                nd = max([last.get(r, -1) for r in o[2]])
                if nd > done:
                    n = min(seq - 1 - nd, cap)
                    out.append(f's_waitcnt lgkmcnt({n})'); done = seq - 1 - n
                out.append(o[1])
            elif o[0] == 'w0':
                out.append('s_waitcnt lgkmcnt(0)'); done = seq - 1
            else: out.append(o[1])
    return '\n'.join(out)
def R(b, n): return list(range(b, b+n))

class G:
    def __init__(s, o):
        s.o = o; s.a = Asm(); s.nts = 0
    def ts(s, i):
        if s.o.prof: s.a(f'{s.o.clk} s[{80+2*i}:{81+2*i}]\n s_waitcnt lgkmcnt(0)')
    def ts_dump(s, n):
        if not s.o.prof: return
        a = s.a
        a('s_waitcnt vmcnt(0)')
        s.ts(n-1)
        a(f's_lshl_b32 s4, s2, 3\n s_add_u32 s4, s4, s3\n s_lshl_b32 s4, s4, 6\n s_add_u32 s4, s4, {WS_TS}\n s_mov_b64 exec, 1\n v_mov_b32 v1, 0')
        for i in range(n):
            a(f'v_mov_b32 v2, s{80+2*i}\n buffer_store_dword v2, v1, s[24:27], s4 offen offset:{4*i}')
    def dma(s, ldsreg, ldsoff, kreg, koff, voff, srd):
        s.a(f's_add_u32 m0, {ldsreg}, {ldsoff}\n s_add_u32 s7, {kreg}, {koff}')
        s.a(f'buffer_load_dwordx4 {voff}, {srd}, s7 offen {s.o.ldf} lds')
    def srds(s):
        s.a('''s_mov_b32 s14, 1990656
        s_mov_b32 s15, s11
        s_mov_b32 s18, 663552
        s_mov_b32 s19, s11
        s_mov_b32 s22, 4718592
        s_mov_b32 s23, s11
        s_mov_b32 s26, 0x1000000
        s_mov_b32 s27, s11
        s_movk_i32 s30, 256
        s_mov_b32 s31, s11''')
    def prefetch(s, r=232):
        if not s.o.pre: return
        s.nts += 1; L = f'L_pc{s.nts}'
        s.a(f'''s_getpc_b64 s[36:37]
        {L}:
        s_sub_u32 s36, s36, {L}-L_top
        s_subb_u32 s37, s37, 0
        s_lshl_b32 s38, s3, 13
        v_lshl_add_u32 v{r}, v0, 7, s38
        v_min_u32 v{r}, L_last-L_top, v{r}
        global_load_dword v{r+1}, v{r}, s[36:37]''')
    def nonce_wait(s, lab, v):
        s.a(f'''s_movk_i32 s5, {SPIN}
        {lab}:
        s_waitcnt vmcnt(0)
        v_cmp_ne_u32 vcc, 0, v{v}
        s_cbranch_vccnz {lab}d
        buffer_load_dword v{v}, off, s[28:31], 0 sc1
        s_sub_u32 s5, s5, 1
        s_cbranch_scc0 {lab}
        s_waitcnt vmcnt(0)
        {lab}d:''')
    def entry(s):
        a = s.a
        a(f'''L_top:
        s_cmpk_ge_u32 s2, {NWG}
        s_cbranch_scc1 L_end
        s_load_dwordx2 s[8:9], s[0:1], 40
        s_load_dwordx2 s[12:13], s[0:1], 48
        s_load_dwordx2 s[4:5], s[0:1], 0
        s_load_dwordx2 s[16:17], s[0:1], 56
        s_load_dwordx2 s[20:21], s[0:1], 64
        s_load_dwordx2 s[28:29], s[0:1], 72
        s_load_dwordx2 s[24:25], s[0:1], 80''')
        if s.o.prof: a(f'{s.o.clk} s[80:81]')
        a(f'''v_lshrrev_b32 v1, 6, v0
        v_and_b32 v0, 63, v0
        v_readfirstlane_b32 s3, v1
        s_mov_b32 s10, 2359296
        s_mov_b32 s11, 0x20000''')
        s.srds()
        a(f'''s_and_b32 s32, s2, 7
        s_lshl_b32 s32, s32, 1
        s_lshr_b32 s33, s2, 3
        s_cmp_ge_u32 s33, 18
        s_cbranch_scc1 L_A
        s_cmp_ge_u32 s33, 9
        s_cselect_b32 s6, 9, 0
        s_addc_u32 s32, s32, 0
        s_sub_u32 s33, s33, s6
        s_cmp_lt_u32 s3, 4
        s_cbranch_scc1 L_Bc''')
        if not s.o.doB: a('s_endpgm')
    def b_loader(s):
        a = s.a; o = s.o
        a(f'''s_sub_u32 s39, s3, 4
        v_and_b32 v1, 7, v0
        v_lshlrev_b32 v1, 4, v1
        v_bfe_u32 v2, v0, 3, 1
        v_bfe_u32 v3, v0, 4, 1
        v_lshrrev_b32 v4, 5, v0
        s_lshl_b32 s6, s39, 1
        v_lshl_add_u32 v5, v3, 3, v2
        v_add_u32 v5, s6, v5
        v_lshl_add_u32 v83, v4, 4, v5
        v_mul_u32_u24 v80, 2304, v83
        v_add_u32 v80, v80, v1
        v_lshl_add_u32 v6, v3, 2, v2
        v_lshl_add_u32 v6, v4, 4, v6
        s_and_b32 s34, s39, 1
        s_lshl_b32 s34, s34, 1
        s_lshr_b32 s35, s39, 1
        s_lshl_b32 s35, s35, 3
        s_add_u32 s34, s34, s35
        v_add_u32 v6, s34, v6
        v_mul_u32_u24 v82, 3456, v6
        s_lshl_b32 s35, s33, 7
        v_add3_u32 v82, v82, v1, s35
        v_add_u32 v6, s6, v2
        v_lshl_add_u32 v6, v6, 1, v3
        s_lshl_b32 s34, s32, 7
        s_sub_u32 s34, s34, 16
        s_max_i32 s34, s34, 0
        v_add_u32 v6, s34, v6
        v_mul_u32_u24 v81, 1152, v6
        v_add_u32 v81, v81, v1
        s_mul_i32 s63, s32, {128*1152}
        s_mul_i32 s34, s32, {o.rotc}
        s_add_u32 s34, s34, s33
        s_mul_i32 s6, s34, 57
        s_lshr_b32 s6, s6, 9
        s_mul_i32 s6, s6, 9
        s_sub_u32 s34, s34, s6
        s_mul_i32 s64, s39, 1056
        s_mul_i32 s65, s39, 544
        s_mov_b32 s66, 0
        s_waitcnt lgkmcnt(0)''')
        a(f'''L_ld:
        s_lshl_b32 s67, s34, 7
        s_add_u32 s68, s67, s63
        s_mul_i32 s69, s34, {64*3456}''')
        for cw in range(4):
            s.dma('s64', L_X + cw*BL, 's68', (64*(cw >> 1) + (cw & 1))*1152, 'v80', 's[8:11]')
        a(f's_add_u32 m0, s65, {L_XH}\n s_mov_b32 exec_hi, 0')
        a(f'buffer_load_dwordx4 v81, s[8:11], s67 offen {o.ldf} lds\n s_mov_b32 exec_hi, -1')
        for ks in range(2):
            for m in range(2):
                s.dma('s64', L_WQK + (2*ks+m)*BL, 's69', ks*32*3456 + m*1152, 'v82', 's[12:15]')
        a('s_cmp_ge_u32 s66, 6\n s_cbranch_scc1 L_ld1')
        for ks in range(2):
            s.dma('s64', L_WV + ks*BL, 's69', ks*32*3456 + 2304, 'v82', 's[12:15]')
        a(f'''L_ld1:
        s_add_u32 s34, s34, 1
        s_cmp_eq_u32 s34, 9
        s_cselect_b32 s34, 0, s34
        s_add_u32 s64, s64, {SL}
        s_add_u32 s65, s65, {SL}
        s_cmp_ge_u32 s64, {3*SL}
        s_cselect_b32 s6, {3*SL}, 0
        s_sub_u32 s64, s64, s6
        s_sub_u32 s65, s65, s6
        s_add_u32 s66, s66, 1
        s_cmp_lt_u32 s66, 3
        s_cbranch_scc1 L_ld
        s_cmp_eq_u32 s66, 3
        s_cbranch_scc1 L_Bconst
        L_ld2:
        s_cmp_eq_u32 s66, 9
        s_cbranch_scc1 L_ld4
        s_waitcnt vmcnt(11)
        s_cmp_lt_u32 s66, 7
        s_cbranch_scc1 L_ld3
        s_waitcnt vmcnt(9)
        L_ld3:
        s_barrier
        s_branch L_ld
        L_ld4:''')
        a('s_add_u32 s34, s34, 6')
        for i in range(3):
            a(f's_cmp_ge_u32 s34, 9\n s_cselect_b32 s6, 9, 0\n s_sub_u32 s34, s34, s6\n s_mul_i32 s69, s34, {64*3456}\n s_add_u32 s34, s34, 1')
            for ks in range(2):
                s.dma('s64', i*SL + L_WV + ks*BL, 's69', ks*32*3456 + 2304, 'v82', 's[12:15]')
        a(f'''v_mul_u32_u24 v83, 1152, v83
        v_add3_u32 v83, v83, v1, s35
        v_add_u32 v84, {32*1152}, v83
        s_mul_i32 s69, s33, {64*1152}''')
        for i in range(9):
            a(f'buffer_load_dwordx4 {vr(8+8*i,4)}, v83, s[16:19], s69 offen {o.ldf}\n buffer_load_dwordx4 {vr(12+8*i,4)}, v84, s[16:19], s69 offen {o.ldf}')
            if i < 8: a(f's_add_u32 s69, s69, {64*1152}\n s_cmp_eq_u32 s69, s18\n s_cselect_b32 s69, 0, s69')
        a('''s_waitcnt vmcnt(33)
        s_barrier
        s_waitcnt vmcnt(24)
        s_barrier
        s_barrier
        s_waitcnt vmcnt(18)
        s_branch L_Bqk''')
    def b_const(s):
        a = s.a
        a('L_Bconst:')
        a(f'''v_and_b32 v216, 15, v0
        v_lshrrev_b32 v217, 4, v0
        v_lshlrev_b32 v218, 2, v217
        v_sub_u32 v219, v216, v218
        v_lshlrev_b32 v248, 4, v0
        s_lshr_b32 s6, s3, 1
        s_or_b32 s6, s6, s32
        s_cmp_eq_u32 s6, 0
        s_cselect_b32 s6, -16, -8
        v_mov_b32 v220, {fb(-1e30)}
        v_mov_b32 v222, 0xffff
        v_mov_b32 v223, 0xffff0000''')
        for i in range(4):
            a(f'''v_subrev_u32 v221, {i}, v219
            v_cmp_le_u32 s[40:41], 8, v221
            v_cmp_le_i32 s[42:43], s6, v221
            v_cmp_le_i32 s[44:45], 0, v221
            v_cndmask_b32 v{192+i}, 0, v220, s[40:41]
            v_cndmask_b32 v{196+i}, 0, v220, s[42:43]
            v_cndmask_b32 v{224+i}, 0, v{222+(i&1)}, s[44:45]''')
        a('v_or_b32 v200, v224, v225\n v_or_b32 v201, v226, v227')
        a(f'''s_lshl_b32 s6, s33, 6
        s_add_u32 s7, s6, 17
        s_mul_i32 s7, s7, 3641
        s_lshr_b32 s7, s7, 16
        s_mul_i32 s7, s7, 18
        s_sub_u32 s6, s7, s6
        s_mov_b32 s7, s6''')
        for t in range(4):
            if t: a(f's_cmp_eq_u32 s6, {18-2*t}\n s_cselect_b32 s4, -16, 2\n s_add_u32 s7, s7, s4')
            a(f's_sub_u32 s4, s7, 2\n v_cmp_gt_i32 s[{40+4*t}:{41+4*t}], s7, v218\n v_cmp_gt_i32 s[{42+4*t}:{43+4*t}], s4, v218')
        a(f'''s_mov_b32 s56, 0x07060500
        s_mov_b32 s57, 0x07060501
        s_mov_b32 s58, 0x07060502
        s_mov_b32 s59, 0x07060503
        s_mov_b32 s60, 0x0c0c0400
        s_mov_b32 s61, 0x05040100
        s_mov_b32 s62, {fb(math.log2(math.e)/math.sqrt(18))}
        s_and_b32 s70, s3, 3
        s_lshr_b32 s71, s3, 2
        s_lshl_b32 s72, s70, 1
        s_add_u32 s72, s72, s71
        s_lshl_b32 s6, s72, 11
        s_add_u32 s6, s6, {QS}
        v_add_u32 v202, s6, v248
        v_add_u32 v203, {VS-QS}, v202
        s_cmp_ge_u32 s3, 4
        s_cselect_b32 s4, 1, 3
        s_lshl_b32 s4, s4, 11
        s_sub_u32 s4, {KS-QS}, s4
        v_add_u32 v204, s4, v202
        v_add_u32 v205, {VS-KS}, v204
        s_cmp_ge_u32 s3, 2
        s_cbranch_scc1 L_Bc1
        s_lshl_b32 s4, s3, 7
        s_add_u32 s4, s4, {HS}
        v_and_b32 v204, 0x370, v248
        v_add_u32 v204, s4, v204
        s_lshl_b32 s4, s3, 9
        s_add_u32 s4, s4, {HS+2048}
        v_and_b32 v205, 0x1f0, v248
        v_add_u32 v205, s4, v205
        L_Bc1:
        s_lshr_b32 s4, s70, 1
        s_lshl_b32 s5, s4, 10
        s_and_b32 s6, s70, 1
        s_lshl_b32 s7, s6, 3
        s_add_u32 s5, s5, s7
        s_add_u32 s5, s5, {HS}
        v_add_u32 v206, s5, v248
        s_lshl_b32 s4, s4, 6
        s_add_u32 s4, s4, s6
        s_lshl_b32 s5, s71, 5
        s_add_u32 s4, s4, s5
        s_lshl_b32 s5, s32, 7
        s_add_u32 s4, s4, s5
        s_mul_i32 s4, s4, 2304
        s_lshl_b32 s5, s33, 7
        s_add_u32 s4, s4, s5
        s_add_u32 s73, s4, 1152
        v_lshrrev_b32 v221, 3, v0
        v_and_b32 v222, 0x70, v248
        v_mov_b32 v223, 4608
        v_mad_u32_u24 v254, v221, v223, v222
        s_mul_i32 s4, s3, 2304
        s_add_u32 s4, s4, {TR}
        v_mul_u32_u24 v253, 144, v221
        v_add3_u32 v253, v253, v222, s4
        v_mul_u32_u24 v252, 144, v216
        v_lshl_add_u32 v252, v217, 3, v252
        v_add_u32 v252, s4, v252
        v_bfe_u32 v221, v0, 3, 2
        v_mul_u32_u24 v221, 1056, v221
        v_bfe_u32 v222, v0, 2, 1
        v_lshl_add_u32 v221, v222, 7, v221
        v_and_b32 v222, 3, v0
        v_lshl_add_u32 v207, v222, 3, v221
        v_lshrrev_b32 v222, 5, v0
        v_lshl_add_u32 v250, v222, 8, v207
        v_add_u32 v251, 59968, v250
        v_lshl_add_u32 v207, v222, 9, v207
        s_mul_i32 s4, s70, 1056
        v_add_u32 v208, s4, v248
        v_add_u32 v209, 59968, v208
        v_lshlrev_b32 v255, 7, v0
        s_lshl_b32 s4, s32, 3
        s_add_u32 s4, s4, s72
        s_mul_i32 s74, s4, 18432
        s_add_u32 s74, s74, {WS_O}
        s_mul_i32 s75, s4, 1152
        s_add_u32 s75, s75, {WS_FO}
        s_mul_i32 s4, s32, 9
        s_add_u32 s4, s4, s33
        s_lshl_b32 s4, s4, 14
        s_lshl_b32 s5, s72, 10
        s_add_u32 s4, s4, s5
        s_add_u32 s76, s4, {WS_XC}
        s_add_u32 s77, s76, 8192
        s_cmp_eq_u32 s33, 0
        s_cselect_b32 s4, 0, 8192
        s_sub_u32 s78, s76, s4
        s_cmp_eq_u32 s33, 8
        s_cselect_b32 s4, 0, 8192
        s_add_u32 s79, s77, s4
        s_cmp_lt_u32 s3, 4
        s_cbranch_scc1 L_Bc2
        s_waitcnt vmcnt(22)
        s_barrier
        s_branch L_ld2''')
    AV, HV, XB, WV_, AQ, AK, HK, WQ = 8, 40, 44, 68, 88, 120, 152, 156
    def frags(s, mode):
        F = []
        if 'q' in mode:
            for m, acc in ((0, s.AQ), (1, s.AK)):
                for c in range(4):
                    F.append((s.WQ + 16*m + 4*c, 4, lambda ks, m=m, c=c: L_WQK + (2*ks+m)*BL + 32*c, [(acc + 16*t + 4*c, t) for t in range(2)], 0))
            F.append((s.WQ + 32, 5, lambda ks: L_WQK + (2*ks+1)*BL, [(s.HK, 2)], 0))
        if 'v' in mode:
            for c in range(4):
                F.append((s.WV_ + 4*c, 4, lambda ks, c=c: L_WV + ks*BL + 32*c, [(s.AV + 16*t + 4*c, t) for t in range(2)], 1))
            F.append((s.WV_ + 16, 5, lambda ks: L_WV + ks*BL, [(s.HV, 2)], 1))
        return F
    def rd_w(s, f, ks):
        return [('r', f'ds_read_b64_tr_b16 {vr(f[0]+2*h,2)}, v{f[1]} offset:{f[2](ks)+256*h}', R(f[0]+2*h, 2)) for h in range(2)]
    def rd_x(s, ks):
        b = s.XB + 12*ks
        return [('r', f'ds_read_b128 {vr(b+4*t,4)}, v{2 if t < 2 else 3} offset:{(512*t if t < 2 else 0)+64*ks}', R(b+4*t, 4)) for t in range(3)]
    def mm(s, f, ks):
        r = []
        for acc, t in f[3]:
            x = s.XB + 12*ks + 4*t
            A, B = (x, f[0]) if f[4] else (f[0], x)
            r.append(('m', f'{MF} {vr(acc,4)}, {vr(A,4)}, {vr(B,4)}, {vr(acc,4)}', R(x, 4) + R(f[0], 4)))
        return r
    def stage(s, mode, barrier, extra=[]):
        F = s.frags(mode); ops = []
        def phase(ks, pend, hold):
            for i, f in enumerate(F):
                if i == hold:
                    ops.extend(pend); pend.clear()
                    if barrier: ops.extend([('w0',), ('t', 's_barrier')])
                    for r in (2, 3, 4, 5): ops.append(('t', f'v_add_u32 v{r}, s38, v{r}'))
                    pend.extend(s.rd_x(0))
                    for g in F[:hold]: pend.extend(s.rd_w(g, 0))
                for m in s.mm(f, ks):
                    ops.append(m)
                    for _ in range(2):
                        if pend: ops.append(pend.pop(0))
                if hold is None or i >= hold: pend.extend(s.rd_w(f, 1-ks))
            return pend
        pend = [('t', t) for t in ['s_add_u32 s36, s36, 1', 's_cmp_eq_u32 s36, 3', 's_cselect_b32 s36, 0, s36', f's_cselect_b32 s38, s37, {SL}'] + extra]
        pend = s.rd_x(1) + pend
        pend = phase(0, pend, None)
        pend = phase(1, pend, 3 if barrier else 1)
        ops.extend(pend)
        return ops
    def b_compute(s):
        a = s.a; o = s.o
        a('L_Bc:')
        if not o.doB: a('s_endpgm')
        s.prefetch()
        a(f'''v_bfe_u32 v6, v0, 1, 2
        v_and_b32 v7, 1, v0
        v_bfe_u32 v4, v0, 3, 1
        v_lshl_add_u32 v7, v4, 1, v7
        v_and_b32 v4, 0x30, v0
        v_lshl_add_u32 v7, v7, 7, v4
        s_mul_i32 s6, s3, {BL}
        v_mul_u32_u24 v2, 1056, v6
        v_add3_u32 v2, v2, v7, s6
        v_mul_u32_u24 v3, 544, v6
        v_add_u32 v3, v3, v7
        v_add_u32 v3, {L_XH}, v3''')
        for r in list(range(8, 44)) + list(range(88, 156)): a(f'v_mov_b32 v{r}, 0')
        a(f'''s_waitcnt lgkmcnt(0)
        s_or_b32 s6, s2, s3
        s_cmp_lg_u32 s6, 0
        s_cbranch_scc1 L_Bconst
        s_memrealtime s[6:7]
        s_waitcnt lgkmcnt(0)
        s_or_b32 s6, s6, 0x80000000
        v_mov_b32 v6, s6
        v_mov_b32 v7, 0
        s_mov_b64 exec, 1
        global_store_dword v7, v6, s[28:29] sc1
        s_mov_b64 exec, -1
        s_branch L_Bconst
        L_Bc2:
        v_mov_b32 v4, v207
        s_lshl_b32 s6, s3, 5
        v_add_u32 v5, s6, v207
        s_mov_b32 s36, 0
        s_mov_b32 s37, {-2*SL & 0xffffffff}
        s_mov_b32 s35, 0''')
        s.ts(1)
        a('s_barrier')
        s.ts(2)
        ops = s.rd_x(0)
        for f in s.frags('qkv'): ops += s.rd_w(f, 0)
        a(resolve(ops, loop=False))
        a('.p2align 3\n L_Bl1:')
        a(resolve(s.stage('qkv', True, ['s_add_u32 s35, s35, 1', 's_cmp_lt_u32 s35, 6'])))
        a('s_cbranch_scc1 L_Bl1')
        a('buffer_load_dword v249, off, s[28:31], 0 sc1')
        a('.p2align 3\n L_Bl2:')
        a(resolve(s.stage('qk', True, ['s_add_u32 s35, s35, 1', 's_cmp_lt_u32 s35, 9'])))
        a('s_cbranch_scc1 L_Bl2')
        s.ts(3)
        for base, stg in ((s.AQ, 0), (s.AK, KS-QS)):
            for j in range(4):
                for i in range(4):
                    a(f'v_cvt_pk_bf16_f32 v{base+4*j+i}, v{base+8*j+2*i}, v{base+8*j+2*i+1}')
                a(f'ds_write_b128 v202, {vr(base+4*j,4)} offset:{stg+1024*j}')
        a(f'v_cvt_pk_bf16_f32 v{s.HK}, v{s.HK}, v{s.HK+1}\n v_cvt_pk_bf16_f32 v{s.HK+1}, v{s.HK+2}, v{s.HK+3}\n ds_write_b64 v206, {vr(s.HK,2)}')
        a('s_cmp_lg_u32 s3, 0\n s_cbranch_scc1 L_Bn2')
        s.nonce_wait('L_Bn', 249)
        a(f'v_mov_b32 v6, {L_NON}\n ds_write_b32 v6, v249\n L_Bn2:\n s_waitcnt vmcnt(0) lgkmcnt(0)')
    QR, KC, KP, QM, LL, TT, PP, MM, IN, VV, OF = 88, 96, 104, 112, 128, 148, 160, 180, 216, 224, 240
    def Lr(s, sl): return {0: 128, 4: 132, 1: 136, 2: 140, 3: 144}[sl]
    def qmask(s, t, hi):
        for h in range(2):
            m = f's[{40+4*t+2*h}:{41+4*t+2*h}]'; q = f'v{s.QR+2*t+h}'
            s.a(f'v_cndmask_b32 v{s.QM+4*t+2*hi+h}, {q}, 0, {m}' if hi else f'v_cndmask_b32 v{s.QM+4*t+h}, 0, {q}, {m}')
    def bfly(s, n, op, mid):
        a = s.a; b, c, d, t = [f'v{s.MM+i}' for i in range(4)]
        if n == 3:
            a(f'''v_mov_b32 {t}, {d}
            v_permlane32_swap_b32 {b}, {c}
            v_permlane32_swap_b32 {d}, {t}
            {op} {b}, {b}, {c}
            {op} {d}, {d}, {t}
            v_permlane16_swap_b32 {b}, {d}
            {op} {b}, {b}, {d}
            {mid(d, b)}
            {mid(b, b)}
            v_permlane16_swap_b32 {b}, {d}
            v_mov_b32 {c}, {b}
            v_permlane32_swap_b32 {b}, {c}''')
        else:
            a(f'''v_permlane32_swap_b32 {b}, {c}
            {op} {t}, {b}, {c}
            {op} {b}, {b}, {c}
            v_permlane16_swap_b32 {b}, {t}
            {op} {b}, {b}, {t}
            {mid(c, b)}
            {mid(b, b)}
            v_permlane32_swap_b32 {b}, {c}''')
    def softmax(s, slots):
        a = s.a; n = len(slots)
        for j, sl in enumerate(slots):
            L = s.Lr(sl); a(f'v_max3_f32 v{s.MM+j}, v{L}, v{L+1}, v{L+2}')
        for j, sl in enumerate(slots):
            L = s.Lr(sl); a(f'v_max_f32 v{s.MM+j}, v{s.MM+j}, v{L+3}')
        s.bfly(n, 'v_max_f32', lambda d, x: f'v_mul_f32 {d}, s62, {x}')
        for j, sl in list(enumerate(slots))[::-1]:
            L = s.Lr(sl)
            for i in range(4): a(f'v_fma_f32 v{L+i}, v{L+i}, s62, -v{s.MM+j}')
            for i in range(4): a(f'v_exp_f32 v{L+i}, v{L+i}')
        for j, sl in list(enumerate(slots))[::-1]:
            L = s.Lr(sl); a(f'v_add_f32 v{s.MM+j}, v{L}, v{L+1}\n v_add_f32 v{s.MM+4+j}, v{L+2}, v{L+3}')
        for j, sl in list(enumerate(slots))[::-1]:
            a(f'v_add_f32 v{s.MM+j}, v{s.MM+j}, v{s.MM+4+j}')
        s.bfly(n, 'v_add_f32', lambda d, x: f'v_rcp_f32 {d}, {x}')
        for j, sl in list(enumerate(slots))[::-1]:
            L = s.Lr(sl); P = s.PP + 4*sl
            for i in range(4): a(f'v_mul_f32 v{L+i}, v{L+i}, v{s.MM+j}')
            for h in range(2): a(f'v_cvt_pk_bf16_f32 v{P+2+h}, v{L+2*h}, v{L+2*h+1}')
            for h in range(2): a(f'v_and_b32 v{P+h}, v{P+2+h}, v{200+h}')
            for h in range(2): a(f'v_xor_b32 v{P+2+h}, v{P+2+h}, v{P+h}')
    def b_attn(s):
        a = s.a; o = s.o
        a('L_Bqk:\n s_barrier')
        s.ts(4)
        a(f'v_mov_b32 v6, {L_NON}')
        for j in range(2):
            a(f'ds_read_b128 {vr(s.QR+4*j,4)}, v202 offset:{1024*j}')
            a(f'ds_read_b128 {vr(s.KC+4*j,4)}, v202 offset:{KS-QS+1024*j}')
            a(f'ds_read_b128 {vr(s.KP+4*j,4)}, v204 offset:{1024*j}')
        a('ds_read_b32 v249, v6')
        a('s_cmp_ge_u32 s3, 4\n s_cbranch_scc1 L_Bx0')
        for f in s.frags('v'):
            for r in s.rd_w(f, 0): a(r[1])
        a('s_waitcnt lgkmcnt(10)\n s_branch L_Bx1\n L_Bx0:\n s_waitcnt lgkmcnt(0)\n L_Bx1:')
        s.qmask(0, 0); s.qmask(3, 1)
        for j, (sl, k, q) in enumerate(((0, 0, s.QM), (4, 6, s.QM+14))):
            a(f'{MF16} {vr(s.Lr(sl),4)}, {vr(s.KC+k,2)}, {vr(q,2)}, v[192:195]')
            a(f'{MF16} {vr(s.TT+4*j,4)}, {vr(s.KP+k,2)}, {vr(q,2)}, v[196:199]')
        s.qmask(0, 1); s.qmask(1, 0); s.qmask(1, 1)
        for j, sl in enumerate((0, 4)):
            L = s.Lr(sl)
            for i in range(4): a(f'v_max_f32 v{L+i}, v{L+i}, v{s.TT+4*j+i}')
            for i in range(4): a(f'v_perm_b32 v{L+i}, v{L+i}, v249, s{56+i}')
            a(f'buffer_store_dwordx4 {vr(L,4)}, v248, s[24:27], s{76+j} offen sc1')
        a('s_cmp_ge_u32 s3, 4\n s_cbranch_scc1 L_BF')
        a('s_mov_b32 s35, 0\n .p2align 3\n L_Bl3:')
        a(resolve(s.stage('v', False, ['s_add_u32 s35, s35, 1', 's_cmp_lt_u32 s35, 3']), cap=6))
        a('s_cbranch_scc1 L_Bl3')
        for j in range(4):
            for i in range(4):
                a(f'v_cvt_pk_bf16_f32 v{s.AV+4*j+i}, v{s.AV+8*j+2*i}, v{s.AV+8*j+2*i+1}')
            a(f'ds_write_b128 v203, {vr(s.AV+4*j,4)} offset:{1024*j}')
        a(f'v_cvt_pk_bf16_f32 v{s.HV}, v{s.HV}, v{s.HV+1}\n v_cvt_pk_bf16_f32 v{s.HV+1}, v{s.HV+2}, v{s.HV+3}\n ds_write_b64 v206, {vr(s.HV,2)} offset:2048')
        a('s_waitcnt lgkmcnt(0)\n s_barrier')
        a('L_BF:')
        s.ts(5)
        s.qmask(2, 0); s.qmask(2, 1); s.qmask(3, 0)
        for sl in (1, 2, 3):
            a(f'{MF} {vr(s.Lr(sl),4)}, {vr(s.KC+2*sl-2,4)}, {vr(s.QM+4*sl-2,4)}, v[192:195]')
            a(f'{MF} {vr(s.TT+4*sl-4,4)}, {vr(s.KP+2*sl-2,4)}, {vr(s.QM+4*sl-2,4)}, v[196:199]')
        a(f'buffer_load_dwordx4 {vr(s.IN,4)}, v248, s[24:27], s78 offen sc1\n buffer_load_dwordx4 {vr(s.IN+4,4)}, v248, s[24:27], s79 offen sc1')
        for sl in (1, 2, 3):
            for i in range(4): a(f'v_max_f32 v{s.Lr(sl)+i}, v{s.Lr(sl)+i}, v{s.TT+4*sl-4+i}')
        s.softmax((1, 2, 3))
        a('s_cmp_lt_u32 s3, 4\n s_cbranch_scc1 L_Bw\n s_waitcnt vmcnt(4)\n s_barrier')
        for i in range(18):
            off = (i//6)*SL + (i % 6)*BL
            a(f'ds_write_b128 v{208 if off < 59968 else 209}, {vr(8+4*i,4)} offset:{off if off < 59968 else off-59968}')
        a('s_waitcnt lgkmcnt(0)\n L_Bw:\n s_barrier')
        s.ts(6)
        for t in range(4):
            a(f'ds_read_b64 {vr(s.VV+4*t,2)}, v203 offset:{(t>>1)*1024+(t&1)*8}')
            a(f'ds_read_b64 {vr(s.VV+4*t+2,2)}, v205 offset:{(t>>1)*1024+(t&1)*8}')
        I = s.IN; T = s.TT
        a(f'''s_movk_i32 s5, {SPIN}
        L_By:
        s_waitcnt vmcnt(0)
        v_perm_b32 v{T}, v{I+1}, v{I}, s60
        v_perm_b32 v{T+1}, v{I+3}, v{I+2}, s60
        v_perm_b32 v{T+2}, v{I+5}, v{I+4}, s60
        v_perm_b32 v{T+3}, v{I+7}, v{I+6}, s60
        v_perm_b32 v{T}, v{T+1}, v{T}, s61
        v_perm_b32 v{T+2}, v{T+3}, v{T+2}, s61
        v_cmp_ne_u32 vcc, v{T}, v249
        v_cmp_ne_u32 s[6:7], v{T+2}, v249
        s_or_b64 vcc, vcc, s[6:7]
        s_cbranch_scc0 L_Byd
        buffer_load_dwordx4 {vr(I,4)}, v248, s[24:27], s78 offen sc1
        buffer_load_dwordx4 {vr(I+4,4)}, v248, s[24:27], s79 offen sc1
        s_sub_u32 s5, s5, 1
        s_cbranch_scc0 L_By
        s_waitcnt vmcnt(0)
        L_Byd:''')
        s.ts(7)
        for i in range(8): a(f'v_add_f32 v{128+i}, v{128+i}, v{I+i}')
        a('s_waitcnt lgkmcnt(0)')
        O = 88
        def pv(t, hi): a(f'{MF} {vr(O+8*t+4*hi,4)}, {vr(s.VV+4*t,4)}, {vr(s.PP+4*(t+hi),4)}, 0')
        for t, hi in ((0, 1), (1, 0), (1, 1), (2, 0), (2, 1), (3, 0)): pv(t, hi)
        s.softmax((0, 4))
        pv(3, 1); pv(0, 0)
        for t in (1, 2, 3, 0):
            for h in range(2):
                a(f'v_cvt_pk_bf16_f32 v{O+8*t+2*h}, v{O+8*t+2*h}, v{O+8*t+2*h+1}')
                a(f'v_cvt_pk_bf16_f32 v{O+8*t+4+2*h}, v{O+8*t+4+2*h}, v{O+8*t+4+2*h+1}')
                a(f'v_cndmask_b32 v{s.OF+2*t+h}, v{O+8*t+4+2*h}, v{O+8*t+2*h}, s[{40+4*t+2*h}:{41+4*t+2*h}]')
            if t == 3: a(f's_lshl_b32 s4, s33, 11\n s_add_u32 s4, s4, s74\n buffer_store_dwordx4 {vr(s.OF+4,4)}, v248, s[24:27], s4 offen offset:1024 sc1')
        a(f'buffer_store_dwordx4 {vr(s.OF,4)}, v248, s[24:27], s4 offen sc1')
    def b2(s):
        a = s.a
        ACC = 72; W = 88
        def rd(pos):
            r = []
            for c in range(4):
                for h in range(2):
                    off = (pos//6)*SL + (pos % 6)*BL + 32*c + 512*h
                    d = W + 16*(pos % 9) + 4*c + 2*h
                    r.append(('r', f'ds_read_b64_tr_b16 {vr(d,2)}, v{250 if off < 59968 else 251} offset:{off if off < 59968 else off-59968}', R(d, 2)))
            return r
        def mm(pos, pend):
            B = s.OF + 4*pos if pos < 2 else 8 + 4*(pos-2)
            r = []
            for c in range(4):
                A = W + 16*(pos % 9) + 4*c
                r.append(('m', f'{MF} {vr(ACC+4*c,4)}, {vr(A,4)}, {vr(B,4)}, {vr(ACC+4*c,4) if pos else 0}', R(A, 4)))
                for _ in range(2):
                    if pend: r.append(pend.pop(0))
            return r
        ops = []
        for p in range(3): ops += rd(p)
        ops.append(('t', f's_lshl_b32 s4, s33, 7\n s_add_u32 s4, s4, s75\n s_waitcnt vmcnt(0)\n s_mov_b64 exec, 1\n buffer_store_dword v249, off, s[24:27], s4 sc1'))
        ops.append(('t', 's_mov_b64 exec, 0x1ff\n buffer_load_dword v232, v255, s[24:27], s75 offen sc1\n s_mov_b64 exec, -1'))
        for p in range(3, 9): ops += rd(p)
        ops += mm(0, []); ops += mm(1, rd(9)); ops += rd(10)
        ops.append(('t', f'''s_movk_i32 s5, {SPIN}
        s_mov_b64 exec, 0x1ff
        L_Bp:
        s_waitcnt vmcnt(0)
        v_cmp_ne_u32 vcc, v232, v249
        s_cbranch_vccz L_Bpd
        buffer_load_dword v232, v255, s[24:27], s75 offen sc1
        s_sub_u32 s5, s5, 1
        s_cbranch_scc0 L_Bp
        s_waitcnt vmcnt(0)
        L_Bpd:
        s_mov_b64 exec, -1'''))
        if s.o.prof: ops.append(('t', f'{s.o.clk} s[96:97]')); ops.append(('w0',))
        t = f's_mov_b32 s4, s33\n'
        for i in range(8):
            t += f's_add_u32 s4, s4, 1\n s_cmp_eq_u32 s4, 9\n s_cselect_b32 s4, 0, s4\n s_lshl_b32 s5, s4, 11\n s_add_u32 s5, s5, s74\n'
            t += f'buffer_load_dwordx4 {vr(8+8*i,4)}, v248, s[24:27], s5 offen sc1\n buffer_load_dwordx4 {vr(12+8*i,4)}, v248, s[24:27], s5 offen offset:1024 sc1\n'
        ops.append(('t', t))
        pend = []
        for p in range(2, 18):
            ops.append(('t', f's_waitcnt vmcnt({17-p})'))
            ops += mm(p, pend)
            if p + 9 < 18: pend = rd(p+9)
        a(resolve(ops, loop=False))
        for c in range(4):
            for h in range(2): a(f'v_cvt_pk_bf16_f32 v{ACC+4*c+h}, v{ACC+4*c+2*h}, v{ACC+4*c+2*h+1}')
            a(f'ds_write_b64 v252, {vr(ACC+4*c,2)} offset:{32*c}')
        a(f'''s_waitcnt lgkmcnt(0)
        ds_read_b128 v[8:11], v253
        ds_read_b128 v[12:15], v253 offset:{8*144}
        s_add_u32 s4, s73, {16*2304}
        s_waitcnt lgkmcnt(1)
        buffer_store_dwordx4 v[8:11], v254, s[20:23], s73 offen
        s_waitcnt lgkmcnt(0)
        buffer_store_dwordx4 v[12:15], v254, s[20:23], s4 offen''')
        s.ts_dump(10)
        a('s_endpgm')
    def a_part(s):
        a = s.a; o = s.o
        a('L_A:')
        if not o.doA: a('s_endpgm'); return
        import genA
        genA.a_part(s)
    def build(s):
        s.entry(); s.b_loader(); s.b_compute(); s.b_attn(); s.b2(); s.b_const(); s.a_part()
        s.a('L_end:\n L_last:\n s_endpgm')
        return single_file(haz.fix(s.a.text()), NWG, 512, LDS_BYTES)
def gen(**kw):
    o = Opt()
    for k, v in kw.items(): setattr(o, k, v)
    return G(o).build()
if __name__ == '__main__':
    kw = {}
    for x in sys.argv[2:]:
        k, v = x.split('='); kw[k] = eval(v)
    open(sys.argv[1], 'w').write(gen(**kw))
```

```python
from gen import *
AST = 4*BL
def a_part(s):
    a = s.a; o = s.o
    a(f'''s_sub_u32 s33, s33, 18
    s_mul_i32 s40, s32, 6
    s_add_u32 s40, s40, s33
    s_cmp_ge_u32 s33, 6
    s_cselect_b32 s6, 6, 0
    s_addc_u32 s32, s32, 0
    s_sub_u32 s33, s33, s6
    s_mul_i32 s34, s33, 3
    s_lshr_b32 s34, s34, 1
    s_mul_i32 s34, s34, {o.rota}
    s_cmp_lt_u32 s3, 4
    s_cbranch_scc1 L_Ac''')
    a(f'''s_sub_u32 s39, s3, 4
    v_and_b32 v1, 7, v0
    v_lshlrev_b32 v1, 4, v1
    v_bfe_u32 v2, v0, 3, 1
    v_bfe_u32 v3, v0, 4, 1
    v_lshrrev_b32 v4, 5, v0
    v_lshl_add_u32 v2, v3, 4, v2
    v_lshl_add_u32 v2, v4, 2, v2
    s_and_b32 s6, s39, 1
    s_lshl_b32 s6, s6, 1
    s_lshr_b32 s7, s39, 1
    s_lshl_b32 s7, s7, 3
    s_add_u32 s6, s6, s7
    v_add_u32 v2, s6, v2
    v_mul_u32_u24 v2, {32*1152}, v2
    v_add_u32 v2, v2, v1
    s_mul_i32 s63, s32, 2304
    s_mul_i32 s64, s39, 1056
    s_mov_b32 s66, 0
    s_waitcnt lgkmcnt(0)
    s_mov_b32 s8, s4
    s_mov_b32 s9, s5
    L_Ald:
    s_lshl_b32 s68, s34, 7
    s_add_u32 s68, s68, s63''')
    for b in range(4):
        s.dma('s64', b*BL, 's68', (1024*(b & 1) + (b >> 1))*1152, 'v2', 's[8:11]', o.lda)
    a(f'''s_add_u32 s34, s34, 1
    s_cmp_eq_u32 s34, 9
    s_cselect_b32 s34, 0, s34
    s_add_u32 s64, s64, {AST}
    s_add_u32 s66, s66, 1
    s_cmp_lt_u32 s66, 9
    s_cbranch_scc1 L_Ald''')
    for i in range(9): a(f's_waitcnt vmcnt({32-4*i})\n s_barrier')
    a('s_endpgm')
    ACC, HID, XB, FF = 8, 72, 144, 208
    a('L_Ac:')
    s.prefetch(250)
    a('s_cmp_eq_u32 s3, 3\n s_cbranch_scc1 L_end')
    a(f'''v_and_b32 v240, 15, v0
    v_lshrrev_b32 v241, 4, v0
    s_mul_i32 s41, s33, 3
    s_add_u32 s41, s41, s3
    s_lshl_b32 s6, s41, 4
    v_add_u32 v242, s6, v240
    v_mul_u32_u24 v243, 911, v242
    v_lshrrev_b32 v243, 16, v243
    v_mul_u32_u24 v244, 287, v243
    v_lshlrev_b32 v245, 2, v242
    v_sub_u32 v244, v245, v244
    v_cvt_f32_u32 v245, v244
    v_mul_f32 v245, {fb(1/576)}, v245
    v_and_b32 v246, 1, v244
    v_mul_u32_u24 v246, 0x8000, v246
    v_lshl_or_b32 v246, v246, 16, v246
    s_lshl_b32 s6, s34, 6
    v_lshl_add_u32 v247, v241, 3, s6
    v_cvt_f32_u32 v247, v247''')
    T = XB
    for i in range(9):
        a(f'v_mul_f32 v{T}, v247, v245\n v_add_f32 v247, {fb(32.0)}, v247\n v_fract_f32 v{T}, v{T}')
        for j in range(1, 8): a(f'v_add_f32 v{T+j}, v{T+j-1}, v245')
        for j in range(8): a(f'v_cos_f32 v{T+8+j}, v{T+j}')
        for j in range(8): a(f'v_sin_f32 v{T+j}, -v{T+j}')
        for h in range(4): a(f'v_cvt_pk_bf16_f32 v{HID+8*i+h}, v{T+8+2*h}, v{T+9+2*h}')
        for h in range(4): a(f'v_cvt_pk_bf16_f32 v{HID+8*i+4+h}, v{T+2*h}, v{T+1+2*h}')
    a('s_cmp_lg_u32 s41, 0\n s_cbranch_scc1 L_Ac1\n s_mov_b32 exec_lo, 0x10001\n s_mov_b32 exec_hi, 0x10001\n s_mov_b32 s6, 0xbf803f80')
    for i in range(9):
        for h in range(4): a(f'v_mov_b32 v{HID+8*i+4+h}, s6')
    a('s_mov_b64 exec, -1\n L_Ac1:')
    a(f'''v_lshrrev_b32 v1, 1, v240
    v_cvt_f32_u32 v1, v1
    v_mul_f32 v1, {fb(1/64)}, v1
    v_and_b32 v2, 1, v240
    v_cvt_f32_u32 v2, v2
    v_mul_f32 v2, {fb(0.25)}, v2
    v_lshlrev_b32 v3, 3, v241
    v_cvt_f32_u32 v3, v3
    v_add_f32 v4, {fb(32.0)}, v3
    v_cmp_eq_u32 vcc, 1, v240
    v_cndmask_b32 v5, v1, 0.5, vcc
    v_cndmask_b32 v6, v2, 0, vcc''')
    for m in range(4):
        w, ph = ('v5', 'v6') if m == 0 else ('v1', 'v2')
        if m: a(f'v_add_f32 v1, {fb(0.125)}, v1')
        for q in range(2):
            a(f'v_fma_f32 v{T}, v{3+q}, {w}, {ph}')
            for j in range(1, 8): a(f'v_add_f32 v{T+j}, v{T+j-1}, {w}')
            for j in range(8): a(f'v_cos_f32 v{T+j}, v{T+j}')
            for h in range(4): a(f'v_cvt_pk_bf16_f32 v{FF+8*m+4*q+h}, v{T+2*h}, v{T+1+2*h}')
    a(f'''v_bfe_u32 v6, v0, 1, 2
    v_and_b32 v7, 1, v0
    v_bfe_u32 v4, v0, 3, 1
    v_lshl_add_u32 v7, v4, 1, v7
    v_and_b32 v4, 0x30, v0
    v_lshl_add_u32 v7, v7, 7, v4
    v_mul_u32_u24 v2, 1056, v6
    v_add_u32 v2, v2, v7
    v_add_u32 v3, {3*AST}, v2
    v_add_u32 v4, {6*AST}, v2
    s_waitcnt lgkmcnt(0)''')
    if o.touch == 1:
        a(f'''v_mul_u32_u24 v250, 36864, v0
        v_mul_u32_u24 v252, 73728, v0
        s_mov_b32 s6, {WS_FU}
        buffer_load_dword v251, v250, s[24:27], 0 offen sc1
        buffer_load_dword v251, v252, s[20:23], 0 offen
        buffer_load_dword v251, off, s[24:27], s6 sc1''')
    s.ts(1)
    a('s_barrier')
    s.ts(2)
    def rdx(ks):
        st = ks >> 1
        return [('r', f'ds_read_b128 {vr(XB+32*(ks&1)+4*t,4)}, v{2+st//3} offset:{(st%3)*AST+(t>>1)*BL+(t&1)*512+(ks&1)*64}', R(XB+32*(ks&1)+4*t, 4)) for t in range(8)]
    ops = rdx(0)
    for ks in range(18):
        pend = []
        if ks == 12: pend.append(('t', 'buffer_load_dword v249, off, s[28:31], 0 sc1'))
        if ks < 17:
            if ks & 1: ops.append(('t', 's_barrier'))
            pend += rdx(ks+1)
        if 1 <= ks <= 9: pend += [('t', f'v_xor_b32 v{HID+8*(ks-1)+h}, v246, v{HID+8*(ks-1)+h}') for h in range(8)]
        for t in range(8):
            for ab in range(2):
                x = XB+32*(ks&1)+4*t; acc = ACC + 32*ab + 4*t
                ops.append(('m', f'{MF} {vr(acc,4)}, {vr(x,4)}, {vr(HID+8*(ks%9)+4*ab,4)}, {vr(acc,4) if ks else 0}', R(x, 4)))
                if pend: ops.append(pend.pop(0))
        ops += pend
    a(resolve(ops, loop=False, cap=4))
    s.ts(3)
    Z, U = XB, HID
    a(f'''s_mul_i32 s6, s32, 4608
    v_mul_u32_u24 v5, 147456, v241
    v_lshl_add_u32 v5, v242, 4, v5
    v_add_u32 v5, s6, v5''')
    for k in range(8):
        for h in range(4): a(f'v_cvt_pk_bf16_f32 v{Z+4*k+h}, v{ACC+8*k+2*h}, v{ACC+8*k+2*h+1}')
    for m in range(4):
        for q in range(2):
            for ab in range(2):
                for s2 in range(2):
                    u = U + 16*m + 8*ab + 4*s2
                    a(f'{MF} {vr(u,4)}, {vr(FF+8*m+4*q,4)}, {vr(Z+16*ab+8*s2+4*q,4)}, {vr(u,4) if q else 0}')
        for mm in ([m-1] if m else []) + ([3] if m == 3 else []):
            for cl in range(2):
                g = ACC + 8*mm + 4*cl
                for ab in range(2):
                    for ri in range(2):
                        u = U + 16*mm + 8*ab + 2*cl + ri
                        a(f'v_cvt_pk_bf16_f32 v{g+2*ab+ri}, v{u}, v{u+4}')
                a(f's_mov_b32 s6, {WS_U + (8*mm+cl)*73728}\n buffer_store_dwordx4 {vr(g,4)}, v5, s[24:27], s6 offen sc1')
    s.ts(4)
    CF, UD, AC2, AD = 72, 136, 8, 216
    CS = 200
    a(f'''s_mul_i32 s42, s40, 43
    s_lshr_b32 s42, s42, 7
    s_mul_i32 s6, s42, 3
    s_sub_u32 s43, s40, s6
    s_mul_i32 s43, s43, 3
    s_add_u32 s43, s43, s3
    v_lshlrev_b32 v3, 3, v241
    v_cvt_f32_u32 v3, v3
    s_mov_b32 s44, 0x80008000''')
    def trig(cl):
        a(f'v_lshl_add_u32 v1, v240, 6, {cl}\n v_cvt_f32_u32 v1, v1\n v_mul_f32 v1, {fb(1/2048)}, v1')
        for tt in range(2):
            if tt: a('v_add_f32 v1, 0.5, v1')
            a(f'v_mul_f32 v{UD}, v3, v1')
            for j in range(1, 8): a(f'v_add_f32 v{UD+j}, v{UD+j-1}, v1')
            for j in range(8): a(f'v_cos_f32 v{UD+8+j}, v{UD+j}')
            for j in range(8): a(f'v_sin_f32 v{UD+j}, v{UD+j}')
            for q in range(4): a(f'v_cvt_pk_bf16_f32 v{CS+8*tt+q}, v{UD+8+2*q}, v{UD+9+2*q}')
            for q in range(4): a(f'v_cvt_pk_bf16_f32 v{CS+8*tt+4+q}, v{UD+2*q}, v{UD+1+2*q}')
    trig('s42')
    for tt in range(2):
        for q in range(4):
            c = CS+8*tt+q; sn = c+4; M = CF + 16*tt + 4*q; N = M + 32
            a(f'''v_mov_b32 v{M}, v{c}
            v_mov_b32 v{M+1}, v{sn}
            v_mov_b32 v{M+2}, v{sn}
            v_xor_b32 v{M+3}, s44, v{c}
            v_mov_b32 v{N}, v{c}
            v_mov_b32 v{N+1}, v{sn}
            v_xor_b32 v{N+2}, s44, v{sn}
            v_mov_b32 v{N+3}, v{c}''')
    a('s_mov_b32 s45, s42\n s_cmp_lg_u32 s42, 0\n s_cbranch_scc1 L_Ac2\n s_mov_b32 s45, 32')
    trig('32')
    for tt in range(2):
        for q in range(4):
            c = CS+8*tt+q; sn = c+4; M = CF + 16*tt + 4*q; N = M + 32
            a(f'''v_mov_b32 v{M+1}, 0
            v_mov_b32 v{M+3}, 0
            v_mov_b32 v{N}, 0
            v_mov_b32 v{N+1}, v{c}
            v_mov_b32 v{N+2}, 0
            v_xor_b32 v{N+3}, s44, v{sn}''')
    a('L_Ac2:')
    a('s_cmp_lg_u32 s3, 0\n s_cbranch_scc1 L_An2')
    s.nonce_wait('L_An', 249)
    a('L_An2:\n s_waitcnt vmcnt(0)\n s_barrier')
    s.ts(5)
    a(f'''s_cmp_lg_u32 s3, 0
    s_cbranch_scc1 L_Af
    s_lshl_b32 s6, s40, 7
    s_add_u32 s6, s6, {WS_FU}
    s_mov_b64 exec, 1
    buffer_store_dword v249, off, s[24:27], s6 sc1
    s_mov_b64 exec, -1
    L_Af:
    s_lshl_b32 s6, s43, 6
    v_lshl_add_u32 v1, v240, 2, s6
    v_mul_u32_u24 v2, 18432, v241
    s_movk_i32 s7, 288
    v_cmp_gt_u32 s[46:47], s7, v1
    v_cmp_eq_u32 s[48:49], s7, v1
    v_cmp_eq_u32 s[50:51], 0, v1''')
    for j in range(4):
        a(f'''v_add_u32 v3, {j}, v1
        v_sub_u32 v4, 576, v3
        v_cndmask_b32 v3, v4, v3, s[46:47]''')
        if j == 0: a('v_cndmask_b32 v3, v3, 0, s[48:49]')
        a(f'''v_and_b32 v4, 3, v3
        v_lshrrev_b32 v3, 2, v3
        v_mul_u32_u24 v4, 72, v4
        v_add_u32 v3, v3, v4
        v_lshl_add_u32 v{232+j}, v3, 4, v2''')
    a(f'''s_or_b64 s[50:51], s[50:51], s[48:49]
    v_lshlrev_b32 v1, 1, v1
    v_lshlrev_b32 v2, 8, v241
    v_add_u32 v3, s42, v2
    v_sub_u32 v4, 2048, v3
    v_cndmask_b32 v3, v4, v3, s[46:47]
    v_add_u32 v5, s45, v2
    v_sub_u32 v4, 2048, v5
    v_cndmask_b32 v5, v5, v4, s[46:47]
    v_mov_b32 v6, {64*2304}
    v_mov_b32 v7, {-64*2304 & 0xffffffff}
    v_cndmask_b32 v6, v7, v6, s[46:47]
    v_lshlrev_b32 v7, 4, v6
    s_movk_i32 s6, 2304
    v_mad_u32_u24 v{AD}, v3, s6, v1
    v_mad_u32_u24 v{AD+8}, v5, s6, v1''')
    for i in range(1, 4): a(f'v_add_u32 v{AD+i}, v{AD+i-1}, v6\n v_sub_u32 v{AD+8+i}, v{AD+8+i-1}, v6')
    for i in range(4): a(f'v_add_u32 v{AD+4+i}, v{AD+i}, v7\n v_sub_u32 v{AD+12+i}, v{AD+8+i}, v7')
    a(f'''v_and_b32 v3, 2047, v3
    v_mad_u32_u24 v{AD}, v3, s6, v1
    s_mul_i32 s52, s42, 73728
    s_cmp_lg_u32 s3, 0
    s_cbranch_scc1 L_Apd
    v_lshlrev_b32 v1, 8, v0
    s_mov_b32 s6, {WS_FU}
    s_movk_i32 s5, {SPIN}
    s_mov_b32 exec_hi, 0xffff
    L_Ap:
    buffer_load_dword v2, v1, s[24:27], s6 offen sc1
    buffer_load_dword v3, v1, s[24:27], s6 offen offset:128 sc1
    s_sub_u32 s5, s5, 1
    s_cbranch_scc1 L_Ap1
    s_waitcnt vmcnt(0)
    v_cmp_ne_u32 vcc, v2, v249
    v_cmp_ne_u32 s[54:55], v3, v249
    s_or_b64 vcc, vcc, s[54:55]
    s_cbranch_scc1 L_Ap
    L_Ap1:
    s_waitcnt vmcnt(0)
    s_mov_b32 exec_hi, -1
    L_Apd:
    s_barrier''')
    s.ts(6)
    order = [1, 2, 3, 0]
    for q in range(4):
        a(f's_add_u32 s6, s52, {WS_U + q*4608}')
        for j in [0, 1, 2, 3]: a(f'buffer_load_dwordx4 {vr(UD+16*q+4*j,4)}, v{232+j}, s[24:27], s6 offen sc1')
    for q in range(4):
        a(f's_waitcnt vmcnt({12-4*q})')
        u = UD + 16*q
        a(f'''v_cndmask_b32 v{u}, v{u}, v{u+2}, s[48:49]
        v_cndmask_b32 v{u+1}, v{u+1}, v{u+3}, s[48:49]
        v_cndmask_b32 v{u+2}, v{u+2}, 0, s[50:51]
        v_cndmask_b32 v{u+3}, v{u+3}, 0, s[50:51]''')
        for st in range(4):
            for j in order:
                acc = AC2 + 16*st + 4*j
                a(f'{MF} {vr(acc,4)}, {vr(CF+16*st+4*q,4)}, {vr(u+4*j,4)}, {vr(acc,4) if q else 0}')
    s.ts(7)
    for st in range(4):
        for i in range(4):
            b = AC2 + 16*st + i; d = UD + 8*st + 2*i
            a(f'v_cvt_pk_bf16_f32 v{d}, v{b}, v{b+4}\n v_cvt_pk_bf16_f32 v{d+1}, v{b+8}, v{b+12}')
            a(f'buffer_store_dwordx2 {vr(d,2)}, v{AD+4*st+i}, s[20:23], 0 offen {o.osf}')
    s.ts(8)
    s.ts_dump(16)
    a('s_endpgm')
```

```python
import sys, struct, math
sys.path.insert(0, 'exp')
from asmlib import *
import haz
def fb(x): return hex(struct.unpack('<I', struct.pack('<f', x))[0])
WS_U, WS_O, WS_XC, WS_FO, WS_FU, WS_TS = 0, 0x400000, 0x800000, 0xC00000, 0xC40000, 0xD00000
SL = 44416; L_X = 0; L_WV = 16896; L_XH = 25344; L_WQK = 27520; BL = 4224
QS = L_WQK; KS = SL + L_WQK; VS = 2*SL + L_WQK
HS = 3*SL; TR = HS + 4096; L_NON = TR + 8*2304; LDS_BYTES = L_NON + 128
NWG = 240
SPIN = 30000
class Opt:
    prof = False; hold = 1; x_ack = 0; xst = 'sc1'; xld = 'sc1'; x_late = 0; x_nowo = False; bmap = 1; x_cnt = False; rotg = 1; touch = 0; cpos = 4; x_nold = False; x_nomm = False; x_nord = False; clk = 's_memrealtime'; rotc = 1; rota = 1; ldf = ''; doA = True; doB = True; pre = True
MF = 'v_mfma_f32_16x16x32_bf16'
MF16 = 'v_mfma_f32_16x16x16_bf16'

def resolve(ops, loop=True, cap=5):
    out = []
    seq = 0; last = {}; done = -1
    for it in range(2 if loop else 1):
        out = []
        for o in ops:
            if o[0] == 'r':
                for r in o[2]: last[r] = seq
                seq += 1; out.append(o[1])
            elif o[0] == 'm':
                nd = max([last.get(r, -1) for r in o[2]])
                if nd > done:
                    n = min(seq - 1 - nd, cap)
                    out.append(f's_waitcnt lgkmcnt({n})'); done = seq - 1 - n
                out.append(o[1])
            elif o[0] == 'w0':
                out.append('s_waitcnt lgkmcnt(0)'); done = seq - 1
            else: out.append(o[1])
    return '\n'.join(out)
def R(b, n): return list(range(b, b+n))

class G:
    def __init__(s, o):
        s.o = o; s.a = Asm(); s.nts = 0
    def ts(s, i):
        if s.o.prof: s.a(s.tst(i))
    def tst(s, i):
        return f'{s.o.clk} s[98:99]\n s_waitcnt lgkmcnt(0)\n s_mov_b32 s{80+i}, s98' if s.o.prof else ''
    def ts_dump(s, n):
        if not s.o.prof: return
        a = s.a
        a('s_waitcnt vmcnt(0)')
        s.ts(n-1)
        a(f's_lshl_b32 s4, s2, 3\n s_add_u32 s4, s4, s3\n s_lshl_b32 s4, s4, 6\n s_add_u32 s4, s4, {WS_TS}\n s_mov_b64 exec, 1\n v_mov_b32 v1, 0')
        for i in range(n):
            a(f'v_mov_b32 v2, s{80+i}\n buffer_store_dword v2, v1, s[24:27], s4 offen offset:{4*i}')
    def dma(s, ldsreg, ldsoff, kreg, koff, voff, srd):
        s.a(f's_add_u32 m0, {ldsreg}, {ldsoff}\n s_add_u32 s7, {kreg}, {koff}')
        if not s.o.x_nold: s.a(f'buffer_load_dwordx4 {voff}, {srd}, s7 offen {s.o.ldf} lds')
    def srds(s):
        s.a('''s_mov_b32 s14, 1990656
        s_mov_b32 s15, s11
        s_mov_b32 s18, 663552
        s_mov_b32 s19, s11
        s_mov_b32 s22, 4718592
        s_mov_b32 s23, s11
        s_mov_b32 s26, 0x1000000
        s_mov_b32 s27, s11
        s_movk_i32 s30, 256
        s_mov_b32 s31, s11''')
    def prefetch(s, r=232):
        if not s.o.pre: return
        s.nts += 1; L = f'L_pc{s.nts}'
        s.a(f'''s_getpc_b64 s[36:37]
        {L}:
        s_sub_u32 s36, s36, {L}-L_top
        s_subb_u32 s37, s37, 0
        s_lshl_b32 s38, s3, 13
        v_lshl_add_u32 v{r}, v0, 7, s38
        v_min_u32 v{r}, L_last-L_top, v{r}
        global_load_dword v{r+1}, v{r}, s[36:37]''')
    def nonce_wait(s, lab, v):
        s.a(f'''s_movk_i32 s5, {SPIN}
        {lab}:
        s_waitcnt vmcnt(0)
        v_cmp_ne_u32 vcc, 0, v{v}
        s_cbranch_vccnz {lab}d
        buffer_load_dword v{v}, off, s[28:31], 0 sc1
        s_sub_u32 s5, s5, 1
        s_cbranch_scc0 {lab}
        s_waitcnt vmcnt(0)
        {lab}d:''')
    def entry(s):
        a = s.a
        a(f'''L_top:
        s_cmpk_ge_u32 s2, {NWG}
        s_cbranch_scc1 L_end
        s_load_dwordx2 s[8:9], s[0:1], 40
        s_load_dwordx2 s[12:13], s[0:1], 48
        s_load_dwordx2 s[4:5], s[0:1], 0
        s_load_dwordx2 s[16:17], s[0:1], 56
        s_load_dwordx2 s[20:21], s[0:1], 64
        s_load_dwordx2 s[28:29], s[0:1], 72
        s_load_dwordx2 s[24:25], s[0:1], 80''')
        if s.o.prof: a(f'{s.o.clk} s[80:81]')
        a(f'''v_lshrrev_b32 v1, 6, v0
        v_and_b32 v0, 63, v0
        v_readfirstlane_b32 s3, v1
        s_mov_b32 s10, 2359296
        s_mov_b32 s11, 0x20000''')
        s.srds()
        a(f'''s_and_b32 s32, s2, 7
        s_lshl_b32 s32, s32, 1
        s_lshr_b32 s33, s2, 3
        s_cmp_ge_u32 s33, 18
        s_cbranch_scc1 L_A
        s_cmp_ge_u32 s33, 9
        s_cselect_b32 s6, 9, 0
        s_addc_u32 s32, s32, 0
        s_sub_u32 s33, s33, s6''')
        if s.o.bmap > 1:
            m = s.o.bmap; lg = m.bit_length() - 1
            a(f'''s_and_b32 s6, s2, {m-1}
            s_mul_i32 s6, s6, 18
            s_lshr_b32 s7, s2, 3
            s_add_u32 s6, s6, s7
            s_lshr_b32 s33, s6, {lg+1}
            s_and_b32 s6, s6, {2*m-1}
            s_and_b32 s7, s2, {7 & ~(m-1)}
            s_lshl_b32 s7, s7, 1
            s_add_u32 s32, s7, s6''')
        a(f'''s_cmp_lt_u32 s3, 4
        s_cbranch_scc1 L_Bc''')
        if not s.o.doB: a('s_endpgm')
    def b_loader(s):
        a = s.a; o = s.o
        a(f'''s_sub_u32 s39, s3, 4
        v_and_b32 v1, 7, v0
        v_lshlrev_b32 v1, 4, v1
        v_bfe_u32 v2, v0, 3, 1
        v_bfe_u32 v3, v0, 4, 1
        v_lshrrev_b32 v4, 5, v0
        s_lshl_b32 s6, s39, 1
        v_lshl_add_u32 v5, v3, 3, v2
        v_add_u32 v5, s6, v5
        v_lshl_add_u32 v83, v4, 4, v5
        v_mul_u32_u24 v80, 2304, v83
        v_add_u32 v80, v80, v1
        v_lshl_add_u32 v6, v3, 2, v2
        v_lshl_add_u32 v6, v4, 4, v6
        s_and_b32 s34, s39, 1
        s_lshl_b32 s34, s34, 1
        s_lshr_b32 s35, s39, 1
        s_lshl_b32 s35, s35, 3
        s_add_u32 s34, s34, s35
        v_add_u32 v6, s34, v6
        v_mul_u32_u24 v82, 3456, v6
        s_lshl_b32 s35, s33, 7
        v_add3_u32 v82, v82, v1, s35
        v_add_u32 v6, s6, v2
        v_lshl_add_u32 v6, v6, 1, v3
        s_lshl_b32 s34, s32, 7
        s_sub_u32 s34, s34, 16
        s_max_i32 s34, s34, 0
        v_add_u32 v6, s34, v6
        v_mul_u32_u24 v81, 1152, v6
        v_add_u32 v81, v81, v1
        s_mul_i32 s63, s32, {128*1152}
        s_mul_i32 s34, s32, {o.rotc}
        s_mul_i32 s6, s33, {o.rotg}
        s_add_u32 s34, s34, s6
        s_mul_i32 s6, s34, 57
        s_lshr_b32 s6, s6, 9
        s_mul_i32 s6, s6, 9
        s_sub_u32 s34, s34, s6
        s_mul_i32 s64, s39, 1056
        s_mul_i32 s65, s39, 544
        s_mov_b32 s66, 0
        v_mov_b32 v248, 0
        v_mov_b32 v254, 0
        v_mov_b32 v255, 0
        s_waitcnt lgkmcnt(0)''')
        a(f'''L_ld:
        s_lshl_b32 s67, s34, 7
        s_add_u32 s68, s67, s63
        s_mul_i32 s69, s34, {64*3456}''')
        for cw in range(4):
            s.dma('s64', L_X + cw*BL, 's68', (64*(cw >> 1) + (cw & 1))*1152, 'v80', 's[8:11]')
        a(f's_add_u32 m0, s65, {L_XH}\n s_mov_b32 exec_hi, 0')
        a(f'buffer_load_dwordx4 v81, s[8:11], s67 offen {o.ldf} lds\n s_mov_b32 exec_hi, -1')
        for ks in range(2):
            for m in range(2):
                s.dma('s64', L_WQK + (2*ks+m)*BL, 's69', ks*32*3456 + m*1152, 'v82', 's[12:15]')
        a('s_cmp_ge_u32 s66, 6\n s_cbranch_scc1 L_ld1')
        for ks in range(2):
            s.dma('s64', L_WV + ks*BL, 's69', ks*32*3456 + 2304, 'v82', 's[12:15]')
        a(f'''L_ld1:
        s_add_u32 s34, s34, 1
        s_cmp_eq_u32 s34, 9
        s_cselect_b32 s34, 0, s34
        s_add_u32 s64, s64, {SL}
        s_add_u32 s65, s65, {SL}
        s_cmp_ge_u32 s64, {3*SL}
        s_cselect_b32 s6, {3*SL}, 0
        s_sub_u32 s64, s64, s6
        s_sub_u32 s65, s65, s6
        s_add_u32 s66, s66, 1
        s_cmp_lt_u32 s66, 2
        s_cbranch_scc1 L_ld
        s_cmp_lg_u32 s66, {o.cpos}
        s_cbranch_scc1 L_ld2''')
        s.ts(1)
        s.b_const('h')
        s.ts(2)
        a(f'''L_ld2:
        s_waitcnt vmcnt(11)
        s_cmp_lt_u32 s66, 7
        s_cbranch_scc1 L_ld3
        s_waitcnt vmcnt(9)
        L_ld3:
        s_barrier
        s_cmp_lt_u32 s66, 9
        s_cbranch_scc1 L_ld''')
        a('s_add_u32 s34, s34, 6')
        for i in range(3):
            a(f's_cmp_ge_u32 s34, 9\n s_cselect_b32 s6, 9, 0\n s_sub_u32 s34, s34, s6\n s_mul_i32 s69, s34, {64*3456}\n s_add_u32 s34, s34, 1')
            for ks in range(2):
                s.dma('s64', i*SL + L_WV + ks*BL, 's69', ks*32*3456 + 2304, 'v82', 's[12:15]')
        a(f'''v_mul_u32_u24 v83, 1152, v83
        v_add3_u32 v83, v83, v1, s35
        v_add_u32 v84, {32*1152}, v83
        s_mul_i32 s69, s33, {64*1152}
        s_waitcnt vmcnt(6)
        s_barrier''')
        for i in range(0 if o.x_nowo else 9):
            a(f'buffer_load_dwordx4 {vr(8+8*i,4)}, v83, s[16:19], s69 offen {o.ldf}\n buffer_load_dwordx4 {vr(12+8*i,4)}, v84, s[16:19], s69 offen {o.ldf}')
            if i < 8: a(f's_add_u32 s69, s69, {64*1152}\n s_cmp_eq_u32 s69, s18\n s_cselect_b32 s69, 0, s69')
        a('s_waitcnt vmcnt(0)' if o.x_nowo else 's_waitcnt vmcnt(18)')
        s.ts(3)
        a('s_branch L_Bqk')
    def b_const(s, sfx):
        a = s.a
        a(f'''v_and_b32 v216, 15, v0
        v_lshrrev_b32 v217, 4, v0
        v_lshlrev_b32 v218, 2, v217
        v_sub_u32 v219, v216, v218
        v_lshlrev_b32 v248, 4, v0
        s_lshr_b32 s6, s3, 1
        s_or_b32 s6, s6, s32
        s_cmp_eq_u32 s6, 0
        s_cselect_b32 s6, -16, -8
        v_mov_b32 v220, {fb(-1e30)}
        v_mov_b32 v222, 0xffff
        v_mov_b32 v223, 0xffff0000''')
        for i in range(4):
            a(f'''v_subrev_u32 v221, {i}, v219
            v_cmp_le_u32 s[40:41], 8, v221
            v_cmp_le_i32 s[42:43], s6, v221
            v_cmp_le_i32 s[44:45], 0, v221
            v_cndmask_b32 v{192+i}, 0, v220, s[40:41]
            v_cndmask_b32 v{196+i}, 0, v220, s[42:43]
            v_cndmask_b32 v{224+i}, 0, v{222+(i&1)}, s[44:45]''')
        a('v_or_b32 v200, v224, v225\n v_or_b32 v201, v226, v227')
        a(f'''s_lshl_b32 s6, s33, 6
        s_add_u32 s7, s6, 17
        s_mul_i32 s7, s7, 3641
        s_lshr_b32 s7, s7, 16
        s_mul_i32 s7, s7, 18
        s_sub_u32 s6, s7, s6
        s_mov_b32 s7, s6''')
        for t in range(4):
            if t: a(f's_cmp_eq_u32 s6, {18-2*t}\n s_cselect_b32 s4, -16, 2\n s_add_u32 s7, s7, s4')
            a(f's_sub_u32 s4, s7, 2\n v_cmp_gt_i32 s[{40+4*t}:{41+4*t}], s7, v218\n v_cmp_gt_i32 s[{42+4*t}:{43+4*t}], s4, v218')
        a(f'''s_mov_b32 s56, 0x07060500
        s_mov_b32 s57, 0x07060501
        s_mov_b32 s58, 0x07060502
        s_mov_b32 s59, 0x07060503
        s_mov_b32 s60, 0x0c0c0400
        s_mov_b32 s61, 0x05040100
        s_mov_b32 s62, {fb(math.log2(math.e)/math.sqrt(18))}
        s_and_b32 s70, s3, 3
        s_lshr_b32 s71, s3, 2
        s_lshl_b32 s72, s70, 1
        s_add_u32 s72, s72, s71
        s_lshl_b32 s6, s72, 11
        s_add_u32 s6, s6, {QS}
        v_add_u32 v202, s6, v248
        v_add_u32 v203, {VS-QS}, v202
        s_cmp_ge_u32 s3, 4
        s_cselect_b32 s4, 1, 3
        s_lshl_b32 s4, s4, 11
        s_sub_u32 s4, {KS-QS}, s4
        v_add_u32 v204, s4, v202
        v_add_u32 v205, {VS-KS}, v204
        s_cmp_ge_u32 s3, 2
        s_cbranch_scc1 L_Bc1{sfx}
        s_lshl_b32 s4, s3, 7
        s_add_u32 s4, s4, {HS}
        v_and_b32 v204, 0x370, v248
        v_add_u32 v204, s4, v204
        s_lshl_b32 s4, s3, 9
        s_add_u32 s4, s4, {HS+2048}
        v_and_b32 v205, 0x1f0, v248
        v_add_u32 v205, s4, v205
        L_Bc1{sfx}:
        s_lshr_b32 s4, s70, 1
        s_lshl_b32 s5, s4, 10
        s_and_b32 s6, s70, 1
        s_lshl_b32 s7, s6, 3
        s_add_u32 s5, s5, s7
        s_add_u32 s5, s5, {HS}
        v_add_u32 v206, s5, v248
        s_lshl_b32 s4, s4, 6
        s_add_u32 s4, s4, s6
        s_lshl_b32 s5, s71, 5
        s_add_u32 s4, s4, s5
        s_lshl_b32 s5, s32, 7
        s_add_u32 s4, s4, s5
        s_mul_i32 s4, s4, 2304
        s_lshl_b32 s5, s33, 7
        s_add_u32 s4, s4, s5
        s_add_u32 s73, s4, 1152
        v_lshrrev_b32 v221, 3, v0
        v_and_b32 v222, 0x70, v248
        v_mov_b32 v223, 4608
        v_mad_u32_u24 v254, v221, v223, v222
        s_mul_i32 s4, s3, 2304
        s_add_u32 s4, s4, {TR}
        v_mul_u32_u24 v253, 144, v221
        v_add3_u32 v253, v253, v222, s4
        v_mul_u32_u24 v252, 144, v216
        v_lshl_add_u32 v252, v217, 3, v252
        v_add_u32 v252, s4, v252
        v_bfe_u32 v221, v0, 3, 2
        v_mul_u32_u24 v221, 1056, v221
        v_bfe_u32 v222, v0, 2, 1
        v_lshl_add_u32 v221, v222, 7, v221
        v_and_b32 v222, 3, v0
        v_lshl_add_u32 v207, v222, 3, v221
        v_lshrrev_b32 v222, 5, v0
        v_lshl_add_u32 v250, v222, 8, v207
        v_add_u32 v251, 59968, v250
        v_lshl_add_u32 v207, v222, 9, v207
        s_mul_i32 s4, s70, 1056
        v_add_u32 v208, s4, v248
        v_add_u32 v209, 59968, v208
        v_lshlrev_b32 v255, 7, v0
        s_lshl_b32 s4, s32, 3
        s_add_u32 s4, s4, s72
        s_mul_i32 s74, s4, 18432
        s_add_u32 s74, s74, {WS_O}
        s_mul_i32 s75, s4, 1152
        s_add_u32 s75, s75, {WS_FO}
        s_mul_i32 s4, s32, 9
        s_add_u32 s4, s4, s33
        s_lshl_b32 s4, s4, 14
        s_lshl_b32 s5, s72, 10
        s_add_u32 s4, s4, s5
        s_add_u32 s76, s4, {WS_XC}
        s_add_u32 s77, s76, 8192
        s_cmp_eq_u32 s33, 0
        s_cselect_b32 s4, 0, 8192
        s_sub_u32 s78, s76, s4
        s_cmp_eq_u32 s33, 8
        s_cselect_b32 s4, 0, 8192
        s_add_u32 s79, s77, s4''')
    AV, HV, XB, WV_, AQ, AK, HK, WQ = 8, 40, 44, 212, 88, 120, 152, 156
    def frags(s, mode):
        F = []
        if 'q' in mode:
            for m, acc in ((0, s.AQ), (1, s.AK)):
                for i in range(2):
                    F.append((s.WQ + 8*m + 4*i, 4+i, lambda ks, m=m: L_WQK + (2*ks+m)*BL,
                              [(acc + 8*t + 4*i, t) for t in range(4)] + ([(s.HK, 4)] if m == 1 and i == 0 else []), 0))
        if 'v' in mode:
            for i in range(2):
                F.append((s.WV_ + 4*i, 4+i, lambda ks: L_WV + ks*BL, [(s.AV + 8*t + 4*i, t) for t in range(4)] + ([(s.HV, 4)] if i == 0 else []), 1))
        return F
    def rd_w(s, f, ks):
        return [('r', f'ds_read_b64_tr_b16 {vr(f[0]+2*h,2)}, v{f[1]} offset:{f[2](ks)+256*h}', R(f[0]+2*h, 2)) for h in range(2)]
    def rd_x(s, ks):
        b = s.XB + 20*ks
        return [('r', f'ds_read_b128 {vr(b+4*t,4)}, v{2 if t < 4 else 3} offset:{((t>>1)*2*BL+512*(t&1) if t < 4 else 0)+64*ks}', R(b+4*t, 4)) for t in range(5)]
    def mm(s, f, ks):
        r = []
        for acc, t in f[3]:
            x = s.XB + 20*ks + 4*t
            A, B = (x, f[0]) if f[4] else (f[0], x)
            r.append(('m', f'{MF} {vr(acc,4)}, {vr(A,4)}, {vr(B,4)}, {vr(acc,4)}', R(x, 4) + R(f[0], 4)))
        return r
    def stagew(s, base, areg, stg):
        for t in range(4):
            for i in range(2):
                b = base + 8*t + 4*i
                s.a(f'v_cvt_pk_bf16_f32 v{b}, v{b}, v{b+1}\n v_cvt_pk_bf16_f32 v{b+1}, v{b+2}, v{b+3}')
                s.a(f'ds_write_b64 v{areg+i}, {vr(b,2)} offset:{stg + (4*(t>>1)+(t&1))*2048}')
    def stage(s, mode, barrier, extra=[]):
        F = s.frags(mode); ops = []
        def issue(pend):
            while pend and pend[0][0] == 't' and pend[0][1].startswith('s_'): ops.append(pend.pop(0)); break
            if pend: ops.append(pend.pop(0))
        def phase(ks, pend, hold):
            for i, f in enumerate(F):
                if i == hold:
                    ops.extend(pend); pend.clear()
                    if barrier == 1: ops.extend([('w0',), ('t', 's_barrier')])
                    if barrier == 2: ops.extend([('w0',), ('t', 's_cbranch_scc0 L_Bnb\n s_barrier\n L_Bnb:')])
                    ops.extend([('t', f'v_add_u32 v{r}, s38, v{r}') for r in (4, 5)])
                    for g in F[:hold]: pend.extend(s.rd_w(g, 0))
                    pend.extend(s.rd_x(0))
                for m in s.mm(f, ks):
                    ops.append(m); issue(pend)
                if hold is None or i >= hold: pend.extend(s.rd_w(f, 1-ks))
            return pend
        sal = [('t', t) for t in ['s_add_u32 s36, s36, 1', 's_cmp_eq_u32 s36, 3', 's_cselect_b32 s36, 0, s36', f's_cselect_b32 s38, s37, {SL}'] + extra]
        pend = []
        for k, r in enumerate(s.rd_x(1)): pend += [sal[k], r]
        pend += [sal[5]] + [('t', f'v_add_u32 v{r}, s38, v{r}') for r in (2, 3)]
        pend = phase(0, pend, None)
        pend = phase(1, pend, s.o.hold if barrier else 0)
        ops.extend(pend)
        if s.o.x_nomm: ops = [x for x in ops if x[0] != 'm']
        if s.o.x_nord: ops = [x for x in ops if x[0] != 'r']
        return ops
    def b_compute(s):
        a = s.a; o = s.o
        a('L_Bc:')
        if not o.doB: a('s_endpgm')
        s.prefetch()
        a(f'''v_bfe_u32 v6, v0, 1, 2
        v_and_b32 v7, 1, v0
        v_bfe_u32 v4, v0, 3, 1
        v_lshl_add_u32 v7, v4, 1, v7
        v_and_b32 v4, 0x30, v0
        v_lshl_add_u32 v7, v7, 7, v4
        s_and_b32 s6, s3, 1
        s_mul_i32 s6, s6, {BL}
        v_mul_u32_u24 v2, 1056, v6
        v_add3_u32 v2, v2, v7, s6
        v_mul_u32_u24 v3, 544, v6
        v_add_u32 v3, v3, v7
        v_add_u32 v3, {L_XH}, v3''')
        for r in list(range(8, 44)) + list(range(88, 156)): a(f'v_mov_b32 v{r}, 0')
        a(f'''s_waitcnt lgkmcnt(0)
        s_or_b32 s6, s2, s3
        s_cmp_lg_u32 s6, 0
        s_cbranch_scc1 L_Bc2
        s_memrealtime s[6:7]
        s_waitcnt lgkmcnt(0)
        s_or_b32 s6, s6, 0x80000000
        v_mov_b32 v6, s6
        v_mov_b32 v7, 0
        s_mov_b64 exec, 1
        global_store_dword v7, v6, s[28:29] sc1
        s_mov_b64 exec, -1
        L_Bc2:''')
        s.b_const('c')
        a(f'''s_lshl_b32 s6, s3, 5
        v_add_u32 v4, s6, v207
        s_xor_b32 s6, s6, 32
        v_add_u32 v5, s6, v207
        s_and_b32 s6, s3, 1
        s_mul_i32 s7, s6, 4104
        s_lshr_b32 s4, s3, 1
        s_lshl_b32 s4, s4, 10
        s_add_u32 s7, s7, s4
        s_add_u32 s7, s7, {QS}
        v_add_u32 v84, s7, v248
        v_xor_b32 v85, 8, v84
        v_add_u32 v86, {VS-QS}, v84
        v_xor_b32 v87, 8, v86
        s_mov_b32 s36, 0
        s_mov_b32 s37, {-2*SL & 0xffffffff}
        s_mov_b32 s35, 0''')
        if o.touch == 2:
            for r in ('s76', 's77'): a(f'buffer_load_dwordx4 v[236:239], v248, s[24:27], {r} offen\n buffer_load_dwordx4 v[236:239], v248, s[24:27], {r} offen offset:1024')
        if o.touch == 1:
            a('s_mov_b64 exec, 1')
            for r in ('s76', 's78', 's79', 's74', 's75'): a(f'buffer_load_dword v233, off, s[24:27], {r} sc1')
            a('buffer_load_dword v233, off, s[20:23], s73\n buffer_load_dword v233, off, s[16:19], 0\n s_mov_b64 exec, -1')
        s.ts(1)
        a('s_barrier')
        s.ts(2)
        ops = s.rd_x(0)
        for f in s.frags('qkv'): ops += s.rd_w(f, 0)
        a(resolve(ops, loop=False))
        a('.p2align 3\n L_Bl1:')
        a(resolve(s.stage('qkv', True, ['s_add_u32 s35, s35, 1', 's_cmp_lt_u32 s35, 6'])))
        a('s_cbranch_scc1 L_Bl1')
        a('buffer_load_dword v249, off, s[28:31], 0 sc1')
        a('.p2align 3\n L_Bl2:')
        a(resolve(s.stage('qk', 2, ['s_add_u32 s35, s35, 1', 's_cmp_lt_u32 s35, 9'])))
        a('s_cbranch_scc1 L_Bl2')
        s.ts(3)
        s.stagew(s.AQ, 84, 0); s.stagew(s.AK, 84, KS-QS)
        a(f'v_cvt_pk_bf16_f32 v{s.HK}, v{s.HK}, v{s.HK+1}\n v_cvt_pk_bf16_f32 v{s.HK+1}, v{s.HK+2}, v{s.HK+3}\n ds_write_b64 v206, {vr(s.HK,2)}')
        a('s_cmp_lg_u32 s3, 0\n s_cbranch_scc1 L_Bn2')
        s.nonce_wait('L_Bn', 249)
        a(f'v_mov_b32 v6, {L_NON}\n ds_write_b32 v6, v249\n L_Bn2:\n s_waitcnt vmcnt(0) lgkmcnt(0)')
    QR, KC, KP, QM, LL, TT, PP, MM, IN, VV, OF = 88, 96, 104, 112, 128, 148, 160, 180, 216, 224, 240
    def Lr(s, sl): return {0: 128, 4: 132, 1: 136, 2: 140, 3: 144}[sl]
    def qmask(s, t, hi):
        for h in range(2):
            m = f's[{40+4*t+2*h}:{41+4*t+2*h}]'; q = f'v{s.QR+2*t+h}'
            s.a(f'v_cndmask_b32 v{s.QM+4*t+2*hi+h}, {q}, 0, {m}' if hi else f'v_cndmask_b32 v{s.QM+4*t+h}, 0, {q}, {m}')
    def bfly(s, n, op, mid):
        a = s.a; b, c, d, t = [f'v{s.MM+i}' for i in range(4)]
        if n == 3:
            a(f'''v_mov_b32 {t}, {d}
            v_permlane32_swap_b32 {b}, {c}
            v_permlane32_swap_b32 {d}, {t}
            {op} {b}, {b}, {c}
            {op} {d}, {d}, {t}
            v_permlane16_swap_b32 {b}, {d}
            {op} {b}, {b}, {d}
            {mid(d, b)}
            {mid(b, b)}
            v_permlane16_swap_b32 {b}, {d}
            v_mov_b32 {c}, {b}
            v_permlane32_swap_b32 {b}, {c}''')
        else:
            a(f'''v_permlane32_swap_b32 {b}, {c}
            {op} {t}, {b}, {c}
            {op} {b}, {b}, {c}
            v_permlane16_swap_b32 {b}, {t}
            {op} {b}, {b}, {t}
            {mid(c, b)}
            {mid(b, b)}
            v_permlane32_swap_b32 {b}, {c}''')
    def softmax(s, slots):
        a = s.a; n = len(slots)
        for j, sl in enumerate(slots):
            L = s.Lr(sl); a(f'v_max3_f32 v{s.MM+j}, v{L}, v{L+1}, v{L+2}')
        for j, sl in enumerate(slots):
            L = s.Lr(sl); a(f'v_max_f32 v{s.MM+j}, v{s.MM+j}, v{L+3}')
        s.bfly(n, 'v_max_f32', lambda d, x: f'v_mul_f32 {d}, s62, {x}')
        for j, sl in list(enumerate(slots))[::-1]:
            L = s.Lr(sl)
            for i in range(4): a(f'v_fma_f32 v{L+i}, v{L+i}, s62, -v{s.MM+j}')
            for i in range(4): a(f'v_exp_f32 v{L+i}, v{L+i}')
        for j, sl in list(enumerate(slots))[::-1]:
            L = s.Lr(sl); a(f'v_add_f32 v{s.MM+j}, v{L}, v{L+1}\n v_add_f32 v{s.MM+4+j}, v{L+2}, v{L+3}')
        for j, sl in list(enumerate(slots))[::-1]:
            a(f'v_add_f32 v{s.MM+j}, v{s.MM+j}, v{s.MM+4+j}')
        s.bfly(n, 'v_add_f32', lambda d, x: f'v_rcp_f32 {d}, {x}')
        for j, sl in list(enumerate(slots))[::-1]:
            L = s.Lr(sl); P = s.PP + 4*sl
            for i in range(4): a(f'v_mul_f32 v{L+i}, v{L+i}, v{s.MM+j}')
            for h in range(2): a(f'v_cvt_pk_bf16_f32 v{P+2+h}, v{L+2*h}, v{L+2*h+1}')
            for h in range(2): a(f'v_and_b32 v{P+h}, v{P+2+h}, v{200+h}')
            for h in range(2): a(f'v_xor_b32 v{P+2+h}, v{P+2+h}, v{P+h}')
    def b_attn(s):
        a = s.a; o = s.o
        a('L_Bqk:\n s_barrier')
        s.ts(4)
        a(f'v_mov_b32 v6, {L_NON}')
        for j in range(2):
            a(f'ds_read_b128 {vr(s.QR+4*j,4)}, v202 offset:{1024*j}')
            a(f'ds_read_b128 {vr(s.KC+4*j,4)}, v202 offset:{KS-QS+1024*j}')
            a(f'ds_read_b128 {vr(s.KP+4*j,4)}, v204 offset:{1024*j}')
        a('ds_read_b32 v249, v6')
        a('s_cmp_ge_u32 s3, 4\n s_cbranch_scc1 L_Bx0')
        for f in s.frags('v'):
            for r in s.rd_w(f, 0): a(r[1])
        a('s_waitcnt lgkmcnt(4)\n s_branch L_Bx1\n L_Bx0:\n s_waitcnt lgkmcnt(0)\n L_Bx1:')
        s.qmask(0, 0); s.qmask(3, 1)
        for j, (sl, k, q) in enumerate(((0, 0, s.QM), (4, 6, s.QM+14))):
            a(f'{MF16} {vr(s.Lr(sl),4)}, {vr(s.KC+k,2)}, {vr(q,2)}, v[192:195]')
            a(f'{MF16} {vr(s.TT+4*j,4)}, {vr(s.KP+k,2)}, {vr(q,2)}, v[196:199]')
        s.qmask(0, 1); s.qmask(1, 0); s.qmask(1, 1)
        for j, sl in enumerate((0, 4)):
            L = s.Lr(sl)
            for i in range(4): a(f'v_max_f32 v{L+i}, v{L+i}, v{s.TT+4*j+i}')
            for i in range(4): a(f'v_perm_b32 v{L+i}, v{L+i}, v249, s{56+i}')
            a(f'buffer_store_dwordx4 {vr(L,4)}, v248, s[24:27], s{76+j} offen {o.xst}')
        if o.x_ack: a('s_waitcnt vmcnt(0)')
        s.ts(5)
        a('s_cmp_ge_u32 s3, 4\n s_cbranch_scc1 L_BF')
        a('s_mov_b32 s35, 0\n .p2align 3\n L_Bl3:')
        a(resolve(s.stage('v', False, ['s_add_u32 s35, s35, 1', 's_cmp_lt_u32 s35, 3']), cap=6))
        a('s_cbranch_scc1 L_Bl3')
        s.stagew(s.AV, 86, 0)
        a(f'v_cvt_pk_bf16_f32 v{s.HV}, v{s.HV}, v{s.HV+1}\n v_cvt_pk_bf16_f32 v{s.HV+1}, v{s.HV+2}, v{s.HV+3}\n ds_write_b64 v206, {vr(s.HV,2)} offset:2048')
        inl = f'buffer_load_dwordx4 {vr(s.IN,4)}, v248, s[24:27], s78 offen {o.xld}\n buffer_load_dwordx4 {vr(s.IN+4,4)}, v248, s[24:27], s79 offen {o.xld}'
        a('s_waitcnt lgkmcnt(0)\n s_barrier\n' + inl)
        a('L_BF:')
        s.ts(6)
        s.qmask(2, 0); s.qmask(2, 1); s.qmask(3, 0)
        for sl in (1, 2, 3):
            a(f'{MF} {vr(s.Lr(sl),4)}, {vr(s.KC+2*sl-2,4)}, {vr(s.QM+4*sl-2,4)}, v[192:195]')
            a(f'{MF} {vr(s.TT+4*sl-4,4)}, {vr(s.KP+2*sl-2,4)}, {vr(s.QM+4*sl-2,4)}, v[196:199]')
        inl = f'buffer_load_dwordx4 {vr(s.IN,4)}, v248, s[24:27], s78 offen {o.xld}\n buffer_load_dwordx4 {vr(s.IN+4,4)}, v248, s[24:27], s79 offen {o.xld}'
        for sl in (1, 2, 3):
            for i in range(4): a(f'v_max_f32 v{s.Lr(sl)+i}, v{s.Lr(sl)+i}, v{s.TT+4*sl-4+i}')
        s.softmax((1, 2, 3))
        s.ts(7)
        a('s_cmp_lt_u32 s3, 4\n s_cbranch_scc1 L_Bw\n' + inl + '\n s_barrier\n L_Bw:')
        s.ts(8)
        for t in range(4):
            a(f'ds_read_b64 {vr(s.VV+4*t,2)}, v203 offset:{(t>>1)*1024+(t&1)*8}')
            a(f'ds_read_b64 {vr(s.VV+4*t+2,2)}, v205 offset:{(t>>1)*1024+(t&1)*8}')
        I = s.IN; T = s.TT
        a(f'''s_movk_i32 s5, {SPIN}
        L_By:
        s_waitcnt vmcnt(0)
        v_perm_b32 v{T}, v{I+1}, v{I}, s60
        v_perm_b32 v{T+1}, v{I+3}, v{I+2}, s60
        v_perm_b32 v{T+2}, v{I+5}, v{I+4}, s60
        v_perm_b32 v{T+3}, v{I+7}, v{I+6}, s60
        v_perm_b32 v{T}, v{T+1}, v{T}, s61
        v_perm_b32 v{T+2}, v{T+3}, v{T+2}, s61
        v_cmp_ne_u32 vcc, v{T}, v249
        v_cmp_ne_u32 s[6:7], v{T+2}, v249
        s_or_b64 vcc, vcc, s[6:7]
        s_cbranch_scc0 L_Byd
        {inl}
        s_sub_u32 s5, s5, 1
        s_cbranch_scc0 L_By
        s_waitcnt vmcnt(0)
        L_Byd:''')
        s.ts(9)
        if o.x_cnt: a(f's_sub_u32 s81, {SPIN}, s5\n s_mul_i32 s81, s81, 100\n s_add_u32 s81, s81, s80')
        for i in range(8): a(f'v_add_f32 v{128+i}, v{128+i}, v{I+i}')
        a('s_waitcnt lgkmcnt(0)')
        O = 88
        def pv(t, hi): a(f'{MF} {vr(O+8*t+4*hi,4)}, {vr(s.VV+4*t,4)}, {vr(s.PP+4*(t+hi),4)}, 0')
        for t, hi in ((0, 1), (1, 0), (1, 1), (2, 0), (2, 1), (3, 0)): pv(t, hi)
        s.softmax((0, 4))
        pv(3, 1); pv(0, 0)
        for t in (1, 2, 3, 0):
            for h in range(2):
                a(f'v_cvt_pk_bf16_f32 v{O+8*t+2*h}, v{O+8*t+2*h}, v{O+8*t+2*h+1}')
                a(f'v_cvt_pk_bf16_f32 v{O+8*t+4+2*h}, v{O+8*t+4+2*h}, v{O+8*t+4+2*h+1}')
                a(f'v_cndmask_b32 v{s.OF+2*t+h}, v{O+8*t+4+2*h}, v{O+8*t+2*h}, s[{40+4*t+2*h}:{41+4*t+2*h}]')
            if t == 3: a(f's_lshl_b32 s4, s33, 11\n s_add_u32 s4, s4, s74\n buffer_store_dwordx4 {vr(s.OF+4,4)}, v248, s[24:27], s4 offen offset:1024 sc1')
        a(f'buffer_store_dwordx4 {vr(s.OF,4)}, v248, s[24:27], s4 offen sc1')
    def b2(s):
        a = s.a
        ACC = 72; W = 88
        def rd(pos):
            r = []
            for c in range(4):
                for h in range(2):
                    off = (pos//6)*SL + (pos % 6)*BL + 32*c + 512*h
                    d = W + 16*(pos % 9) + 4*c + 2*h
                    r.append(('r', f'ds_read_b64_tr_b16 {vr(d,2)}, v{250 if off < 59968 else 251} offset:{off if off < 59968 else off-59968}', R(d, 2)))
            return r
        def mm(pos, pend):
            B = s.OF + 4*pos if pos < 2 else 8 + 4*(pos-2)
            r = []
            for c in range(4):
                A = W + 16*(pos % 9) + 4*c
                r.append(('m', f'{MF} {vr(ACC+4*c,4)}, {vr(A,4)}, {vr(B,4)}, {vr(ACC+4*c,4) if pos else 0}', R(A, 4)))
                for _ in range(2):
                    if pend: r.append(pend.pop(0))
            return r
        s.ts(10)
        a('s_cmp_lt_u32 s3, 4\n s_cbranch_scc1 L_Bw2')
        for i in range(18):
            off = (i//6)*SL + (i % 6)*BL
            a(f'ds_write_b128 v{208 if off < 59968 else 209}, {vr(8+4*i,4)} offset:{off if off < 59968 else off-59968}')
        a(f'L_Bw2:\n s_lshl_b32 s4, s33, 7\n s_add_u32 s4, s4, s75\n s_waitcnt vmcnt(0)\n s_mov_b64 exec, 1\n buffer_store_dword v249, off, s[24:27], s4 sc1\n s_mov_b64 exec, -1')
        s.ts(11)
        a('s_waitcnt lgkmcnt(0)\n s_barrier')
        ops = []
        for p in range(5): ops += rd(p)
        ops.append(('t', 's_mov_b64 exec, 0x1ff\n buffer_load_dword v232, v255, s[24:27], s75 offen sc1\n s_mov_b64 exec, -1'))
        for p in range(5, 9): ops += rd(p)
        ops += mm(0, []); ops += mm(1, rd(9)); ops += rd(10); ops.append(('t', s.tst(12)))
        ops.append(('t', f'''s_movk_i32 s5, {SPIN}
        s_mov_b64 exec, 0x1ff
        L_Bp:
        s_waitcnt vmcnt(0)
        v_cmp_ne_u32 vcc, v232, v249
        s_cbranch_vccz L_Bpd
        buffer_load_dword v232, v255, s[24:27], s75 offen sc1
        s_sub_u32 s5, s5, 1
        s_cbranch_scc0 L_Bp
        s_waitcnt vmcnt(0)
        L_Bpd:
        s_mov_b64 exec, -1'''))
        ops.append(('t', s.tst(13)))
        t = f's_mov_b32 s4, s33\n'
        for i in range(8):
            t += f's_add_u32 s4, s4, 1\n s_cmp_eq_u32 s4, 9\n s_cselect_b32 s4, 0, s4\n s_lshl_b32 s5, s4, 11\n s_add_u32 s5, s5, s74\n'
            t += f'buffer_load_dwordx4 {vr(8+8*i,4)}, v248, s[24:27], s5 offen sc1\n buffer_load_dwordx4 {vr(12+8*i,4)}, v248, s[24:27], s5 offen offset:1024 sc1\n'
        ops.append(('t', t))
        pend = []
        for p in range(2, 18):
            ops.append(('t', f's_waitcnt vmcnt({17-p})'))
            ops += mm(p, pend)
            if p + 9 < 18: pend = rd(p+9)
        a(resolve(ops, loop=False))
        s.ts(14)
        for c in range(4):
            for h in range(2): a(f'v_cvt_pk_bf16_f32 v{ACC+4*c+h}, v{ACC+4*c+2*h}, v{ACC+4*c+2*h+1}')
            a(f'ds_write_b64 v252, {vr(ACC+4*c,2)} offset:{32*c}')
        a(f'''s_waitcnt lgkmcnt(0)
        ds_read_b128 v[8:11], v253
        ds_read_b128 v[12:15], v253 offset:{8*144}
        s_add_u32 s4, s73, {16*2304}
        s_waitcnt lgkmcnt(1)
        buffer_store_dwordx4 v[8:11], v254, s[20:23], s73 offen
        s_waitcnt lgkmcnt(0)
        buffer_store_dwordx4 v[12:15], v254, s[20:23], s4 offen''')
        s.ts_dump(16)
        a('s_endpgm')
    def a_part(s):
        a = s.a; o = s.o
        a('L_A:')
        if not o.doA: a('s_endpgm'); return
        import genA
        genA.a_part(s)
    def build(s):
        s.entry(); s.b_loader(); s.b_compute(); s.b_attn(); s.b2(); s.a_part()
        s.a('L_end:\n L_last:\n s_endpgm')
        return single_file(haz.fix(s.a.text()), NWG, 512, LDS_BYTES)
def gen(**kw):
    o = Opt()
    for k, v in kw.items(): setattr(o, k, v)
    return G(o).build()
if __name__ == '__main__':
    kw = {}
    for x in sys.argv[2:]:
        k, v = x.split('='); kw[k] = eval(v)
    open(sys.argv[1], 'w').write(gen(**kw))
```

```python
import sys, struct, math
sys.path.insert(0, 'exp')
from asmlib import *
import haz
def fb(x): return hex(struct.unpack('<I', struct.pack('<f', x))[0])
WS_U, WS_O, WS_XC, WS_FO, WS_FU, WS_TS = 0, 0x400000, 0x800000, 0xC00000, 0xC40000, 0xD00000
SL = 44416; L_X = 0; L_WV = 16896; L_XH = 25344; L_WQK = 27520; BL = 4224
QS = L_WQK; KS = SL + L_WQK; VS = 2*SL + L_WQK
HS = 3*SL; TR = HS + 4096; L_NON = TR + 8*2304; LDS_BYTES = L_NON + 128
NWG = 240
SPIN = 30000
class Opt:
    prof = False; x_delay = 0; hold = 1; x_ack = 0; xst = 'sc1'; xld = 'sc1'; x_late = 0; x_nowo = False; bmap = 1; x_cnt = False; rotg = 1; touch = 0; cpos = 4; x_nold = False; x_nomm = False; x_nord = False; clk = 's_memrealtime'; rotc = 1; rota = 1; ldf = ''; doA = True; doB = True; pre = True
MF = 'v_mfma_f32_16x16x32_bf16'
MF16 = 'v_mfma_f32_16x16x16_bf16'

def resolve(ops, loop=True, cap=5):
    out = []
    seq = 0; last = {}; done = -1
    for it in range(2 if loop else 1):
        out = []
        for o in ops:
            if o[0] == 'r':
                for r in o[2]: last[r] = seq
                seq += 1; out.append(o[1])
            elif o[0] == 'm':
                nd = max([last.get(r, -1) for r in o[2]])
                if nd > done:
                    n = min(seq - 1 - nd, cap)
                    out.append(f's_waitcnt lgkmcnt({n})'); done = seq - 1 - n
                out.append(o[1])
            elif o[0] == 'w0':
                out.append('s_waitcnt lgkmcnt(0)'); done = seq - 1
            else: out.append(o[1])
    return '\n'.join(out)
def R(b, n): return list(range(b, b+n))

class G:
    def __init__(s, o):
        s.o = o; s.a = Asm(); s.nts = 0
    def ts(s, i):
        if s.o.prof: s.a(s.tst(i))
    def tst(s, i):
        return f'{s.o.clk} s[98:99]\n s_waitcnt lgkmcnt(0)\n s_mov_b32 s{80+i}, s98' if s.o.prof else ''
    def ts_dump(s, n):
        if not s.o.prof: return
        a = s.a
        a('s_waitcnt vmcnt(0)')
        s.ts(n-1)
        a(f's_lshl_b32 s4, s2, 3\n s_add_u32 s4, s4, s3\n s_lshl_b32 s4, s4, 6\n s_add_u32 s4, s4, {WS_TS}\n s_mov_b64 exec, 1\n v_mov_b32 v1, 0')
        for i in range(n):
            a(f'v_mov_b32 v2, s{80+i}\n buffer_store_dword v2, v1, s[24:27], s4 offen offset:{4*i}')
    def dma(s, ldsreg, ldsoff, kreg, koff, voff, srd):
        s.a(f's_add_u32 m0, {ldsreg}, {ldsoff}\n s_add_u32 s7, {kreg}, {koff}')
        if not s.o.x_nold: s.a(f'buffer_load_dwordx4 {voff}, {srd}, s7 offen {s.o.ldf} lds')
    def srds(s):
        s.a('''s_mov_b32 s14, 1990656
        s_mov_b32 s15, s11
        s_mov_b32 s18, 663552
        s_mov_b32 s19, s11
        s_mov_b32 s22, 4718592
        s_mov_b32 s23, s11
        s_mov_b32 s26, 0x1000000
        s_mov_b32 s27, s11
        s_movk_i32 s30, 256
        s_mov_b32 s31, s11''')
    def prefetch(s, r=232):
        if not s.o.pre: return
        s.nts += 1; L = f'L_pc{s.nts}'
        s.a(f'''s_getpc_b64 s[36:37]
        {L}:
        s_sub_u32 s36, s36, {L}-L_top
        s_subb_u32 s37, s37, 0
        s_lshl_b32 s38, s3, 13
        v_lshl_add_u32 v{r}, v0, 7, s38
        v_min_u32 v{r}, L_last-L_top, v{r}
        global_load_dword v{r+1}, v{r}, s[36:37]''')
    def nonce_wait(s, lab, v):
        s.a(f'''s_movk_i32 s5, {SPIN}
        {lab}:
        s_waitcnt vmcnt(0)
        v_cmp_ne_u32 vcc, 0, v{v}
        s_cbranch_vccnz {lab}d
        buffer_load_dword v{v}, off, s[28:31], 0 sc1
        s_sub_u32 s5, s5, 1
        s_cbranch_scc0 {lab}
        s_waitcnt vmcnt(0)
        {lab}d:''')
    def entry(s):
        a = s.a
        a(f'''L_top:
        s_cmpk_ge_u32 s2, {NWG}
        s_cbranch_scc1 L_end
        s_load_dwordx2 s[8:9], s[0:1], 40
        s_load_dwordx2 s[12:13], s[0:1], 48
        s_load_dwordx2 s[4:5], s[0:1], 0
        s_load_dwordx2 s[16:17], s[0:1], 56
        s_load_dwordx2 s[20:21], s[0:1], 64
        s_load_dwordx2 s[28:29], s[0:1], 72
        s_load_dwordx2 s[24:25], s[0:1], 80''')
        if s.o.prof: a(f'{s.o.clk} s[80:81]')
        a(f'''v_lshrrev_b32 v1, 6, v0
        v_and_b32 v0, 63, v0
        v_readfirstlane_b32 s3, v1
        s_mov_b32 s10, 2359296
        s_mov_b32 s11, 0x20000''')
        s.srds()
        a(f'''s_and_b32 s32, s2, 7
        s_lshl_b32 s32, s32, 1
        s_lshr_b32 s33, s2, 3
        s_cmp_ge_u32 s33, 18
        s_cbranch_scc1 L_A
        s_cmp_ge_u32 s33, 9
        s_cselect_b32 s6, 9, 0
        s_addc_u32 s32, s32, 0
        s_sub_u32 s33, s33, s6''')
        if s.o.bmap > 1:
            m = s.o.bmap; lg = m.bit_length() - 1
            a(f'''s_and_b32 s6, s2, {m-1}
            s_mul_i32 s6, s6, 18
            s_lshr_b32 s7, s2, 3
            s_add_u32 s6, s6, s7
            s_lshr_b32 s33, s6, {lg+1}
            s_and_b32 s6, s6, {2*m-1}
            s_and_b32 s7, s2, {7 & ~(m-1)}
            s_lshl_b32 s7, s7, 1
            s_add_u32 s32, s7, s6''')
        a(f'''s_cmp_lt_u32 s3, 4
        s_cbranch_scc1 L_Bc''')
        if not s.o.doB: a('s_endpgm')
    def b_loader(s):
        a = s.a; o = s.o
        a(f'''s_sub_u32 s39, s3, 4
        v_and_b32 v1, 7, v0
        v_lshlrev_b32 v1, 4, v1
        v_bfe_u32 v2, v0, 3, 1
        v_bfe_u32 v3, v0, 4, 1
        v_lshrrev_b32 v4, 5, v0
        s_lshl_b32 s6, s39, 1
        v_lshl_add_u32 v5, v3, 3, v2
        v_add_u32 v5, s6, v5
        v_lshl_add_u32 v83, v4, 4, v5
        v_mul_u32_u24 v80, 2304, v83
        v_add_u32 v80, v80, v1
        v_lshl_add_u32 v6, v3, 2, v2
        v_lshl_add_u32 v6, v4, 4, v6
        s_and_b32 s34, s39, 1
        s_lshl_b32 s34, s34, 1
        s_lshr_b32 s35, s39, 1
        s_lshl_b32 s35, s35, 3
        s_add_u32 s34, s34, s35
        v_add_u32 v6, s34, v6
        v_mul_u32_u24 v82, 3456, v6
        s_lshl_b32 s35, s33, 7
        v_add3_u32 v82, v82, v1, s35
        v_add_u32 v6, s6, v2
        v_lshl_add_u32 v6, v6, 1, v3
        s_lshl_b32 s34, s32, 7
        s_sub_u32 s34, s34, 16
        s_max_i32 s34, s34, 0
        v_add_u32 v6, s34, v6
        v_mul_u32_u24 v81, 1152, v6
        v_add_u32 v81, v81, v1
        s_mul_i32 s63, s32, {128*1152}
        s_mul_i32 s34, s32, {o.rotc}
        s_mul_i32 s6, s33, {o.rotg}
        s_add_u32 s34, s34, s6
        s_mul_i32 s6, s34, 57
        s_lshr_b32 s6, s6, 9
        s_mul_i32 s6, s6, 9
        s_sub_u32 s34, s34, s6
        s_mul_i32 s64, s39, 1056
        s_mul_i32 s65, s39, 544
        s_mov_b32 s66, 0
        v_mov_b32 v248, 0
        v_mov_b32 v254, 0
        v_mov_b32 v255, 0
        s_waitcnt lgkmcnt(0)''')
        a(f'''L_ld:
        s_lshl_b32 s67, s34, 7
        s_add_u32 s68, s67, s63
        s_mul_i32 s69, s34, {64*3456}''')
        for cw in range(4):
            s.dma('s64', L_X + cw*BL, 's68', (64*(cw >> 1) + (cw & 1))*1152, 'v80', 's[8:11]')
        a(f's_add_u32 m0, s65, {L_XH}\n s_mov_b32 exec_hi, 0')
        a(f'buffer_load_dwordx4 v81, s[8:11], s67 offen {o.ldf} lds\n s_mov_b32 exec_hi, -1')
        for ks in range(2):
            for m in range(2):
                s.dma('s64', L_WQK + (2*ks+m)*BL, 's69', ks*32*3456 + m*1152, 'v82', 's[12:15]')
        a('s_cmp_ge_u32 s66, 6\n s_cbranch_scc1 L_ld1')
        for ks in range(2):
            s.dma('s64', L_WV + ks*BL, 's69', ks*32*3456 + 2304, 'v82', 's[12:15]')
        a(f'''L_ld1:
        s_add_u32 s34, s34, 1
        s_cmp_eq_u32 s34, 9
        s_cselect_b32 s34, 0, s34
        s_add_u32 s64, s64, {SL}
        s_add_u32 s65, s65, {SL}
        s_cmp_ge_u32 s64, {3*SL}
        s_cselect_b32 s6, {3*SL}, 0
        s_sub_u32 s64, s64, s6
        s_sub_u32 s65, s65, s6
        s_add_u32 s66, s66, 1
        s_cmp_lt_u32 s66, 2
        s_cbranch_scc1 L_ld
        s_cmp_lg_u32 s66, {o.cpos}
        s_cbranch_scc1 L_ld2''')
        s.ts(1)
        s.b_const('h')
        s.ts(2)
        a(f'''L_ld2:
        s_waitcnt vmcnt(11)
        s_cmp_lt_u32 s66, 7
        s_cbranch_scc1 L_ld3
        s_waitcnt vmcnt(9)
        L_ld3:
        s_barrier
        s_cmp_lt_u32 s66, 9
        s_cbranch_scc1 L_ld''')
        a('s_add_u32 s34, s34, 6')
        for i in range(3):
            a(f's_cmp_ge_u32 s34, 9\n s_cselect_b32 s6, 9, 0\n s_sub_u32 s34, s34, s6\n s_mul_i32 s69, s34, {64*3456}\n s_add_u32 s34, s34, 1')
            for ks in range(2):
                s.dma('s64', i*SL + L_WV + ks*BL, 's69', ks*32*3456 + 2304, 'v82', 's[12:15]')
        a(f'''v_mul_u32_u24 v83, 1152, v83
        v_add3_u32 v83, v83, v1, s35
        v_add_u32 v84, {32*1152}, v83
        s_mul_i32 s69, s33, {64*1152}
        s_waitcnt vmcnt(6)
        s_barrier''')
        for i in range(0 if o.x_nowo else 9):
            a(f'buffer_load_dwordx4 {vr(8+8*i,4)}, v83, s[16:19], s69 offen {o.ldf}\n buffer_load_dwordx4 {vr(12+8*i,4)}, v84, s[16:19], s69 offen {o.ldf}')
            if i < 8: a(f's_add_u32 s69, s69, {64*1152}\n s_cmp_eq_u32 s69, s18\n s_cselect_b32 s69, 0, s69')
        a('s_waitcnt vmcnt(0)' if o.x_nowo else 's_waitcnt vmcnt(18)')
        s.ts(3)
        a('s_branch L_Bqk')
    def b_const(s, sfx):
        a = s.a
        a(f'''v_and_b32 v216, 15, v0
        v_lshrrev_b32 v217, 4, v0
        v_lshlrev_b32 v218, 2, v217
        v_sub_u32 v219, v216, v218
        v_lshlrev_b32 v248, 4, v0
        s_lshr_b32 s6, s3, 1
        s_or_b32 s6, s6, s32
        s_cmp_eq_u32 s6, 0
        s_cselect_b32 s6, -16, -8
        v_mov_b32 v220, {fb(-1e30)}
        v_mov_b32 v222, 0xffff
        v_mov_b32 v223, 0xffff0000''')
        for i in range(4):
            a(f'''v_subrev_u32 v221, {i}, v219
            v_cmp_le_u32 s[40:41], 8, v221
            v_cmp_le_i32 s[42:43], s6, v221
            v_cmp_le_i32 s[44:45], 0, v221
            v_cndmask_b32 v{192+i}, 0, v220, s[40:41]
            v_cndmask_b32 v{196+i}, 0, v220, s[42:43]
            v_cndmask_b32 v{224+i}, 0, v{222+(i&1)}, s[44:45]''')
        a('v_or_b32 v200, v224, v225\n v_or_b32 v201, v226, v227')
        a(f'''s_lshl_b32 s6, s33, 6
        s_add_u32 s7, s6, 17
        s_mul_i32 s7, s7, 3641
        s_lshr_b32 s7, s7, 16
        s_mul_i32 s7, s7, 18
        s_sub_u32 s6, s7, s6
        s_mov_b32 s7, s6''')
        for t in range(4):
            if t: a(f's_cmp_eq_u32 s6, {18-2*t}\n s_cselect_b32 s4, -16, 2\n s_add_u32 s7, s7, s4')
            a(f's_sub_u32 s4, s7, 2\n v_cmp_gt_i32 s[{40+4*t}:{41+4*t}], s7, v218\n v_cmp_gt_i32 s[{42+4*t}:{43+4*t}], s4, v218')
        a(f'''s_mov_b32 s56, 0x07060500
        s_mov_b32 s57, 0x07060501
        s_mov_b32 s58, 0x07060502
        s_mov_b32 s59, 0x07060503
        s_mov_b32 s60, 0x0c0c0400
        s_mov_b32 s61, 0x05040100
        s_mov_b32 s62, {fb(math.log2(math.e)/math.sqrt(18))}
        s_and_b32 s70, s3, 3
        s_lshr_b32 s71, s3, 2
        s_lshl_b32 s72, s70, 1
        s_add_u32 s72, s72, s71
        s_lshl_b32 s6, s72, 11
        s_add_u32 s6, s6, {QS}
        v_add_u32 v202, s6, v248
        v_add_u32 v203, {VS-QS}, v202
        s_cmp_ge_u32 s3, 4
        s_cselect_b32 s4, 1, 3
        s_lshl_b32 s4, s4, 11
        s_sub_u32 s4, {KS-QS}, s4
        v_add_u32 v204, s4, v202
        v_add_u32 v205, {VS-KS}, v204
        s_cmp_ge_u32 s3, 2
        s_cbranch_scc1 L_Bc1{sfx}
        s_lshl_b32 s4, s3, 7
        s_add_u32 s4, s4, {HS}
        v_and_b32 v204, 0x370, v248
        v_add_u32 v204, s4, v204
        s_lshl_b32 s4, s3, 9
        s_add_u32 s4, s4, {HS+2048}
        v_and_b32 v205, 0x1f0, v248
        v_add_u32 v205, s4, v205
        L_Bc1{sfx}:
        s_lshr_b32 s4, s70, 1
        s_lshl_b32 s5, s4, 10
        s_and_b32 s6, s70, 1
        s_lshl_b32 s7, s6, 3
        s_add_u32 s5, s5, s7
        s_add_u32 s5, s5, {HS}
        v_add_u32 v206, s5, v248
        s_lshl_b32 s4, s4, 6
        s_add_u32 s4, s4, s6
        s_lshl_b32 s5, s71, 5
        s_add_u32 s4, s4, s5
        s_lshl_b32 s5, s32, 7
        s_add_u32 s4, s4, s5
        s_mul_i32 s4, s4, 2304
        s_lshl_b32 s5, s33, 7
        s_add_u32 s4, s4, s5
        s_add_u32 s73, s4, 1152
        v_lshrrev_b32 v221, 3, v0
        v_and_b32 v222, 0x70, v248
        v_mov_b32 v223, 4608
        v_mad_u32_u24 v254, v221, v223, v222
        s_mul_i32 s4, s3, 2304
        s_add_u32 s4, s4, {TR}
        v_mul_u32_u24 v253, 144, v221
        v_add3_u32 v253, v253, v222, s4
        v_mul_u32_u24 v252, 144, v216
        v_lshl_add_u32 v252, v217, 3, v252
        v_add_u32 v252, s4, v252
        v_bfe_u32 v221, v0, 3, 2
        v_mul_u32_u24 v221, 1056, v221
        v_bfe_u32 v222, v0, 2, 1
        v_lshl_add_u32 v221, v222, 7, v221
        v_and_b32 v222, 3, v0
        v_lshl_add_u32 v207, v222, 3, v221
        v_lshrrev_b32 v222, 5, v0
        v_lshl_add_u32 v250, v222, 8, v207
        v_add_u32 v251, 59968, v250
        v_lshl_add_u32 v207, v222, 9, v207
        s_mul_i32 s4, s70, 1056
        v_add_u32 v208, s4, v248
        v_add_u32 v209, 59968, v208
        v_lshlrev_b32 v255, 7, v0
        s_lshl_b32 s4, s32, 3
        s_add_u32 s4, s4, s72
        s_mul_i32 s74, s4, 18432
        s_add_u32 s74, s74, {WS_O}
        s_mul_i32 s75, s4, 1152
        s_add_u32 s75, s75, {WS_FO}
        s_mul_i32 s4, s32, 9
        s_add_u32 s4, s4, s33
        s_lshl_b32 s4, s4, 14
        s_lshl_b32 s5, s72, 10
        s_add_u32 s4, s4, s5
        s_add_u32 s76, s4, {WS_XC}
        s_add_u32 s77, s76, 8192
        s_cmp_eq_u32 s33, 0
        s_cselect_b32 s4, 0, 8192
        s_sub_u32 s78, s76, s4
        s_cmp_eq_u32 s33, 8
        s_cselect_b32 s4, 0, 8192
        s_add_u32 s79, s77, s4''')
    AV, HV, XB, WV_, AQ, AK, HK, WQ = 8, 40, 44, 212, 88, 120, 152, 156
    def frags(s, mode):
        F = []
        if 'q' in mode:
            for m, acc in ((0, s.AQ), (1, s.AK)):
                for i in range(2):
                    F.append((s.WQ + 8*m + 4*i, 4+i, lambda ks, m=m: L_WQK + (2*ks+m)*BL,
                              [(acc + 8*t + 4*i, t) for t in range(4)] + ([(s.HK, 4)] if m == 1 and i == 0 else []), 0))
        if 'v' in mode:
            for i in range(2):
                F.append((s.WV_ + 4*i, 4+i, lambda ks: L_WV + ks*BL, [(s.AV + 8*t + 4*i, t) for t in range(4)] + ([(s.HV, 4)] if i == 0 else []), 1))
        return F
    def rd_w(s, f, ks):
        return [('r', f'ds_read_b64_tr_b16 {vr(f[0]+2*h,2)}, v{f[1]} offset:{f[2](ks)+256*h}', R(f[0]+2*h, 2)) for h in range(2)]
    def rd_x(s, ks):
        b = s.XB + 20*ks
        return [('r', f'ds_read_b128 {vr(b+4*t,4)}, v{2 if t < 4 else 3} offset:{((t>>1)*2*BL+512*(t&1) if t < 4 else 0)+64*ks}', R(b+4*t, 4)) for t in range(5)]
    def mm(s, f, ks):
        r = []
        for acc, t in f[3]:
            x = s.XB + 20*ks + 4*t
            A, B = (x, f[0]) if f[4] else (f[0], x)
            r.append(('m', f'{MF} {vr(acc,4)}, {vr(A,4)}, {vr(B,4)}, {vr(acc,4)}', R(x, 4) + R(f[0], 4)))
        return r
    def stagew(s, base, areg, stg):
        for t in range(4):
            for i in range(2):
                b = base + 8*t + 4*i
                s.a(f'v_cvt_pk_bf16_f32 v{b}, v{b}, v{b+1}\n v_cvt_pk_bf16_f32 v{b+1}, v{b+2}, v{b+3}')
                s.a(f'ds_write_b64 v{areg+i}, {vr(b,2)} offset:{stg + (4*(t>>1)+(t&1))*2048}')
    def stage(s, mode, barrier, extra=[]):
        F = s.frags(mode); ops = []
        def issue(pend):
            while pend and pend[0][0] == 't' and pend[0][1].startswith('s_'): ops.append(pend.pop(0)); break
            if pend: ops.append(pend.pop(0))
        def phase(ks, pend, hold):
            for i, f in enumerate(F):
                if i == hold:
                    ops.extend(pend); pend.clear()
                    if barrier == 1: ops.extend([('w0',), ('t', 's_barrier')])
                    if barrier == 2: ops.extend([('w0',), ('t', 's_cbranch_scc0 L_Bnb\n s_barrier\n L_Bnb:')])
                    ops.extend([('t', f'v_add_u32 v{r}, s38, v{r}') for r in (4, 5)])
                    for g in F[:hold]: pend.extend(s.rd_w(g, 0))
                    pend.extend(s.rd_x(0))
                for m in s.mm(f, ks):
                    ops.append(m); issue(pend)
                if hold is None or i >= hold: pend.extend(s.rd_w(f, 1-ks))
            return pend
        sal = [('t', t) for t in ['s_add_u32 s36, s36, 1', 's_cmp_eq_u32 s36, 3', 's_cselect_b32 s36, 0, s36', f's_cselect_b32 s38, s37, {SL}'] + extra]
        pend = []
        for k, r in enumerate(s.rd_x(1)): pend += [sal[k], r]
        pend += [sal[5]] + [('t', f'v_add_u32 v{r}, s38, v{r}') for r in (2, 3)]
        pend = phase(0, pend, None)
        pend = phase(1, pend, s.o.hold if barrier else 0)
        ops.extend(pend)
        if s.o.x_nomm: ops = [x for x in ops if x[0] != 'm']
        if s.o.x_nord: ops = [x for x in ops if x[0] != 'r']
        return ops
    def b_compute(s):
        a = s.a; o = s.o
        a('L_Bc:')
        if not o.doB: a('s_endpgm')
        s.prefetch()
        a(f'''v_bfe_u32 v6, v0, 1, 2
        v_and_b32 v7, 1, v0
        v_bfe_u32 v4, v0, 3, 1
        v_lshl_add_u32 v7, v4, 1, v7
        v_and_b32 v4, 0x30, v0
        v_lshl_add_u32 v7, v7, 7, v4
        s_and_b32 s6, s3, 1
        s_mul_i32 s6, s6, {BL}
        v_mul_u32_u24 v2, 1056, v6
        v_add3_u32 v2, v2, v7, s6
        v_mul_u32_u24 v3, 544, v6
        v_add_u32 v3, v3, v7
        v_add_u32 v3, {L_XH}, v3''')
        for r in list(range(8, 44)) + list(range(88, 156)): a(f'v_mov_b32 v{r}, 0')
        a(f'''s_waitcnt lgkmcnt(0)
        s_or_b32 s6, s2, s3
        s_cmp_lg_u32 s6, 0
        s_cbranch_scc1 L_Bc2
        s_memrealtime s[6:7]
        s_waitcnt lgkmcnt(0)
        s_or_b32 s6, s6, 0x80000000
        v_mov_b32 v6, s6
        v_mov_b32 v7, 0
        s_mov_b64 exec, 1
        global_store_dword v7, v6, s[28:29] sc1
        s_mov_b64 exec, -1
        L_Bc2:''')
        s.b_const('c')
        a(f'''s_lshl_b32 s6, s3, 5
        v_add_u32 v4, s6, v207
        s_xor_b32 s6, s6, 32
        v_add_u32 v5, s6, v207
        s_and_b32 s6, s3, 1
        s_mul_i32 s7, s6, 4104
        s_lshr_b32 s4, s3, 1
        s_lshl_b32 s4, s4, 10
        s_add_u32 s7, s7, s4
        s_add_u32 s7, s7, {QS}
        v_add_u32 v84, s7, v248
        v_xor_b32 v85, 8, v84
        v_add_u32 v86, {VS-QS}, v84
        v_xor_b32 v87, 8, v86
        s_mov_b32 s36, 0
        s_mov_b32 s37, {-2*SL & 0xffffffff}
        s_mov_b32 s35, 0''')
        if o.touch == 2:
            for r in ('s76', 's77'): a(f'buffer_load_dwordx4 v[236:239], v248, s[24:27], {r} offen\n buffer_load_dwordx4 v[236:239], v248, s[24:27], {r} offen offset:1024')
        if o.touch == 1:
            a('s_mov_b64 exec, 1')
            for r in ('s76', 's78', 's79', 's74', 's75'): a(f'buffer_load_dword v233, off, s[24:27], {r} sc1')
            a('buffer_load_dword v233, off, s[20:23], s73\n buffer_load_dword v233, off, s[16:19], 0\n s_mov_b64 exec, -1')
        s.ts(1)
        a('s_barrier')
        s.ts(2)
        ops = s.rd_x(0)
        for f in s.frags('qkv'): ops += s.rd_w(f, 0)
        a(resolve(ops, loop=False))
        a('.p2align 3\n L_Bl1:')
        a(resolve(s.stage('qkv', True, ['s_add_u32 s35, s35, 1', 's_cmp_lt_u32 s35, 6'])))
        a('s_cbranch_scc1 L_Bl1')
        a('buffer_load_dword v249, off, s[28:31], 0 sc1')
        a('.p2align 3\n L_Bl2:')
        a(resolve(s.stage('qk', 2, ['s_add_u32 s35, s35, 1', 's_cmp_lt_u32 s35, 9'])))
        a('s_cbranch_scc1 L_Bl2')
        s.ts(3)
        s.stagew(s.AQ, 84, 0); s.stagew(s.AK, 84, KS-QS)
        a(f'v_cvt_pk_bf16_f32 v{s.HK}, v{s.HK}, v{s.HK+1}\n v_cvt_pk_bf16_f32 v{s.HK+1}, v{s.HK+2}, v{s.HK+3}\n ds_write_b64 v206, {vr(s.HK,2)}')
        a('s_cmp_lg_u32 s3, 0\n s_cbranch_scc1 L_Bn2')
        s.nonce_wait('L_Bn', 249)
        a(f'v_mov_b32 v6, {L_NON}\n ds_write_b32 v6, v249\n L_Bn2:\n s_waitcnt vmcnt(0) lgkmcnt(0)')
    QR, KC, KP, QM, LL, TT, PP, MM, IN, VV, OF = 88, 96, 104, 112, 128, 148, 160, 180, 216, 224, 240
    def Lr(s, sl): return {0: 128, 4: 132, 1: 136, 2: 140, 3: 144}[sl]
    def qmask(s, t, hi):
        for h in range(2):
            m = f's[{40+4*t+2*h}:{41+4*t+2*h}]'; q = f'v{s.QR+2*t+h}'
            s.a(f'v_cndmask_b32 v{s.QM+4*t+2*hi+h}, {q}, 0, {m}' if hi else f'v_cndmask_b32 v{s.QM+4*t+h}, 0, {q}, {m}')
    def bfly(s, n, op, mid):
        a = s.a; b, c, d, t = [f'v{s.MM+i}' for i in range(4)]
        if n == 3:
            a(f'''v_mov_b32 {t}, {d}
            v_permlane32_swap_b32 {b}, {c}
            v_permlane32_swap_b32 {d}, {t}
            {op} {b}, {b}, {c}
            {op} {d}, {d}, {t}
            v_permlane16_swap_b32 {b}, {d}
            {op} {b}, {b}, {d}
            {mid(d, b)}
            {mid(b, b)}
            v_permlane16_swap_b32 {b}, {d}
            v_mov_b32 {c}, {b}
            v_permlane32_swap_b32 {b}, {c}''')
        else:
            a(f'''v_permlane32_swap_b32 {b}, {c}
            {op} {t}, {b}, {c}
            {op} {b}, {b}, {c}
            v_permlane16_swap_b32 {b}, {t}
            {op} {b}, {b}, {t}
            {mid(c, b)}
            {mid(b, b)}
            v_permlane32_swap_b32 {b}, {c}''')
    def softmax(s, slots):
        a = s.a; n = len(slots)
        for j, sl in enumerate(slots):
            L = s.Lr(sl); a(f'v_max3_f32 v{s.MM+j}, v{L}, v{L+1}, v{L+2}')
        for j, sl in enumerate(slots):
            L = s.Lr(sl); a(f'v_max_f32 v{s.MM+j}, v{s.MM+j}, v{L+3}')
        s.bfly(n, 'v_max_f32', lambda d, x: f'v_mul_f32 {d}, s62, {x}')
        for j, sl in list(enumerate(slots))[::-1]:
            L = s.Lr(sl)
            for i in range(4): a(f'v_fma_f32 v{L+i}, v{L+i}, s62, -v{s.MM+j}')
            for i in range(4): a(f'v_exp_f32 v{L+i}, v{L+i}')
        for j, sl in list(enumerate(slots))[::-1]:
            L = s.Lr(sl); a(f'v_add_f32 v{s.MM+j}, v{L}, v{L+1}\n v_add_f32 v{s.MM+4+j}, v{L+2}, v{L+3}')
        for j, sl in list(enumerate(slots))[::-1]:
            a(f'v_add_f32 v{s.MM+j}, v{s.MM+j}, v{s.MM+4+j}')
        s.bfly(n, 'v_add_f32', lambda d, x: f'v_rcp_f32 {d}, {x}')
        for j, sl in list(enumerate(slots))[::-1]:
            L = s.Lr(sl); P = s.PP + 4*sl
            for i in range(4): a(f'v_mul_f32 v{L+i}, v{L+i}, v{s.MM+j}')
            for h in range(2): a(f'v_cvt_pk_bf16_f32 v{P+2+h}, v{L+2*h}, v{L+2*h+1}')
            for h in range(2): a(f'v_and_b32 v{P+h}, v{P+2+h}, v{200+h}')
            for h in range(2): a(f'v_xor_b32 v{P+2+h}, v{P+2+h}, v{P+h}')
    def b_attn(s):
        a = s.a; o = s.o
        a('L_Bqk:\n s_barrier')
        s.ts(4)
        a(f'v_mov_b32 v6, {L_NON}')
        for j in range(2):
            a(f'ds_read_b128 {vr(s.QR+4*j,4)}, v202 offset:{1024*j}')
            a(f'ds_read_b128 {vr(s.KC+4*j,4)}, v202 offset:{KS-QS+1024*j}')
            a(f'ds_read_b128 {vr(s.KP+4*j,4)}, v204 offset:{1024*j}')
        a('ds_read_b32 v249, v6')
        a('s_cmp_ge_u32 s3, 4\n s_cbranch_scc1 L_Bx0')
        for f in s.frags('v'):
            for r in s.rd_w(f, 0): a(r[1])
        a('s_waitcnt lgkmcnt(4)\n s_branch L_Bx1\n L_Bx0:\n s_waitcnt lgkmcnt(0)\n L_Bx1:')
        s.qmask(0, 0); s.qmask(3, 1)
        for j, (sl, k, q) in enumerate(((0, 0, s.QM), (4, 6, s.QM+14))):
            a(f'{MF16} {vr(s.Lr(sl),4)}, {vr(s.KC+k,2)}, {vr(q,2)}, v[192:195]')
            a(f'{MF16} {vr(s.TT+4*j,4)}, {vr(s.KP+k,2)}, {vr(q,2)}, v[196:199]')
        s.qmask(0, 1); s.qmask(1, 0); s.qmask(1, 1)
        for j, sl in enumerate((0, 4)):
            L = s.Lr(sl)
            for i in range(4): a(f'v_max_f32 v{L+i}, v{L+i}, v{s.TT+4*j+i}')
            for i in range(4): a(f'v_perm_b32 v{L+i}, v{L+i}, v249, s{56+i}')
            a(f'buffer_store_dwordx4 {vr(L,4)}, v248, s[24:27], s{76+j} offen {o.xst}')
        if o.x_ack: a('s_waitcnt vmcnt(0)')
        s.ts(5)
        a('s_cmp_ge_u32 s3, 4\n s_cbranch_scc1 L_BF')
        a('s_mov_b32 s35, 0\n .p2align 3\n L_Bl3:')
        a(resolve(s.stage('v', False, ['s_add_u32 s35, s35, 1', 's_cmp_lt_u32 s35, 3']), cap=6))
        a('s_cbranch_scc1 L_Bl3')
        s.stagew(s.AV, 86, 0)
        a(f'v_cvt_pk_bf16_f32 v{s.HV}, v{s.HV}, v{s.HV+1}\n v_cvt_pk_bf16_f32 v{s.HV+1}, v{s.HV+2}, v{s.HV+3}\n ds_write_b64 v206, {vr(s.HV,2)} offset:2048')
        inl = f'buffer_load_dwordx4 {vr(s.IN,4)}, v248, s[24:27], s78 offen {o.xld}\n buffer_load_dwordx4 {vr(s.IN+4,4)}, v248, s[24:27], s79 offen {o.xld}'
        a('s_waitcnt lgkmcnt(0)\n s_barrier\n' + inl)
        a('L_BF:')
        s.ts(6)
        s.qmask(2, 0); s.qmask(2, 1); s.qmask(3, 0)
        for sl in (1, 2, 3):
            a(f'{MF} {vr(s.Lr(sl),4)}, {vr(s.KC+2*sl-2,4)}, {vr(s.QM+4*sl-2,4)}, v[192:195]')
            a(f'{MF} {vr(s.TT+4*sl-4,4)}, {vr(s.KP+2*sl-2,4)}, {vr(s.QM+4*sl-2,4)}, v[196:199]')
        inl = f'buffer_load_dwordx4 {vr(s.IN,4)}, v248, s[24:27], s78 offen {o.xld}\n buffer_load_dwordx4 {vr(s.IN+4,4)}, v248, s[24:27], s79 offen {o.xld}'
        for sl in (1, 2, 3):
            for i in range(4): a(f'v_max_f32 v{s.Lr(sl)+i}, v{s.Lr(sl)+i}, v{s.TT+4*sl-4+i}')
        s.softmax((1, 2, 3))
        s.ts(7)
        a('s_cmp_lt_u32 s3, 4\n s_cbranch_scc1 L_Bw\n' + inl + '\n s_barrier\n L_Bw:')
        s.ts(8)
        for t in range(4):
            a(f'ds_read_b64 {vr(s.VV+4*t,2)}, v203 offset:{(t>>1)*1024+(t&1)*8}')
            a(f'ds_read_b64 {vr(s.VV+4*t+2,2)}, v205 offset:{(t>>1)*1024+(t&1)*8}')
        I = s.IN; T = s.TT
        a(f'''s_movk_i32 s5, {SPIN}
        L_By:
        s_waitcnt vmcnt(0)
        v_perm_b32 v{T}, v{I+1}, v{I}, s60
        v_perm_b32 v{T+1}, v{I+3}, v{I+2}, s60
        v_perm_b32 v{T+2}, v{I+5}, v{I+4}, s60
        v_perm_b32 v{T+3}, v{I+7}, v{I+6}, s60
        v_perm_b32 v{T}, v{T+1}, v{T}, s61
        v_perm_b32 v{T+2}, v{T+3}, v{T+2}, s61
        v_cmp_ne_u32 vcc, v{T}, v249
        v_cmp_ne_u32 s[6:7], v{T+2}, v249
        s_or_b64 vcc, vcc, s[6:7]
        s_cbranch_scc0 L_Byd
        {inl}
        s_sub_u32 s5, s5, 1
        s_cbranch_scc0 L_By
        s_waitcnt vmcnt(0)
        L_Byd:''')
        s.ts(9)
        if o.x_cnt: a(f's_sub_u32 s81, {SPIN}, s5\n s_mul_i32 s81, s81, 100\n s_add_u32 s81, s81, s80')
        for i in range(8): a(f'v_add_f32 v{128+i}, v{128+i}, v{I+i}')
        a('s_waitcnt lgkmcnt(0)')
        O = 88
        def pv(t, hi): a(f'{MF} {vr(O+8*t+4*hi,4)}, {vr(s.VV+4*t,4)}, {vr(s.PP+4*(t+hi),4)}, 0')
        for t, hi in ((0, 1), (1, 0), (1, 1), (2, 0), (2, 1), (3, 0)): pv(t, hi)
        s.softmax((0, 4))
        pv(3, 1); pv(0, 0)
        for t in (1, 2, 3, 0):
            for h in range(2):
                a(f'v_cvt_pk_bf16_f32 v{O+8*t+2*h}, v{O+8*t+2*h}, v{O+8*t+2*h+1}')
                a(f'v_cvt_pk_bf16_f32 v{O+8*t+4+2*h}, v{O+8*t+4+2*h}, v{O+8*t+4+2*h+1}')
                a(f'v_cndmask_b32 v{s.OF+2*t+h}, v{O+8*t+4+2*h}, v{O+8*t+2*h}, s[{40+4*t+2*h}:{41+4*t+2*h}]')
            if t == 3: a(f's_lshl_b32 s4, s33, 11\n s_add_u32 s4, s4, s74\n buffer_store_dwordx4 {vr(s.OF+4,4)}, v248, s[24:27], s4 offen offset:1024 sc1')
        a(f'buffer_store_dwordx4 {vr(s.OF,4)}, v248, s[24:27], s4 offen sc1')
    def b2(s):
        a = s.a
        ACC = 72; W = 88
        def rd(pos):
            r = []
            for c in range(4):
                for h in range(2):
                    off = (pos//6)*SL + (pos % 6)*BL + 32*c + 512*h
                    d = W + 16*(pos % 9) + 4*c + 2*h
                    r.append(('r', f'ds_read_b64_tr_b16 {vr(d,2)}, v{250 if off < 59968 else 251} offset:{off if off < 59968 else off-59968}', R(d, 2)))
            return r
        def mm(pos, pend):
            B = s.OF + 4*pos if pos < 2 else 8 + 4*(pos-2)
            r = []
            for c in range(4):
                A = W + 16*(pos % 9) + 4*c
                r.append(('m', f'{MF} {vr(ACC+4*c,4)}, {vr(A,4)}, {vr(B,4)}, {vr(ACC+4*c,4) if pos else 0}', R(A, 4)))
                for _ in range(2):
                    if pend: r.append(pend.pop(0))
            return r
        s.ts(10)
        a('s_cmp_lt_u32 s3, 4\n s_cbranch_scc1 L_Bw2')
        for i in range(18):
            off = (i//6)*SL + (i % 6)*BL
            a(f'ds_write_b128 v{208 if off < 59968 else 209}, {vr(8+4*i,4)} offset:{off if off < 59968 else off-59968}')
        a(f'L_Bw2:\n s_lshl_b32 s4, s33, 7\n s_add_u32 s4, s4, s75\n s_waitcnt vmcnt(0)\n s_mov_b64 exec, 1\n buffer_store_dword v249, off, s[24:27], s4 sc1\n s_mov_b64 exec, -1')
        s.ts(11)
        a('s_waitcnt lgkmcnt(0)\n s_barrier')
        ops = []
        for p in range(5): ops += rd(p)
        ops.append(('t', 's_mov_b64 exec, 0x1ff\n buffer_load_dword v232, v255, s[24:27], s75 offen sc1\n s_mov_b64 exec, -1'))
        for p in range(5, 9): ops += rd(p)
        ops += mm(0, []); ops += mm(1, rd(9)); ops += rd(10); ops.append(('t', s.tst(12)))
        ops.append(('t', f'''s_movk_i32 s5, {SPIN}
        s_mov_b64 exec, 0x1ff
        L_Bp:
        s_waitcnt vmcnt(0)
        v_cmp_ne_u32 vcc, v232, v249
        s_cbranch_vccz L_Bpd
        buffer_load_dword v232, v255, s[24:27], s75 offen sc1
        s_sub_u32 s5, s5, 1
        s_cbranch_scc0 L_Bp
        s_waitcnt vmcnt(0)
        L_Bpd:
        s_mov_b64 exec, -1'''))
        ops.append(('t', s.tst(13)))
        t = f's_mov_b32 s4, s33\n'
        for i in range(8):
            t += f's_add_u32 s4, s4, 1\n s_cmp_eq_u32 s4, 9\n s_cselect_b32 s4, 0, s4\n s_lshl_b32 s5, s4, 11\n s_add_u32 s5, s5, s74\n'
            t += f'buffer_load_dwordx4 {vr(8+8*i,4)}, v248, s[24:27], s5 offen sc1\n buffer_load_dwordx4 {vr(12+8*i,4)}, v248, s[24:27], s5 offen offset:1024 sc1\n'
        ops.append(('t', t))
        pend = []
        for p in range(2, 18):
            ops.append(('t', f's_waitcnt vmcnt({17-p})'))
            ops += mm(p, pend)
            if p + 9 < 18: pend = rd(p+9)
        a(resolve(ops, loop=False))
        s.ts(14)
        for c in range(4):
            for h in range(2): a(f'v_cvt_pk_bf16_f32 v{ACC+4*c+h}, v{ACC+4*c+2*h}, v{ACC+4*c+2*h+1}')
            a(f'ds_write_b64 v252, {vr(ACC+4*c,2)} offset:{32*c}')
        a(f'''s_waitcnt lgkmcnt(0)
        ds_read_b128 v[8:11], v253
        ds_read_b128 v[12:15], v253 offset:{8*144}
        s_add_u32 s4, s73, {16*2304}
        s_waitcnt lgkmcnt(1)
        buffer_store_dwordx4 v[8:11], v254, s[20:23], s73 offen
        s_waitcnt lgkmcnt(0)
        buffer_store_dwordx4 v[12:15], v254, s[20:23], s4 offen''')
        s.ts_dump(16)
        if s.o.x_delay:
            a(f'''s_or_b32 s4, s2, s3
            s_cmp_lg_u32 s4, 0
            s_cbranch_scc1 L_end
            v_readfirstlane_b32 s5, v249
            s_movk_i32 s36, 20000
            L_dly:
            s_memrealtime s[6:7]
            s_waitcnt lgkmcnt(0)
            s_or_b32 s6, s6, 0x80000000
            s_sub_u32 s6, s6, s5
            s_cmp_ge_u32 s6, {s.o.x_delay}
            s_cbranch_scc1 L_end
            s_sub_u32 s36, s36, 1
            s_cbranch_scc0 L_dly''')
        a('s_endpgm')
    def a_part(s):
        a = s.a; o = s.o
        a('L_A:')
        if not o.doA: a('s_endpgm'); return
        import genA
        genA.a_part(s)
    def build(s):
        s.entry(); s.b_loader(); s.b_compute(); s.b_attn(); s.b2(); s.a_part()
        s.a('L_end:\n L_last:\n s_endpgm')
        return single_file(haz.fix(s.a.text()), NWG, 512, LDS_BYTES)
def gen(**kw):
    o = Opt()
    for k, v in kw.items(): setattr(o, k, v)
    return G(o).build()
if __name__ == '__main__':
    kw = {}
    for x in sys.argv[2:]:
        k, v = x.split('='); kw[k] = eval(v)
    open(sys.argv[1], 'w').write(gen(**kw))
```

```python
import sys, struct, math
sys.path.insert(0, 'exp')
from asmlib import *
import haz
def fb(x): return hex(struct.unpack('<I', struct.pack('<f', x))[0])
WS_U, WS_O, WS_XC, WS_FO, WS_FU, WS_TS = 0, 0x400000, 0x800000, 0xC00000, 0xC40000, 0xD00000
SL = 44416; L_X = 0; L_WV = 16896; L_XH = 25344; L_WQK = 27520; BL = 4224
QS = L_WQK; KS = SL + L_WQK; VS = 2*SL + L_WQK
HS = 3*SL; TR = HS + 4096; L_NON = TR + 8*2304; LDS_BYTES = L_NON + 128
NWG = 240
SPIN = 30000
class Opt:
    prof = False; x_dbase = 0; osf = ''; x_delay = 0; hold = 1; x_ack = 0; xst = 'sc1'; xld = 'sc1'; x_late = 0; x_nowo = False; bmap = 1; x_cnt = False; rotg = 1; touch = 0; cpos = 4; x_nold = False; x_nomm = False; x_nord = False; clk = 's_memrealtime'; rotc = 1; rota = 1; ldf = ''; doA = True; doB = True; pre = True
MF = 'v_mfma_f32_16x16x32_bf16'
MF16 = 'v_mfma_f32_16x16x16_bf16'

def resolve(ops, loop=True, cap=5):
    out = []
    seq = 0; last = {}; done = -1
    for it in range(2 if loop else 1):
        out = []
        for o in ops:
            if o[0] == 'r':
                for r in o[2]: last[r] = seq
                seq += 1; out.append(o[1])
            elif o[0] == 'm':
                nd = max([last.get(r, -1) for r in o[2]])
                if nd > done:
                    n = min(seq - 1 - nd, cap)
                    out.append(f's_waitcnt lgkmcnt({n})'); done = seq - 1 - n
                out.append(o[1])
            elif o[0] == 'w0':
                out.append('s_waitcnt lgkmcnt(0)'); done = seq - 1
            else: out.append(o[1])
    return '\n'.join(out)
def R(b, n): return list(range(b, b+n))

class G:
    def __init__(s, o):
        s.o = o; s.a = Asm(); s.nts = 0
    def ts(s, i):
        if s.o.prof: s.a(s.tst(i))
    def tst(s, i):
        return f'{s.o.clk} s[98:99]\n s_waitcnt lgkmcnt(0)\n s_mov_b32 s{80+i}, s98' if s.o.prof else ''
    def ts_dump(s, n):
        if not s.o.prof: return
        a = s.a
        a('s_waitcnt vmcnt(0)')
        s.ts(n-1)
        a(f's_lshl_b32 s4, s2, 3\n s_add_u32 s4, s4, s3\n s_lshl_b32 s4, s4, 6\n s_add_u32 s4, s4, {WS_TS}\n s_mov_b64 exec, 1\n v_mov_b32 v1, 0')
        for i in range(n):
            a(f'v_mov_b32 v2, s{80+i}\n buffer_store_dword v2, v1, s[24:27], s4 offen offset:{4*i}')
    def dma(s, ldsreg, ldsoff, kreg, koff, voff, srd):
        s.a(f's_add_u32 m0, {ldsreg}, {ldsoff}\n s_add_u32 s7, {kreg}, {koff}')
        if not s.o.x_nold: s.a(f'buffer_load_dwordx4 {voff}, {srd}, s7 offen {s.o.ldf} lds')
    def srds(s):
        s.a('''s_mov_b32 s14, 1990656
        s_mov_b32 s15, s11
        s_mov_b32 s18, 663552
        s_mov_b32 s19, s11
        s_mov_b32 s22, 4718592
        s_mov_b32 s23, s11
        s_mov_b32 s26, 0x1000000
        s_mov_b32 s27, s11
        s_movk_i32 s30, 256
        s_mov_b32 s31, s11''')
    def prefetch(s, r=232):
        if not s.o.pre: return
        s.nts += 1; L = f'L_pc{s.nts}'
        s.a(f'''s_getpc_b64 s[36:37]
        {L}:
        s_sub_u32 s36, s36, {L}-L_top
        s_subb_u32 s37, s37, 0
        s_lshl_b32 s38, s3, 13
        v_lshl_add_u32 v{r}, v0, 7, s38
        v_min_u32 v{r}, L_last-L_top, v{r}
        global_load_dword v{r+1}, v{r}, s[36:37]''')
    def nonce_wait(s, lab, v):
        s.a(f'''s_movk_i32 s5, {SPIN}
        {lab}:
        s_waitcnt vmcnt(0)
        v_cmp_ne_u32 vcc, 0, v{v}
        s_cbranch_vccnz {lab}d
        buffer_load_dword v{v}, off, s[28:31], 0 sc1
        s_sub_u32 s5, s5, 1
        s_cbranch_scc0 {lab}
        s_waitcnt vmcnt(0)
        {lab}d:''')
    def entry(s):
        a = s.a
        a(f'''L_top:
        s_cmpk_ge_u32 s2, {NWG}
        s_cbranch_scc1 L_end
        s_load_dwordx2 s[8:9], s[0:1], 40
        s_load_dwordx2 s[12:13], s[0:1], 48
        s_load_dwordx2 s[4:5], s[0:1], 0
        s_load_dwordx2 s[16:17], s[0:1], 56
        s_load_dwordx2 s[20:21], s[0:1], 64
        s_load_dwordx2 s[28:29], s[0:1], 72
        s_load_dwordx2 s[24:25], s[0:1], 80''')
        if s.o.prof: a(f'{s.o.clk} s[80:81]')
        if s.o.x_dbase: a('s_memrealtime s[96:97]')
        a(f'''v_lshrrev_b32 v1, 6, v0
        v_and_b32 v0, 63, v0
        v_readfirstlane_b32 s3, v1
        s_mov_b32 s10, 2359296
        s_mov_b32 s11, 0x20000''')
        s.srds()
        a(f'''s_and_b32 s32, s2, 7
        s_lshl_b32 s32, s32, 1
        s_lshr_b32 s33, s2, 3
        s_cmp_ge_u32 s33, 18
        s_cbranch_scc1 L_A
        s_cmp_ge_u32 s33, 9
        s_cselect_b32 s6, 9, 0
        s_addc_u32 s32, s32, 0
        s_sub_u32 s33, s33, s6''')
        if s.o.bmap > 1:
            m = s.o.bmap; lg = m.bit_length() - 1
            a(f'''s_and_b32 s6, s2, {m-1}
            s_mul_i32 s6, s6, 18
            s_lshr_b32 s7, s2, 3
            s_add_u32 s6, s6, s7
            s_lshr_b32 s33, s6, {lg+1}
            s_and_b32 s6, s6, {2*m-1}
            s_and_b32 s7, s2, {7 & ~(m-1)}
            s_lshl_b32 s7, s7, 1
            s_add_u32 s32, s7, s6''')
        a(f'''s_cmp_lt_u32 s3, 4
        s_cbranch_scc1 L_Bc''')
        if not s.o.doB: a('s_endpgm')
    def b_loader(s):
        a = s.a; o = s.o
        a(f'''s_sub_u32 s39, s3, 4
        v_and_b32 v1, 7, v0
        v_lshlrev_b32 v1, 4, v1
        v_bfe_u32 v2, v0, 3, 1
        v_bfe_u32 v3, v0, 4, 1
        v_lshrrev_b32 v4, 5, v0
        s_lshl_b32 s6, s39, 1
        v_lshl_add_u32 v5, v3, 3, v2
        v_add_u32 v5, s6, v5
        v_lshl_add_u32 v83, v4, 4, v5
        v_mul_u32_u24 v80, 2304, v83
        v_add_u32 v80, v80, v1
        v_lshl_add_u32 v6, v3, 2, v2
        v_lshl_add_u32 v6, v4, 4, v6
        s_and_b32 s34, s39, 1
        s_lshl_b32 s34, s34, 1
        s_lshr_b32 s35, s39, 1
        s_lshl_b32 s35, s35, 3
        s_add_u32 s34, s34, s35
        v_add_u32 v6, s34, v6
        v_mul_u32_u24 v82, 3456, v6
        s_lshl_b32 s35, s33, 7
        v_add3_u32 v82, v82, v1, s35
        v_add_u32 v6, s6, v2
        v_lshl_add_u32 v6, v6, 1, v3
        s_lshl_b32 s34, s32, 7
        s_sub_u32 s34, s34, 16
        s_max_i32 s34, s34, 0
        v_add_u32 v6, s34, v6
        v_mul_u32_u24 v81, 1152, v6
        v_add_u32 v81, v81, v1
        s_mul_i32 s63, s32, {128*1152}
        s_mul_i32 s34, s32, {o.rotc}
        s_mul_i32 s6, s33, {o.rotg}
        s_add_u32 s34, s34, s6
        s_mul_i32 s6, s34, 57
        s_lshr_b32 s6, s6, 9
        s_mul_i32 s6, s6, 9
        s_sub_u32 s34, s34, s6
        s_mul_i32 s64, s39, 1056
        s_mul_i32 s65, s39, 544
        s_mov_b32 s66, 0
        v_mov_b32 v248, 0
        v_mov_b32 v254, 0
        v_mov_b32 v255, 0
        s_waitcnt lgkmcnt(0)''')
        a(f'''L_ld:
        s_lshl_b32 s67, s34, 7
        s_add_u32 s68, s67, s63
        s_mul_i32 s69, s34, {64*3456}''')
        for cw in range(4):
            s.dma('s64', L_X + cw*BL, 's68', (64*(cw >> 1) + (cw & 1))*1152, 'v80', 's[8:11]')
        a(f's_add_u32 m0, s65, {L_XH}\n s_mov_b32 exec_hi, 0')
        a(f'buffer_load_dwordx4 v81, s[8:11], s67 offen {o.ldf} lds\n s_mov_b32 exec_hi, -1')
        for ks in range(2):
            for m in range(2):
                s.dma('s64', L_WQK + (2*ks+m)*BL, 's69', ks*32*3456 + m*1152, 'v82', 's[12:15]')
        a('s_cmp_ge_u32 s66, 6\n s_cbranch_scc1 L_ld1')
        for ks in range(2):
            s.dma('s64', L_WV + ks*BL, 's69', ks*32*3456 + 2304, 'v82', 's[12:15]')
        a(f'''L_ld1:
        s_add_u32 s34, s34, 1
        s_cmp_eq_u32 s34, 9
        s_cselect_b32 s34, 0, s34
        s_add_u32 s64, s64, {SL}
        s_add_u32 s65, s65, {SL}
        s_cmp_ge_u32 s64, {3*SL}
        s_cselect_b32 s6, {3*SL}, 0
        s_sub_u32 s64, s64, s6
        s_sub_u32 s65, s65, s6
        s_add_u32 s66, s66, 1
        s_cmp_lt_u32 s66, 2
        s_cbranch_scc1 L_ld
        s_cmp_lg_u32 s66, {o.cpos}
        s_cbranch_scc1 L_ld2''')
        s.ts(1)
        s.b_const('h')
        s.ts(2)
        a(f'''L_ld2:
        s_waitcnt vmcnt(11)
        s_cmp_lt_u32 s66, 7
        s_cbranch_scc1 L_ld3
        s_waitcnt vmcnt(9)
        L_ld3:
        s_barrier
        s_cmp_lt_u32 s66, 9
        s_cbranch_scc1 L_ld''')
        a('s_add_u32 s34, s34, 6')
        for i in range(3):
            a(f's_cmp_ge_u32 s34, 9\n s_cselect_b32 s6, 9, 0\n s_sub_u32 s34, s34, s6\n s_mul_i32 s69, s34, {64*3456}\n s_add_u32 s34, s34, 1')
            for ks in range(2):
                s.dma('s64', i*SL + L_WV + ks*BL, 's69', ks*32*3456 + 2304, 'v82', 's[12:15]')
        a(f'''v_mul_u32_u24 v83, 1152, v83
        v_add3_u32 v83, v83, v1, s35
        v_add_u32 v84, {32*1152}, v83
        s_mul_i32 s69, s33, {64*1152}
        s_waitcnt vmcnt(6)
        s_barrier''')
        for i in range(0 if o.x_nowo else 9):
            a(f'buffer_load_dwordx4 {vr(8+8*i,4)}, v83, s[16:19], s69 offen {o.ldf}\n buffer_load_dwordx4 {vr(12+8*i,4)}, v84, s[16:19], s69 offen {o.ldf}')
            if i < 8: a(f's_add_u32 s69, s69, {64*1152}\n s_cmp_eq_u32 s69, s18\n s_cselect_b32 s69, 0, s69')
        a('s_waitcnt vmcnt(0)' if o.x_nowo else 's_waitcnt vmcnt(18)')
        s.ts(3)
        a('s_branch L_Bqk')
    def b_const(s, sfx):
        a = s.a
        a(f'''v_and_b32 v216, 15, v0
        v_lshrrev_b32 v217, 4, v0
        v_lshlrev_b32 v218, 2, v217
        v_sub_u32 v219, v216, v218
        v_lshlrev_b32 v248, 4, v0
        s_lshr_b32 s6, s3, 1
        s_or_b32 s6, s6, s32
        s_cmp_eq_u32 s6, 0
        s_cselect_b32 s6, -16, -8
        v_mov_b32 v220, {fb(-1e30)}
        v_mov_b32 v222, 0xffff
        v_mov_b32 v223, 0xffff0000''')
        for i in range(4):
            a(f'''v_subrev_u32 v221, {i}, v219
            v_cmp_le_u32 s[40:41], 8, v221
            v_cmp_le_i32 s[42:43], s6, v221
            v_cmp_le_i32 s[44:45], 0, v221
            v_cndmask_b32 v{192+i}, 0, v220, s[40:41]
            v_cndmask_b32 v{196+i}, 0, v220, s[42:43]
            v_cndmask_b32 v{224+i}, 0, v{222+(i&1)}, s[44:45]''')
        a('v_or_b32 v200, v224, v225\n v_or_b32 v201, v226, v227')
        a(f'''s_lshl_b32 s6, s33, 6
        s_add_u32 s7, s6, 17
        s_mul_i32 s7, s7, 3641
        s_lshr_b32 s7, s7, 16
        s_mul_i32 s7, s7, 18
        s_sub_u32 s6, s7, s6
        s_mov_b32 s7, s6''')
        for t in range(4):
            if t: a(f's_cmp_eq_u32 s6, {18-2*t}\n s_cselect_b32 s4, -16, 2\n s_add_u32 s7, s7, s4')
            a(f's_sub_u32 s4, s7, 2\n v_cmp_gt_i32 s[{40+4*t}:{41+4*t}], s7, v218\n v_cmp_gt_i32 s[{42+4*t}:{43+4*t}], s4, v218')
        a(f'''s_mov_b32 s56, 0x07060500
        s_mov_b32 s57, 0x07060501
        s_mov_b32 s58, 0x07060502
        s_mov_b32 s59, 0x07060503
        s_mov_b32 s60, 0x0c0c0400
        s_mov_b32 s61, 0x05040100
        s_mov_b32 s62, {fb(math.log2(math.e)/math.sqrt(18))}
        s_and_b32 s70, s3, 3
        s_lshr_b32 s71, s3, 2
        s_lshl_b32 s72, s70, 1
        s_add_u32 s72, s72, s71
        s_lshl_b32 s6, s72, 11
        s_add_u32 s6, s6, {QS}
        v_add_u32 v202, s6, v248
        v_add_u32 v203, {VS-QS}, v202
        s_cmp_ge_u32 s3, 4
        s_cselect_b32 s4, 1, 3
        s_lshl_b32 s4, s4, 11
        s_sub_u32 s4, {KS-QS}, s4
        v_add_u32 v204, s4, v202
        v_add_u32 v205, {VS-KS}, v204
        s_cmp_ge_u32 s3, 2
        s_cbranch_scc1 L_Bc1{sfx}
        s_lshl_b32 s4, s3, 7
        s_add_u32 s4, s4, {HS}
        v_and_b32 v204, 0x370, v248
        v_add_u32 v204, s4, v204
        s_lshl_b32 s4, s3, 9
        s_add_u32 s4, s4, {HS+2048}
        v_and_b32 v205, 0x1f0, v248
        v_add_u32 v205, s4, v205
        L_Bc1{sfx}:
        s_lshr_b32 s4, s70, 1
        s_lshl_b32 s5, s4, 10
        s_and_b32 s6, s70, 1
        s_lshl_b32 s7, s6, 3
        s_add_u32 s5, s5, s7
        s_add_u32 s5, s5, {HS}
        v_add_u32 v206, s5, v248
        s_lshl_b32 s4, s4, 6
        s_add_u32 s4, s4, s6
        s_lshl_b32 s5, s71, 5
        s_add_u32 s4, s4, s5
        s_lshl_b32 s5, s32, 7
        s_add_u32 s4, s4, s5
        s_mul_i32 s4, s4, 2304
        s_lshl_b32 s5, s33, 7
        s_add_u32 s4, s4, s5
        s_add_u32 s73, s4, 1152
        v_lshrrev_b32 v221, 3, v0
        v_and_b32 v222, 0x70, v248
        v_mov_b32 v223, 4608
        v_mad_u32_u24 v254, v221, v223, v222
        s_mul_i32 s4, s3, 2304
        s_add_u32 s4, s4, {TR}
        v_mul_u32_u24 v253, 144, v221
        v_add3_u32 v253, v253, v222, s4
        v_mul_u32_u24 v252, 144, v216
        v_lshl_add_u32 v252, v217, 3, v252
        v_add_u32 v252, s4, v252
        v_bfe_u32 v221, v0, 3, 2
        v_mul_u32_u24 v221, 1056, v221
        v_bfe_u32 v222, v0, 2, 1
        v_lshl_add_u32 v221, v222, 7, v221
        v_and_b32 v222, 3, v0
        v_lshl_add_u32 v207, v222, 3, v221
        v_lshrrev_b32 v222, 5, v0
        v_lshl_add_u32 v250, v222, 8, v207
        v_add_u32 v251, 59968, v250
        v_lshl_add_u32 v207, v222, 9, v207
        s_mul_i32 s4, s70, 1056
        v_add_u32 v208, s4, v248
        v_add_u32 v209, 59968, v208
        v_lshlrev_b32 v255, 7, v0
        s_lshl_b32 s4, s32, 3
        s_add_u32 s4, s4, s72
        s_mul_i32 s74, s4, 18432
        s_add_u32 s74, s74, {WS_O}
        s_mul_i32 s75, s4, 1152
        s_add_u32 s75, s75, {WS_FO}
        s_mul_i32 s4, s32, 9
        s_add_u32 s4, s4, s33
        s_lshl_b32 s4, s4, 14
        s_lshl_b32 s5, s72, 10
        s_add_u32 s4, s4, s5
        s_add_u32 s76, s4, {WS_XC}
        s_add_u32 s77, s76, 8192
        s_cmp_eq_u32 s33, 0
        s_cselect_b32 s4, 0, 8192
        s_sub_u32 s78, s76, s4
        s_cmp_eq_u32 s33, 8
        s_cselect_b32 s4, 0, 8192
        s_add_u32 s79, s77, s4''')
    AV, HV, XB, WV_, AQ, AK, HK, WQ = 8, 40, 44, 212, 88, 120, 152, 156
    def frags(s, mode):
        F = []
        if 'q' in mode:
            for m, acc in ((0, s.AQ), (1, s.AK)):
                for i in range(2):
                    F.append((s.WQ + 8*m + 4*i, 4+i, lambda ks, m=m: L_WQK + (2*ks+m)*BL,
                              [(acc + 8*t + 4*i, t) for t in range(4)] + ([(s.HK, 4)] if m == 1 and i == 0 else []), 0))
        if 'v' in mode:
            for i in range(2):
                F.append((s.WV_ + 4*i, 4+i, lambda ks: L_WV + ks*BL, [(s.AV + 8*t + 4*i, t) for t in range(4)] + ([(s.HV, 4)] if i == 0 else []), 1))
        return F
    def rd_w(s, f, ks):
        return [('r', f'ds_read_b64_tr_b16 {vr(f[0]+2*h,2)}, v{f[1]} offset:{f[2](ks)+256*h}', R(f[0]+2*h, 2)) for h in range(2)]
    def rd_x(s, ks):
        b = s.XB + 20*ks
        return [('r', f'ds_read_b128 {vr(b+4*t,4)}, v{2 if t < 4 else 3} offset:{((t>>1)*2*BL+512*(t&1) if t < 4 else 0)+64*ks}', R(b+4*t, 4)) for t in range(5)]
    def mm(s, f, ks):
        r = []
        for acc, t in f[3]:
            x = s.XB + 20*ks + 4*t
            A, B = (x, f[0]) if f[4] else (f[0], x)
            r.append(('m', f'{MF} {vr(acc,4)}, {vr(A,4)}, {vr(B,4)}, {vr(acc,4)}', R(x, 4) + R(f[0], 4)))
        return r
    def stagew(s, base, areg, stg):
        for t in range(4):
            for i in range(2):
                b = base + 8*t + 4*i
                s.a(f'v_cvt_pk_bf16_f32 v{b}, v{b}, v{b+1}\n v_cvt_pk_bf16_f32 v{b+1}, v{b+2}, v{b+3}')
                s.a(f'ds_write_b64 v{areg+i}, {vr(b,2)} offset:{stg + (4*(t>>1)+(t&1))*2048}')
    def stage(s, mode, barrier, extra=[]):
        F = s.frags(mode); ops = []
        def issue(pend):
            while pend and pend[0][0] == 't' and pend[0][1].startswith('s_'): ops.append(pend.pop(0)); break
            if pend: ops.append(pend.pop(0))
        def phase(ks, pend, hold):
            for i, f in enumerate(F):
                if i == hold:
                    ops.extend(pend); pend.clear()
                    if barrier == 1: ops.extend([('w0',), ('t', 's_barrier')])
                    if barrier == 2: ops.extend([('w0',), ('t', 's_cbranch_scc0 L_Bnb\n s_barrier\n L_Bnb:')])
                    ops.extend([('t', f'v_add_u32 v{r}, s38, v{r}') for r in (4, 5)])
                    for g in F[:hold]: pend.extend(s.rd_w(g, 0))
                    pend.extend(s.rd_x(0))
                for m in s.mm(f, ks):
                    ops.append(m); issue(pend)
                if hold is None or i >= hold: pend.extend(s.rd_w(f, 1-ks))
            return pend
        sal = [('t', t) for t in ['s_add_u32 s36, s36, 1', 's_cmp_eq_u32 s36, 3', 's_cselect_b32 s36, 0, s36', f's_cselect_b32 s38, s37, {SL}'] + extra]
        pend = []
        for k, r in enumerate(s.rd_x(1)): pend += [sal[k], r]
        pend += [sal[5]] + [('t', f'v_add_u32 v{r}, s38, v{r}') for r in (2, 3)]
        pend = phase(0, pend, None)
        pend = phase(1, pend, s.o.hold if barrier else 0)
        ops.extend(pend)
        if s.o.x_nomm: ops = [x for x in ops if x[0] != 'm']
        if s.o.x_nord: ops = [x for x in ops if x[0] != 'r']
        return ops
    def b_compute(s):
        a = s.a; o = s.o
        a('L_Bc:')
        if not o.doB: a('s_endpgm')
        s.prefetch()
        a(f'''v_bfe_u32 v6, v0, 1, 2
        v_and_b32 v7, 1, v0
        v_bfe_u32 v4, v0, 3, 1
        v_lshl_add_u32 v7, v4, 1, v7
        v_and_b32 v4, 0x30, v0
        v_lshl_add_u32 v7, v7, 7, v4
        s_and_b32 s6, s3, 1
        s_mul_i32 s6, s6, {BL}
        v_mul_u32_u24 v2, 1056, v6
        v_add3_u32 v2, v2, v7, s6
        v_mul_u32_u24 v3, 544, v6
        v_add_u32 v3, v3, v7
        v_add_u32 v3, {L_XH}, v3''')
        for r in list(range(8, 44)) + list(range(88, 156)): a(f'v_mov_b32 v{r}, 0')
        a(f'''s_waitcnt lgkmcnt(0)
        s_or_b32 s6, s2, s3
        s_cmp_lg_u32 s6, 0
        s_cbranch_scc1 L_Bc2
        s_memrealtime s[6:7]
        s_waitcnt lgkmcnt(0)
        s_or_b32 s6, s6, 0x80000000
        v_mov_b32 v6, s6
        v_mov_b32 v7, 0
        s_mov_b64 exec, 1
        global_store_dword v7, v6, s[28:29] sc1
        s_mov_b64 exec, -1
        L_Bc2:''')
        s.b_const('c')
        a(f'''s_lshl_b32 s6, s3, 5
        v_add_u32 v4, s6, v207
        s_xor_b32 s6, s6, 32
        v_add_u32 v5, s6, v207
        s_and_b32 s6, s3, 1
        s_mul_i32 s7, s6, 4104
        s_lshr_b32 s4, s3, 1
        s_lshl_b32 s4, s4, 10
        s_add_u32 s7, s7, s4
        s_add_u32 s7, s7, {QS}
        v_add_u32 v84, s7, v248
        v_xor_b32 v85, 8, v84
        v_add_u32 v86, {VS-QS}, v84
        v_xor_b32 v87, 8, v86
        s_mov_b32 s36, 0
        s_mov_b32 s37, {-2*SL & 0xffffffff}
        s_mov_b32 s35, 0''')
        if o.touch == 2:
            for r in ('s76', 's77'): a(f'buffer_load_dwordx4 v[236:239], v248, s[24:27], {r} offen\n buffer_load_dwordx4 v[236:239], v248, s[24:27], {r} offen offset:1024')
        if o.touch == 1:
            a('s_mov_b64 exec, 1')
            for r in ('s76', 's78', 's79', 's74', 's75'): a(f'buffer_load_dword v233, off, s[24:27], {r} sc1')
            a('buffer_load_dword v233, off, s[20:23], s73\n buffer_load_dword v233, off, s[16:19], 0\n s_mov_b64 exec, -1')
        s.ts(1)
        a('s_barrier')
        s.ts(2)
        ops = s.rd_x(0)
        for f in s.frags('qkv'): ops += s.rd_w(f, 0)
        a(resolve(ops, loop=False))
        a('.p2align 3\n L_Bl1:')
        a(resolve(s.stage('qkv', True, ['s_add_u32 s35, s35, 1', 's_cmp_lt_u32 s35, 6'])))
        a('s_cbranch_scc1 L_Bl1')
        a('buffer_load_dword v249, off, s[28:31], 0 sc1')
        a('.p2align 3\n L_Bl2:')
        a(resolve(s.stage('qk', 2, ['s_add_u32 s35, s35, 1', 's_cmp_lt_u32 s35, 9'])))
        a('s_cbranch_scc1 L_Bl2')
        s.ts(3)
        s.stagew(s.AQ, 84, 0); s.stagew(s.AK, 84, KS-QS)
        a(f'v_cvt_pk_bf16_f32 v{s.HK}, v{s.HK}, v{s.HK+1}\n v_cvt_pk_bf16_f32 v{s.HK+1}, v{s.HK+2}, v{s.HK+3}\n ds_write_b64 v206, {vr(s.HK,2)}')
        a('s_cmp_lg_u32 s3, 0\n s_cbranch_scc1 L_Bn2')
        s.nonce_wait('L_Bn', 249)
        a(f'v_mov_b32 v6, {L_NON}\n ds_write_b32 v6, v249\n L_Bn2:\n s_waitcnt vmcnt(0) lgkmcnt(0)')
    QR, KC, KP, QM, LL, TT, PP, MM, IN, VV, OF = 88, 96, 104, 112, 128, 148, 160, 180, 216, 224, 240
    def Lr(s, sl): return {0: 128, 4: 132, 1: 136, 2: 140, 3: 144}[sl]
    def qmask(s, t, hi):
        for h in range(2):
            m = f's[{40+4*t+2*h}:{41+4*t+2*h}]'; q = f'v{s.QR+2*t+h}'
            s.a(f'v_cndmask_b32 v{s.QM+4*t+2*hi+h}, {q}, 0, {m}' if hi else f'v_cndmask_b32 v{s.QM+4*t+h}, 0, {q}, {m}')
    def bfly(s, n, op, mid):
        a = s.a; b, c, d, t = [f'v{s.MM+i}' for i in range(4)]
        if n == 3:
            a(f'''v_mov_b32 {t}, {d}
            v_permlane32_swap_b32 {b}, {c}
            v_permlane32_swap_b32 {d}, {t}
            {op} {b}, {b}, {c}
            {op} {d}, {d}, {t}
            v_permlane16_swap_b32 {b}, {d}
            {op} {b}, {b}, {d}
            {mid(d, b)}
            {mid(b, b)}
            v_permlane16_swap_b32 {b}, {d}
            v_mov_b32 {c}, {b}
            v_permlane32_swap_b32 {b}, {c}''')
        else:
            a(f'''v_permlane32_swap_b32 {b}, {c}
            {op} {t}, {b}, {c}
            {op} {b}, {b}, {c}
            v_permlane16_swap_b32 {b}, {t}
            {op} {b}, {b}, {t}
            {mid(c, b)}
            {mid(b, b)}
            v_permlane32_swap_b32 {b}, {c}''')
    def softmax(s, slots):
        a = s.a; n = len(slots)
        for j, sl in enumerate(slots):
            L = s.Lr(sl); a(f'v_max3_f32 v{s.MM+j}, v{L}, v{L+1}, v{L+2}')
        for j, sl in enumerate(slots):
            L = s.Lr(sl); a(f'v_max_f32 v{s.MM+j}, v{s.MM+j}, v{L+3}')
        s.bfly(n, 'v_max_f32', lambda d, x: f'v_mul_f32 {d}, s62, {x}')
        for j, sl in list(enumerate(slots))[::-1]:
            L = s.Lr(sl)
            for i in range(4): a(f'v_fma_f32 v{L+i}, v{L+i}, s62, -v{s.MM+j}')
            for i in range(4): a(f'v_exp_f32 v{L+i}, v{L+i}')
        for j, sl in list(enumerate(slots))[::-1]:
            L = s.Lr(sl); a(f'v_add_f32 v{s.MM+j}, v{L}, v{L+1}\n v_add_f32 v{s.MM+4+j}, v{L+2}, v{L+3}')
        for j, sl in list(enumerate(slots))[::-1]:
            a(f'v_add_f32 v{s.MM+j}, v{s.MM+j}, v{s.MM+4+j}')
        s.bfly(n, 'v_add_f32', lambda d, x: f'v_rcp_f32 {d}, {x}')
        for j, sl in list(enumerate(slots))[::-1]:
            L = s.Lr(sl); P = s.PP + 4*sl
            for i in range(4): a(f'v_mul_f32 v{L+i}, v{L+i}, v{s.MM+j}')
            for h in range(2): a(f'v_cvt_pk_bf16_f32 v{P+2+h}, v{L+2*h}, v{L+2*h+1}')
            for h in range(2): a(f'v_and_b32 v{P+h}, v{P+2+h}, v{200+h}')
            for h in range(2): a(f'v_xor_b32 v{P+2+h}, v{P+2+h}, v{P+h}')
    def b_attn(s):
        a = s.a; o = s.o
        a('L_Bqk:\n s_barrier')
        s.ts(4)
        a(f'v_mov_b32 v6, {L_NON}')
        for j in range(2):
            a(f'ds_read_b128 {vr(s.QR+4*j,4)}, v202 offset:{1024*j}')
            a(f'ds_read_b128 {vr(s.KC+4*j,4)}, v202 offset:{KS-QS+1024*j}')
            a(f'ds_read_b128 {vr(s.KP+4*j,4)}, v204 offset:{1024*j}')
        a('ds_read_b32 v249, v6')
        a('s_cmp_ge_u32 s3, 4\n s_cbranch_scc1 L_Bx0')
        for f in s.frags('v'):
            for r in s.rd_w(f, 0): a(r[1])
        a('s_waitcnt lgkmcnt(4)\n s_branch L_Bx1\n L_Bx0:\n s_waitcnt lgkmcnt(0)\n L_Bx1:')
        s.qmask(0, 0); s.qmask(3, 1)
        for j, (sl, k, q) in enumerate(((0, 0, s.QM), (4, 6, s.QM+14))):
            a(f'{MF16} {vr(s.Lr(sl),4)}, {vr(s.KC+k,2)}, {vr(q,2)}, v[192:195]')
            a(f'{MF16} {vr(s.TT+4*j,4)}, {vr(s.KP+k,2)}, {vr(q,2)}, v[196:199]')
        s.qmask(0, 1); s.qmask(1, 0); s.qmask(1, 1)
        for j, sl in enumerate((0, 4)):
            L = s.Lr(sl)
            for i in range(4): a(f'v_max_f32 v{L+i}, v{L+i}, v{s.TT+4*j+i}')
            for i in range(4): a(f'v_perm_b32 v{L+i}, v{L+i}, v249, s{56+i}')
            a(f'buffer_store_dwordx4 {vr(L,4)}, v248, s[24:27], s{76+j} offen {o.xst}')
        if o.x_ack: a('s_waitcnt vmcnt(0)')
        s.ts(5)
        a('s_cmp_ge_u32 s3, 4\n s_cbranch_scc1 L_BF')
        a('s_mov_b32 s35, 0\n .p2align 3\n L_Bl3:')
        a(resolve(s.stage('v', False, ['s_add_u32 s35, s35, 1', 's_cmp_lt_u32 s35, 3']), cap=6))
        a('s_cbranch_scc1 L_Bl3')
        s.stagew(s.AV, 86, 0)
        a(f'v_cvt_pk_bf16_f32 v{s.HV}, v{s.HV}, v{s.HV+1}\n v_cvt_pk_bf16_f32 v{s.HV+1}, v{s.HV+2}, v{s.HV+3}\n ds_write_b64 v206, {vr(s.HV,2)} offset:2048')
        inl = f'buffer_load_dwordx4 {vr(s.IN,4)}, v248, s[24:27], s78 offen {o.xld}\n buffer_load_dwordx4 {vr(s.IN+4,4)}, v248, s[24:27], s79 offen {o.xld}'
        a('s_waitcnt lgkmcnt(0)\n s_barrier\n' + inl)
        a('L_BF:')
        s.ts(6)
        s.qmask(2, 0); s.qmask(2, 1); s.qmask(3, 0)
        for sl in (1, 2, 3):
            a(f'{MF} {vr(s.Lr(sl),4)}, {vr(s.KC+2*sl-2,4)}, {vr(s.QM+4*sl-2,4)}, v[192:195]')
            a(f'{MF} {vr(s.TT+4*sl-4,4)}, {vr(s.KP+2*sl-2,4)}, {vr(s.QM+4*sl-2,4)}, v[196:199]')
        inl = f'buffer_load_dwordx4 {vr(s.IN,4)}, v248, s[24:27], s78 offen {o.xld}\n buffer_load_dwordx4 {vr(s.IN+4,4)}, v248, s[24:27], s79 offen {o.xld}'
        for sl in (1, 2, 3):
            for i in range(4): a(f'v_max_f32 v{s.Lr(sl)+i}, v{s.Lr(sl)+i}, v{s.TT+4*sl-4+i}')
        s.softmax((1, 2, 3))
        s.ts(7)
        a('s_cmp_lt_u32 s3, 4\n s_cbranch_scc1 L_Bw\n' + inl + '\n s_barrier\n L_Bw:')
        s.ts(8)
        for t in range(4):
            a(f'ds_read_b64 {vr(s.VV+4*t,2)}, v203 offset:{(t>>1)*1024+(t&1)*8}')
            a(f'ds_read_b64 {vr(s.VV+4*t+2,2)}, v205 offset:{(t>>1)*1024+(t&1)*8}')
        I = s.IN; T = s.TT
        a(f'''s_movk_i32 s5, {SPIN}
        L_By:
        s_waitcnt vmcnt(0)
        v_perm_b32 v{T}, v{I+1}, v{I}, s60
        v_perm_b32 v{T+1}, v{I+3}, v{I+2}, s60
        v_perm_b32 v{T+2}, v{I+5}, v{I+4}, s60
        v_perm_b32 v{T+3}, v{I+7}, v{I+6}, s60
        v_perm_b32 v{T}, v{T+1}, v{T}, s61
        v_perm_b32 v{T+2}, v{T+3}, v{T+2}, s61
        v_cmp_ne_u32 vcc, v{T}, v249
        v_cmp_ne_u32 s[6:7], v{T+2}, v249
        s_or_b64 vcc, vcc, s[6:7]
        s_cbranch_scc0 L_Byd
        {inl}
        s_sub_u32 s5, s5, 1
        s_cbranch_scc0 L_By
        s_waitcnt vmcnt(0)
        L_Byd:''')
        s.ts(9)
        if o.x_cnt: a(f's_sub_u32 s81, {SPIN}, s5\n s_mul_i32 s81, s81, 100\n s_add_u32 s81, s81, s80')
        for i in range(8): a(f'v_add_f32 v{128+i}, v{128+i}, v{I+i}')
        a('s_waitcnt lgkmcnt(0)')
        O = 88
        def pv(t, hi): a(f'{MF} {vr(O+8*t+4*hi,4)}, {vr(s.VV+4*t,4)}, {vr(s.PP+4*(t+hi),4)}, 0')
        for t, hi in ((0, 1), (1, 0), (1, 1), (2, 0), (2, 1), (3, 0)): pv(t, hi)
        s.softmax((0, 4))
        pv(3, 1); pv(0, 0)
        for t in (1, 2, 3, 0):
            for h in range(2):
                a(f'v_cvt_pk_bf16_f32 v{O+8*t+2*h}, v{O+8*t+2*h}, v{O+8*t+2*h+1}')
                a(f'v_cvt_pk_bf16_f32 v{O+8*t+4+2*h}, v{O+8*t+4+2*h}, v{O+8*t+4+2*h+1}')
                a(f'v_cndmask_b32 v{s.OF+2*t+h}, v{O+8*t+4+2*h}, v{O+8*t+2*h}, s[{40+4*t+2*h}:{41+4*t+2*h}]')
            if t == 3: a(f's_lshl_b32 s4, s33, 11\n s_add_u32 s4, s4, s74\n buffer_store_dwordx4 {vr(s.OF+4,4)}, v248, s[24:27], s4 offen offset:1024 sc1')
        a(f'buffer_store_dwordx4 {vr(s.OF,4)}, v248, s[24:27], s4 offen sc1')
    def b2(s):
        a = s.a
        ACC = 72; W = 88
        def rd(pos):
            r = []
            for c in range(4):
                for h in range(2):
                    off = (pos//6)*SL + (pos % 6)*BL + 32*c + 512*h
                    d = W + 16*(pos % 9) + 4*c + 2*h
                    r.append(('r', f'ds_read_b64_tr_b16 {vr(d,2)}, v{250 if off < 59968 else 251} offset:{off if off < 59968 else off-59968}', R(d, 2)))
            return r
        def mm(pos, pend):
            B = s.OF + 4*pos if pos < 2 else 8 + 4*(pos-2)
            r = []
            for c in range(4):
                A = W + 16*(pos % 9) + 4*c
                r.append(('m', f'{MF} {vr(ACC+4*c,4)}, {vr(A,4)}, {vr(B,4)}, {vr(ACC+4*c,4) if pos else 0}', R(A, 4)))
                for _ in range(2):
                    if pend: r.append(pend.pop(0))
            return r
        s.ts(10)
        a('s_cmp_lt_u32 s3, 4\n s_cbranch_scc1 L_Bw2')
        for i in range(18):
            off = (i//6)*SL + (i % 6)*BL
            a(f'ds_write_b128 v{208 if off < 59968 else 209}, {vr(8+4*i,4)} offset:{off if off < 59968 else off-59968}')
        a(f'L_Bw2:\n s_lshl_b32 s4, s33, 7\n s_add_u32 s4, s4, s75\n s_waitcnt vmcnt(0)\n s_mov_b64 exec, 1\n buffer_store_dword v249, off, s[24:27], s4 sc1\n s_mov_b64 exec, -1')
        s.ts(11)
        a('s_waitcnt lgkmcnt(0)\n s_barrier')
        ops = []
        for p in range(5): ops += rd(p)
        ops.append(('t', 's_mov_b64 exec, 0x1ff\n buffer_load_dword v232, v255, s[24:27], s75 offen sc1\n s_mov_b64 exec, -1'))
        for p in range(5, 9): ops += rd(p)
        ops += mm(0, []); ops += mm(1, rd(9)); ops += rd(10); ops.append(('t', s.tst(12)))
        ops.append(('t', f'''s_movk_i32 s5, {SPIN}
        s_mov_b64 exec, 0x1ff
        L_Bp:
        s_waitcnt vmcnt(0)
        v_cmp_ne_u32 vcc, v232, v249
        s_cbranch_vccz L_Bpd
        buffer_load_dword v232, v255, s[24:27], s75 offen sc1
        s_sub_u32 s5, s5, 1
        s_cbranch_scc0 L_Bp
        s_waitcnt vmcnt(0)
        L_Bpd:
        s_mov_b64 exec, -1'''))
        ops.append(('t', s.tst(13)))
        t = f's_mov_b32 s4, s33\n'
        for i in range(8):
            t += f's_add_u32 s4, s4, 1\n s_cmp_eq_u32 s4, 9\n s_cselect_b32 s4, 0, s4\n s_lshl_b32 s5, s4, 11\n s_add_u32 s5, s5, s74\n'
            t += f'buffer_load_dwordx4 {vr(8+8*i,4)}, v248, s[24:27], s5 offen sc1\n buffer_load_dwordx4 {vr(12+8*i,4)}, v248, s[24:27], s5 offen offset:1024 sc1\n'
        ops.append(('t', t))
        pend = []
        for p in range(2, 18):
            ops.append(('t', f's_waitcnt vmcnt({17-p})'))
            ops += mm(p, pend)
            if p + 9 < 18: pend = rd(p+9)
        a(resolve(ops, loop=False))
        s.ts(14)
        for c in range(4):
            for h in range(2): a(f'v_cvt_pk_bf16_f32 v{ACC+4*c+h}, v{ACC+4*c+2*h}, v{ACC+4*c+2*h+1}')
            a(f'ds_write_b64 v252, {vr(ACC+4*c,2)} offset:{32*c}')
        a(f'''s_waitcnt lgkmcnt(0)
        ds_read_b128 v[8:11], v253
        ds_read_b128 v[12:15], v253 offset:{8*144}
        s_add_u32 s4, s73, {16*2304}
        s_waitcnt lgkmcnt(1)
        buffer_store_dwordx4 v[8:11], v254, s[20:23], s73 offen {s.o.osf}
        s_waitcnt lgkmcnt(0)
        buffer_store_dwordx4 v[12:15], v254, s[20:23], s4 offen {s.o.osf}''')
        s.ts_dump(16)
        if s.o.x_delay:
            a(f'''s_or_b32 s4, s2, s3
            s_cmp_lg_u32 s4, 0
            s_cbranch_scc1 L_end
            {'s_or_b32 s5, s96, 0x80000000' if s.o.x_dbase else 'v_readfirstlane_b32 s5, v249'}
            s_movk_i32 s36, 20000
            L_dly:
            s_memrealtime s[6:7]
            s_waitcnt lgkmcnt(0)
            s_or_b32 s6, s6, 0x80000000
            s_sub_u32 s6, s6, s5
            s_cmp_ge_u32 s6, {s.o.x_delay}
            s_cbranch_scc1 L_end
            s_sub_u32 s36, s36, 1
            s_cbranch_scc0 L_dly''')
        a('s_endpgm')
    def a_part(s):
        a = s.a; o = s.o
        a('L_A:')
        if not o.doA: a('s_endpgm'); return
        import genA
        genA.a_part(s)
    def build(s):
        s.entry(); s.b_loader(); s.b_compute(); s.b_attn(); s.b2(); s.a_part()
        s.a('L_end:\n L_last:\n s_endpgm')
        return single_file(haz.fix(s.a.text()), NWG, 512, LDS_BYTES)
def gen(**kw):
    o = Opt()
    for k, v in kw.items(): setattr(o, k, v)
    return G(o).build()
if __name__ == '__main__':
    kw = {}
    for x in sys.argv[2:]:
        k, v = x.split('='); kw[k] = eval(v)
    open(sys.argv[1], 'w').write(gen(**kw))
```

```python
import sys, struct, math
sys.path.insert(0, 'exp')
from asmlib import *
import haz
def fb(x): return hex(struct.unpack('<I', struct.pack('<f', x))[0])
WS_U, WS_O, WS_XC, WS_FO, WS_FU, WS_TS = 0, 0x400000, 0x800000, 0xC00000, 0xC40000, 0xD00000
SL = 44416; L_X = 0; L_WV = 16896; L_XH = 25344; L_WQK = 27520; BL = 4224
QS = L_WQK; KS = SL + L_WQK; VS = 2*SL + L_WQK
HS = 3*SL; TR = HS + 4096; L_NON = TR + 8*2304; LDS_BYTES = L_NON + 128
NWG = 240
SPIN = 30000
class Opt:
    prof = False; x_dbase = 0; osf = 'sc0 sc1'; swap = 1; ldx = ''; ldw = ''; ldo = ''; lda = ''; cshare = 1; x_delay = 0; hold = 1; x_ack = 0; xst = 'sc1'; xld = 'sc1'; x_late = 0; x_nowo = False; bmap = 1; x_cnt = False; rotg = 1; touch = 0; cpos = 4; x_nold = False; x_nomm = False; x_nord = False; clk = 's_memrealtime'; rotc = 1; rota = 1; ldf = ''; doA = True; doB = True; pre = True
MF = 'v_mfma_f32_16x16x32_bf16'
MF16 = 'v_mfma_f32_16x16x16_bf16'

def resolve(ops, loop=True, cap=5):
    out = []
    seq = 0; last = {}; done = -1
    for it in range(2 if loop else 1):
        out = []
        for o in ops:
            if o[0] == 'r':
                for r in o[2]: last[r] = seq
                seq += 1; out.append(o[1])
            elif o[0] == 'm':
                nd = max([last.get(r, -1) for r in o[2]])
                if nd > done:
                    n = min(seq - 1 - nd, cap)
                    out.append(f's_waitcnt lgkmcnt({n})'); done = seq - 1 - n
                out.append(o[1])
            elif o[0] == 'w0':
                out.append('s_waitcnt lgkmcnt(0)'); done = seq - 1
            else: out.append(o[1])
    return '\n'.join(out)
def R(b, n): return list(range(b, b+n))

class G:
    def __init__(s, o):
        s.o = o; s.a = Asm(); s.nts = 0
    def ts(s, i):
        if s.o.prof: s.a(s.tst(i))
    def tst(s, i):
        return f'{s.o.clk} s[98:99]\n s_waitcnt lgkmcnt(0)\n s_mov_b32 s{80+i}, s98' if s.o.prof else ''
    def ts_dump(s, n):
        if not s.o.prof: return
        a = s.a
        a('s_waitcnt vmcnt(0)')
        s.ts(n-1)
        a(f's_lshl_b32 s4, s2, 3\n s_add_u32 s4, s4, s3\n s_lshl_b32 s4, s4, 6\n s_add_u32 s4, s4, {WS_TS}\n s_mov_b64 exec, 1\n v_mov_b32 v1, 0')
        for i in range(n):
            a(f'v_mov_b32 v2, s{80+i}\n buffer_store_dword v2, v1, s[24:27], s4 offen offset:{4*i}')
    def dma(s, ldsreg, ldsoff, kreg, koff, voff, srd, fl=''):
        s.a(f's_add_u32 m0, {ldsreg}, {ldsoff}\n s_add_u32 s7, {kreg}, {koff}')
        if not s.o.x_nold: s.a(f'buffer_load_dwordx4 {voff}, {srd}, s7 offen {s.o.ldf or fl} lds')
    def srds(s):
        s.a('''s_mov_b32 s14, 1990656
        s_mov_b32 s15, s11
        s_mov_b32 s18, 663552
        s_mov_b32 s19, s11
        s_mov_b32 s22, 4718592
        s_mov_b32 s23, s11
        s_mov_b32 s26, 0x1000000
        s_mov_b32 s27, s11
        s_movk_i32 s30, 256
        s_mov_b32 s31, s11''')
    def prefetch(s, r=232):
        if not s.o.pre: return
        s.nts += 1; L = f'L_pc{s.nts}'
        s.a(f'''s_getpc_b64 s[36:37]
        {L}:
        s_sub_u32 s36, s36, {L}-L_top
        s_subb_u32 s37, s37, 0
        s_lshl_b32 s38, s3, 13
        v_lshl_add_u32 v{r}, v0, 7, s38
        v_min_u32 v{r}, L_last-L_top, v{r}
        global_load_dword v{r+1}, v{r}, s[36:37]''')
    def nonce_wait(s, lab, v):
        s.a(f'''s_movk_i32 s5, {SPIN}
        {lab}:
        s_waitcnt vmcnt(0)
        v_cmp_ne_u32 vcc, 0, v{v}
        s_cbranch_vccnz {lab}d
        buffer_load_dword v{v}, off, s[28:31], 0 sc1
        s_sub_u32 s5, s5, 1
        s_cbranch_scc0 {lab}
        s_waitcnt vmcnt(0)
        {lab}d:''')
    def entry(s):
        a = s.a
        a(f'''L_top:
        s_cmpk_ge_u32 s2, {NWG}
        s_cbranch_scc1 L_end
        s_load_dwordx2 s[8:9], s[0:1], 40
        s_load_dwordx2 s[12:13], s[0:1], 48
        s_load_dwordx2 s[4:5], s[0:1], 0
        s_load_dwordx2 s[16:17], s[0:1], 56
        s_load_dwordx2 s[20:21], s[0:1], 64
        s_load_dwordx2 s[28:29], s[0:1], 72
        s_load_dwordx2 s[24:25], s[0:1], 80''')
        if s.o.prof: a(f'{s.o.clk} s[80:81]')
        if s.o.x_dbase: a('s_memrealtime s[96:97]')
        a(f'''v_lshrrev_b32 v1, 6, v0
        v_and_b32 v0, 63, v0
        v_readfirstlane_b32 s3, v1
        s_mov_b32 s10, 2359296
        s_mov_b32 s11, 0x20000''')
        s.srds()
        if s.o.swap: a('s_xor_b32 s3, s3, 4')
        a(f'''s_and_b32 s32, s2, 7
        s_lshl_b32 s32, s32, 1
        s_lshr_b32 s33, s2, 3
        s_cmp_ge_u32 s33, 18
        s_cbranch_scc1 L_A
        s_cmp_ge_u32 s33, 9
        s_cselect_b32 s6, 9, 0
        s_addc_u32 s32, s32, 0
        s_sub_u32 s33, s33, s6''')
        if s.o.bmap > 1:
            m = s.o.bmap; lg = m.bit_length() - 1
            a(f'''s_and_b32 s6, s2, {m-1}
            s_mul_i32 s6, s6, 18
            s_lshr_b32 s7, s2, 3
            s_add_u32 s6, s6, s7
            s_lshr_b32 s33, s6, {lg+1}
            s_and_b32 s6, s6, {2*m-1}
            s_and_b32 s7, s2, {7 & ~(m-1)}
            s_lshl_b32 s7, s7, 1
            s_add_u32 s32, s7, s6''')
        a(f'''s_cmp_lt_u32 s3, 4
        s_cbranch_scc1 L_Bc''')
        if not s.o.doB: a('s_endpgm')
    def b_loader(s):
        a = s.a; o = s.o
        a(f'''s_sub_u32 s39, s3, 4
        v_and_b32 v1, 7, v0
        v_lshlrev_b32 v1, 4, v1
        v_bfe_u32 v2, v0, 3, 1
        v_bfe_u32 v3, v0, 4, 1
        v_lshrrev_b32 v4, 5, v0
        s_lshl_b32 s6, s39, 1
        v_lshl_add_u32 v5, v3, 3, v2
        v_add_u32 v5, s6, v5
        v_lshl_add_u32 v83, v4, 4, v5
        v_mul_u32_u24 v80, 2304, v83
        v_add_u32 v80, v80, v1
        v_lshl_add_u32 v6, v3, 2, v2
        v_lshl_add_u32 v6, v4, 4, v6
        s_and_b32 s34, s39, 1
        s_lshl_b32 s34, s34, 1
        s_lshr_b32 s35, s39, 1
        s_lshl_b32 s35, s35, 3
        s_add_u32 s34, s34, s35
        v_add_u32 v6, s34, v6
        v_mul_u32_u24 v82, 3456, v6
        s_lshl_b32 s35, s33, 7
        v_add3_u32 v82, v82, v1, s35
        v_add_u32 v6, s6, v2
        v_lshl_add_u32 v6, v6, 1, v3
        s_lshl_b32 s34, s32, 7
        s_sub_u32 s34, s34, 16
        s_max_i32 s34, s34, 0
        v_add_u32 v6, s34, v6
        v_mul_u32_u24 v81, 1152, v6
        v_add_u32 v81, v81, v1
        s_mul_i32 s63, s32, {128*1152}
        s_mul_i32 s34, s32, {o.rotc}
        s_mul_i32 s6, s33, {o.rotg}
        s_add_u32 s34, s34, s6
        s_mul_i32 s6, s34, 57
        s_lshr_b32 s6, s6, 9
        s_mul_i32 s6, s6, 9
        s_sub_u32 s34, s34, s6
        s_mul_i32 s64, s39, 1056
        s_mul_i32 s65, s39, 544
        s_mov_b32 s66, 0
        v_mov_b32 v248, 0
        v_mov_b32 v254, 0
        v_mov_b32 v255, 0
        s_waitcnt lgkmcnt(0)''')
        a(f'''L_ld:
        s_lshl_b32 s67, s34, 7
        s_add_u32 s68, s67, s63
        s_mul_i32 s69, s34, {64*3456}''')
        for cw in range(4):
            s.dma('s64', L_X + cw*BL, 's68', (64*(cw >> 1) + (cw & 1))*1152, 'v80', 's[8:11]', o.ldx)
        a(f's_add_u32 m0, s65, {L_XH}\n s_mov_b32 exec_hi, 0')
        a(f'buffer_load_dwordx4 v81, s[8:11], s67 offen {o.ldf or o.ldx} lds\n s_mov_b32 exec_hi, -1')
        for ks in range(2):
            for m in range(2):
                s.dma('s64', L_WQK + (2*ks+m)*BL, 's69', ks*32*3456 + m*1152, 'v82', 's[12:15]', o.ldw)
        if o.cshare:
            a('s_cmp_eq_u32 s66, 0\n s_cbranch_scc1 L_const\n L_cret:')
        a('s_cmp_ge_u32 s66, 6\n s_cbranch_scc1 L_ld1')
        for ks in range(2):
            s.dma('s64', L_WV + ks*BL, 's69', ks*32*3456 + 2304, 'v82', 's[12:15]', o.ldw)
        a(f'''L_ld1:
        s_add_u32 s34, s34, 1
        s_cmp_eq_u32 s34, 9
        s_cselect_b32 s34, 0, s34
        s_add_u32 s64, s64, {SL}
        s_add_u32 s65, s65, {SL}
        s_cmp_ge_u32 s64, {3*SL}
        s_cselect_b32 s6, {3*SL}, 0
        s_sub_u32 s64, s64, s6
        s_sub_u32 s65, s65, s6
        s_add_u32 s66, s66, 1
        s_cmp_lt_u32 s66, 2
        s_cbranch_scc1 L_ld''')
        if not o.cshare:
            a(f's_cmp_lg_u32 s66, {o.cpos}\n s_cbranch_scc1 L_ld2')
            s.ts(1)
            s.b_const('h')
            s.ts(2)
        a(f'''L_ld2:
        s_waitcnt vmcnt(11)
        s_cmp_lt_u32 s66, 7
        s_cbranch_scc1 L_ld3
        s_waitcnt vmcnt(9)
        L_ld3:
        s_barrier
        s_cmp_lt_u32 s66, 9
        s_cbranch_scc1 L_ld''')
        a('s_add_u32 s34, s34, 6')
        for i in range(3):
            a(f's_cmp_ge_u32 s34, 9\n s_cselect_b32 s6, 9, 0\n s_sub_u32 s34, s34, s6\n s_mul_i32 s69, s34, {64*3456}\n s_add_u32 s34, s34, 1')
            for ks in range(2):
                s.dma('s64', i*SL + L_WV + ks*BL, 's69', ks*32*3456 + 2304, 'v82', 's[12:15]', o.ldw)
        a(f'''v_mul_u32_u24 v83, 1152, v83
        v_add3_u32 v83, v83, v1, s35
        v_add_u32 v84, {32*1152}, v83
        s_mul_i32 s69, s33, {64*1152}
        s_waitcnt vmcnt(6)
        s_barrier''')
        for i in range(0 if o.x_nowo else 9):
            a(f'buffer_load_dwordx4 {vr(8+8*i,4)}, v83, s[16:19], s69 offen {o.ldf or o.ldo}\n buffer_load_dwordx4 {vr(12+8*i,4)}, v84, s[16:19], s69 offen {o.ldf or o.ldo}')
            if i < 8: a(f's_add_u32 s69, s69, {64*1152}\n s_cmp_eq_u32 s69, s18\n s_cselect_b32 s69, 0, s69')
        a('s_waitcnt vmcnt(0)' if o.x_nowo else 's_waitcnt vmcnt(18)')
        s.ts(3)
        a('s_branch L_Bqk')
    def b_const(s, sfx):
        a = s.a
        a(f'''v_and_b32 v216, 15, v0
        v_lshrrev_b32 v217, 4, v0
        v_lshlrev_b32 v218, 2, v217
        v_sub_u32 v219, v216, v218
        v_lshlrev_b32 v248, 4, v0
        s_lshr_b32 s6, s3, 1
        s_or_b32 s6, s6, s32
        s_cmp_eq_u32 s6, 0
        s_cselect_b32 s6, -16, -8
        v_mov_b32 v220, {fb(-1e30)}
        v_mov_b32 v222, 0xffff
        v_mov_b32 v223, 0xffff0000''')
        for i in range(4):
            a(f'''v_subrev_u32 v221, {i}, v219
            v_cmp_le_u32 s[40:41], 8, v221
            v_cmp_le_i32 s[42:43], s6, v221
            v_cmp_le_i32 s[44:45], 0, v221
            v_cndmask_b32 v{192+i}, 0, v220, s[40:41]
            v_cndmask_b32 v{196+i}, 0, v220, s[42:43]
            v_cndmask_b32 v{224+i}, 0, v{222+(i&1)}, s[44:45]''')
        a('v_or_b32 v200, v224, v225\n v_or_b32 v201, v226, v227')
        a(f'''s_lshl_b32 s6, s33, 6
        s_add_u32 s7, s6, 17
        s_mul_i32 s7, s7, 3641
        s_lshr_b32 s7, s7, 16
        s_mul_i32 s7, s7, 18
        s_sub_u32 s6, s7, s6
        s_mov_b32 s7, s6''')
        for t in range(4):
            if t: a(f's_cmp_eq_u32 s6, {18-2*t}\n s_cselect_b32 s4, -16, 2\n s_add_u32 s7, s7, s4')
            a(f's_sub_u32 s4, s7, 2\n v_cmp_gt_i32 s[{40+4*t}:{41+4*t}], s7, v218\n v_cmp_gt_i32 s[{42+4*t}:{43+4*t}], s4, v218')
        a(f'''s_mov_b32 s56, 0x07060500
        s_mov_b32 s57, 0x07060501
        s_mov_b32 s58, 0x07060502
        s_mov_b32 s59, 0x07060503
        s_mov_b32 s60, 0x0c0c0400
        s_mov_b32 s61, 0x05040100
        s_mov_b32 s62, {fb(math.log2(math.e)/math.sqrt(18))}
        s_and_b32 s70, s3, 3
        s_lshr_b32 s71, s3, 2
        s_lshl_b32 s72, s70, 1
        s_add_u32 s72, s72, s71
        s_lshl_b32 s6, s72, 11
        s_add_u32 s6, s6, {QS}
        v_add_u32 v202, s6, v248
        v_add_u32 v203, {VS-QS}, v202
        s_cmp_ge_u32 s3, 4
        s_cselect_b32 s4, 1, 3
        s_lshl_b32 s4, s4, 11
        s_sub_u32 s4, {KS-QS}, s4
        v_add_u32 v204, s4, v202
        v_add_u32 v205, {VS-KS}, v204
        s_cmp_ge_u32 s3, 2
        s_cbranch_scc1 L_Bc1{sfx}
        s_lshl_b32 s4, s3, 7
        s_add_u32 s4, s4, {HS}
        v_and_b32 v204, 0x370, v248
        v_add_u32 v204, s4, v204
        s_lshl_b32 s4, s3, 9
        s_add_u32 s4, s4, {HS+2048}
        v_and_b32 v205, 0x1f0, v248
        v_add_u32 v205, s4, v205
        L_Bc1{sfx}:
        s_lshr_b32 s4, s70, 1
        s_lshl_b32 s5, s4, 10
        s_and_b32 s6, s70, 1
        s_lshl_b32 s7, s6, 3
        s_add_u32 s5, s5, s7
        s_add_u32 s5, s5, {HS}
        v_add_u32 v206, s5, v248
        s_lshl_b32 s4, s4, 6
        s_add_u32 s4, s4, s6
        s_lshl_b32 s5, s71, 5
        s_add_u32 s4, s4, s5
        s_lshl_b32 s5, s32, 7
        s_add_u32 s4, s4, s5
        s_mul_i32 s4, s4, 2304
        s_lshl_b32 s5, s33, 7
        s_add_u32 s4, s4, s5
        s_add_u32 s73, s4, 1152
        v_lshrrev_b32 v221, 3, v0
        v_and_b32 v222, 0x70, v248
        v_mov_b32 v223, 4608
        v_mad_u32_u24 v254, v221, v223, v222
        s_mul_i32 s4, s3, 2304
        s_add_u32 s4, s4, {TR}
        v_mul_u32_u24 v253, 144, v221
        v_add3_u32 v253, v253, v222, s4
        v_mul_u32_u24 v252, 144, v216
        v_lshl_add_u32 v252, v217, 3, v252
        v_add_u32 v252, s4, v252
        v_bfe_u32 v221, v0, 3, 2
        v_mul_u32_u24 v221, 1056, v221
        v_bfe_u32 v222, v0, 2, 1
        v_lshl_add_u32 v221, v222, 7, v221
        v_and_b32 v222, 3, v0
        v_lshl_add_u32 v207, v222, 3, v221
        v_lshrrev_b32 v222, 5, v0
        v_lshl_add_u32 v250, v222, 8, v207
        v_add_u32 v251, 59968, v250
        v_lshl_add_u32 v207, v222, 9, v207
        s_mul_i32 s4, s70, 1056
        v_add_u32 v208, s4, v248
        v_add_u32 v209, 59968, v208
        v_lshlrev_b32 v255, 7, v0
        s_lshl_b32 s4, s32, 3
        s_add_u32 s4, s4, s72
        s_mul_i32 s74, s4, 18432
        s_add_u32 s74, s74, {WS_O}
        s_mul_i32 s75, s4, 1152
        s_add_u32 s75, s75, {WS_FO}
        s_mul_i32 s4, s32, 9
        s_add_u32 s4, s4, s33
        s_lshl_b32 s4, s4, 14
        s_lshl_b32 s5, s72, 10
        s_add_u32 s4, s4, s5
        s_add_u32 s76, s4, {WS_XC}
        s_add_u32 s77, s76, 8192
        s_cmp_eq_u32 s33, 0
        s_cselect_b32 s4, 0, 8192
        s_sub_u32 s78, s76, s4
        s_cmp_eq_u32 s33, 8
        s_cselect_b32 s4, 0, 8192
        s_add_u32 s79, s77, s4''')
    AV, HV, XB, WV_, AQ, AK, HK, WQ = 8, 40, 44, 212, 88, 120, 152, 156
    def frags(s, mode):
        F = []
        if 'q' in mode:
            for m, acc in ((0, s.AQ), (1, s.AK)):
                for i in range(2):
                    F.append((s.WQ + 8*m + 4*i, 4+i, lambda ks, m=m: L_WQK + (2*ks+m)*BL,
                              [(acc + 8*t + 4*i, t) for t in range(4)] + ([(s.HK, 4)] if m == 1 and i == 0 else []), 0))
        if 'v' in mode:
            for i in range(2):
                F.append((s.WV_ + 4*i, 4+i, lambda ks: L_WV + ks*BL, [(s.AV + 8*t + 4*i, t) for t in range(4)] + ([(s.HV, 4)] if i == 0 else []), 1))
        return F
    def rd_w(s, f, ks):
        return [('r', f'ds_read_b64_tr_b16 {vr(f[0]+2*h,2)}, v{f[1]} offset:{f[2](ks)+256*h}', R(f[0]+2*h, 2)) for h in range(2)]
    def rd_x(s, ks):
        b = s.XB + 20*ks
        return [('r', f'ds_read_b128 {vr(b+4*t,4)}, v{2 if t < 4 else 3} offset:{((t>>1)*2*BL+512*(t&1) if t < 4 else 0)+64*ks}', R(b+4*t, 4)) for t in range(5)]
    def mm(s, f, ks):
        r = []
        for acc, t in f[3]:
            x = s.XB + 20*ks + 4*t
            A, B = (x, f[0]) if f[4] else (f[0], x)
            r.append(('m', f'{MF} {vr(acc,4)}, {vr(A,4)}, {vr(B,4)}, {vr(acc,4)}', R(x, 4) + R(f[0], 4)))
        return r
    def stagew(s, base, areg, stg):
        for t in range(4):
            for i in range(2):
                b = base + 8*t + 4*i
                s.a(f'v_cvt_pk_bf16_f32 v{b}, v{b}, v{b+1}\n v_cvt_pk_bf16_f32 v{b+1}, v{b+2}, v{b+3}')
                s.a(f'ds_write_b64 v{areg+i}, {vr(b,2)} offset:{stg + (4*(t>>1)+(t&1))*2048}')
    def stage(s, mode, barrier, extra=[]):
        F = s.frags(mode); ops = []
        def issue(pend):
            while pend and pend[0][0] == 't' and pend[0][1].startswith('s_'): ops.append(pend.pop(0)); break
            if pend: ops.append(pend.pop(0))
        def phase(ks, pend, hold):
            for i, f in enumerate(F):
                if i == hold:
                    ops.extend(pend); pend.clear()
                    if barrier == 1: ops.extend([('w0',), ('t', 's_barrier')])
                    if barrier == 2: ops.extend([('w0',), ('t', 's_cbranch_scc0 L_Bnb\n s_barrier\n L_Bnb:')])
                    ops.extend([('t', f'v_add_u32 v{r}, s38, v{r}') for r in (4, 5)])
                    for g in F[:hold]: pend.extend(s.rd_w(g, 0))
                    pend.extend(s.rd_x(0))
                for m in s.mm(f, ks):
                    ops.append(m); issue(pend)
                if hold is None or i >= hold: pend.extend(s.rd_w(f, 1-ks))
            return pend
        sal = [('t', t) for t in ['s_add_u32 s36, s36, 1', 's_cmp_eq_u32 s36, 3', 's_cselect_b32 s36, 0, s36', f's_cselect_b32 s38, s37, {SL}'] + extra]
        pend = []
        for k, r in enumerate(s.rd_x(1)): pend += [sal[k], r]
        pend += [sal[5]] + [('t', f'v_add_u32 v{r}, s38, v{r}') for r in (2, 3)]
        pend = phase(0, pend, None)
        pend = phase(1, pend, s.o.hold if barrier else 0)
        ops.extend(pend)
        if s.o.x_nomm: ops = [x for x in ops if x[0] != 'm']
        if s.o.x_nord: ops = [x for x in ops if x[0] != 'r']
        return ops
    def b_compute(s):
        a = s.a; o = s.o
        a('L_Bc:')
        if not o.doB: a('s_endpgm')
        s.prefetch()
        a(f'''v_bfe_u32 v6, v0, 1, 2
        v_and_b32 v7, 1, v0
        v_bfe_u32 v4, v0, 3, 1
        v_lshl_add_u32 v7, v4, 1, v7
        v_and_b32 v4, 0x30, v0
        v_lshl_add_u32 v7, v7, 7, v4
        s_and_b32 s6, s3, 1
        s_mul_i32 s6, s6, {BL}
        v_mul_u32_u24 v2, 1056, v6
        v_add3_u32 v2, v2, v7, s6
        v_mul_u32_u24 v3, 544, v6
        v_add_u32 v3, v3, v7
        v_add_u32 v3, {L_XH}, v3''')
        for r in list(range(8, 44)) + list(range(88, 156)) + [80, 81, 82, 83]: a(f'v_mov_b32 v{r}, 0')
        a(f'''s_waitcnt lgkmcnt(0)
        s_or_b32 s6, s2, s3
        s_cmp_lg_u32 s6, 0
        s_cbranch_scc1 L_Bc2
        s_memrealtime s[6:7]
        s_waitcnt lgkmcnt(0)
        s_or_b32 s6, s6, 0x80000000
        v_mov_b32 v6, s6
        v_mov_b32 v7, 0
        s_mov_b64 exec, 1
        global_store_dword v7, v6, s[28:29] sc1
        s_mov_b64 exec, -1
        L_Bc2:''')
        if o.cshare: a('L_const:')
        s.b_const('c')
        if o.cshare:
            s.ts(1)
            a('s_cmp_ge_u32 s3, 4\n s_cbranch_scc1 L_cret')
        a(f'''s_lshl_b32 s6, s3, 5
        v_add_u32 v4, s6, v207
        s_xor_b32 s6, s6, 32
        v_add_u32 v5, s6, v207
        s_and_b32 s6, s3, 1
        s_mul_i32 s7, s6, 4104
        s_lshr_b32 s4, s3, 1
        s_lshl_b32 s4, s4, 10
        s_add_u32 s7, s7, s4
        s_add_u32 s7, s7, {QS}
        v_add_u32 v84, s7, v248
        v_xor_b32 v85, 8, v84
        v_add_u32 v86, {VS-QS}, v84
        v_xor_b32 v87, 8, v86
        s_mov_b32 s36, 0
        s_mov_b32 s37, {-2*SL & 0xffffffff}
        s_mov_b32 s35, 0''')
        if o.touch == 2:
            for r in ('s76', 's77'): a(f'buffer_load_dwordx4 v[236:239], v248, s[24:27], {r} offen\n buffer_load_dwordx4 v[236:239], v248, s[24:27], {r} offen offset:1024')
        if o.touch == 3:
            for r in ('s76', 's77'): a(f'buffer_store_dwordx4 v[8:11], v248, s[24:27], {r} offen sc1\n buffer_store_dwordx4 v[8:11], v248, s[24:27], {r} offen offset:1024 sc1')
        if o.touch == 1:
            a('s_mov_b64 exec, 1')
            for r in ('s76', 's78', 's79', 's74', 's75'): a(f'buffer_load_dword v233, off, s[24:27], {r} sc1')
            a('buffer_load_dword v233, off, s[20:23], s73\n buffer_load_dword v233, off, s[16:19], 0\n s_mov_b64 exec, -1')
        s.ts(1)
        a('s_barrier')
        s.ts(2)
        ops = s.rd_x(0)
        for f in s.frags('qkv'): ops += s.rd_w(f, 0)
        a(resolve(ops, loop=False))
        a('.p2align 3\n L_Bl1:')
        a(resolve(s.stage('qkv', True, ['s_add_u32 s35, s35, 1', 's_cmp_lt_u32 s35, 6'])))
        a('s_cbranch_scc1 L_Bl1')
        a('buffer_load_dword v249, off, s[28:31], 0 sc1')
        a('.p2align 3\n L_Bl2:')
        a(resolve(s.stage('qk', 2, ['s_add_u32 s35, s35, 1', 's_cmp_lt_u32 s35, 9'])))
        a('s_cbranch_scc1 L_Bl2')
        s.ts(3)
        s.stagew(s.AQ, 84, 0); s.stagew(s.AK, 84, KS-QS)
        a(f'v_cvt_pk_bf16_f32 v{s.HK}, v{s.HK}, v{s.HK+1}\n v_cvt_pk_bf16_f32 v{s.HK+1}, v{s.HK+2}, v{s.HK+3}\n ds_write_b64 v206, {vr(s.HK,2)}')
        a('s_cmp_lg_u32 s3, 0\n s_cbranch_scc1 L_Bn2')
        s.nonce_wait('L_Bn', 249)
        a(f'v_mov_b32 v6, {L_NON}\n ds_write_b32 v6, v249\n L_Bn2:\n s_waitcnt vmcnt(0) lgkmcnt(0)')
    QR, KC, KP, QM, LL, TT, PP, MM, IN, VV, OF = 88, 96, 104, 112, 128, 148, 160, 180, 216, 224, 240
    def Lr(s, sl): return {0: 128, 4: 132, 1: 136, 2: 140, 3: 144}[sl]
    def qmask(s, t, hi):
        for h in range(2):
            m = f's[{40+4*t+2*h}:{41+4*t+2*h}]'; q = f'v{s.QR+2*t+h}'
            s.a(f'v_cndmask_b32 v{s.QM+4*t+2*hi+h}, {q}, 0, {m}' if hi else f'v_cndmask_b32 v{s.QM+4*t+h}, 0, {q}, {m}')
    def bfly(s, n, op, mid):
        a = s.a; b, c, d, t = [f'v{s.MM+i}' for i in range(4)]
        if n == 3:
            a(f'''v_mov_b32 {t}, {d}
            v_permlane32_swap_b32 {b}, {c}
            v_permlane32_swap_b32 {d}, {t}
            {op} {b}, {b}, {c}
            {op} {d}, {d}, {t}
            v_permlane16_swap_b32 {b}, {d}
            {op} {b}, {b}, {d}
            {mid(d, b)}
            {mid(b, b)}
            v_permlane16_swap_b32 {b}, {d}
            v_mov_b32 {c}, {b}
            v_permlane32_swap_b32 {b}, {c}''')
        else:
            a(f'''v_permlane32_swap_b32 {b}, {c}
            {op} {t}, {b}, {c}
            {op} {b}, {b}, {c}
            v_permlane16_swap_b32 {b}, {t}
            {op} {b}, {b}, {t}
            {mid(c, b)}
            {mid(b, b)}
            v_permlane32_swap_b32 {b}, {c}''')
    def softmax(s, slots):
        a = s.a; n = len(slots)
        for j, sl in enumerate(slots):
            L = s.Lr(sl); a(f'v_max3_f32 v{s.MM+j}, v{L}, v{L+1}, v{L+2}')
        for j, sl in enumerate(slots):
            L = s.Lr(sl); a(f'v_max_f32 v{s.MM+j}, v{s.MM+j}, v{L+3}')
        s.bfly(n, 'v_max_f32', lambda d, x: f'v_mul_f32 {d}, s62, {x}')
        for j, sl in list(enumerate(slots))[::-1]:
            L = s.Lr(sl)
            for i in range(4): a(f'v_fma_f32 v{L+i}, v{L+i}, s62, -v{s.MM+j}')
            for i in range(4): a(f'v_exp_f32 v{L+i}, v{L+i}')
        for j, sl in list(enumerate(slots))[::-1]:
            L = s.Lr(sl); a(f'v_add_f32 v{s.MM+j}, v{L}, v{L+1}\n v_add_f32 v{s.MM+4+j}, v{L+2}, v{L+3}')
        for j, sl in list(enumerate(slots))[::-1]:
            a(f'v_add_f32 v{s.MM+j}, v{s.MM+j}, v{s.MM+4+j}')
        s.bfly(n, 'v_add_f32', lambda d, x: f'v_rcp_f32 {d}, {x}')
        for j, sl in list(enumerate(slots))[::-1]:
            L = s.Lr(sl); P = s.PP + 4*sl
            for i in range(4): a(f'v_mul_f32 v{L+i}, v{L+i}, v{s.MM+j}')
            for h in range(2): a(f'v_cvt_pk_bf16_f32 v{P+2+h}, v{L+2*h}, v{L+2*h+1}')
            for h in range(2): a(f'v_and_b32 v{P+h}, v{P+2+h}, v{200+h}')
            for h in range(2): a(f'v_xor_b32 v{P+2+h}, v{P+2+h}, v{P+h}')
    def b_attn(s):
        a = s.a; o = s.o
        a('L_Bqk:\n s_barrier')
        s.ts(4)
        a(f'v_mov_b32 v6, {L_NON}')
        for j in range(2):
            a(f'ds_read_b128 {vr(s.QR+4*j,4)}, v202 offset:{1024*j}')
            a(f'ds_read_b128 {vr(s.KC+4*j,4)}, v202 offset:{KS-QS+1024*j}')
            a(f'ds_read_b128 {vr(s.KP+4*j,4)}, v204 offset:{1024*j}')
        a('ds_read_b32 v249, v6')
        a('s_cmp_ge_u32 s3, 4\n s_cbranch_scc1 L_Bx0')
        for f in s.frags('v'):
            for r in s.rd_w(f, 0): a(r[1])
        a('s_waitcnt lgkmcnt(4)\n s_branch L_Bx1\n L_Bx0:\n s_waitcnt lgkmcnt(0)\n L_Bx1:')
        s.qmask(0, 0); s.qmask(3, 1)
        for j, (sl, k, q) in enumerate(((0, 0, s.QM), (4, 6, s.QM+14))):
            a(f'{MF16} {vr(s.Lr(sl),4)}, {vr(s.KC+k,2)}, {vr(q,2)}, v[192:195]')
            a(f'{MF16} {vr(s.TT+4*j,4)}, {vr(s.KP+k,2)}, {vr(q,2)}, v[196:199]')
        s.qmask(0, 1); s.qmask(1, 0); s.qmask(1, 1)
        for j, sl in enumerate((0, 4)):
            L = s.Lr(sl)
            for i in range(4): a(f'v_max_f32 v{L+i}, v{L+i}, v{s.TT+4*j+i}')
            for i in range(4): a(f'v_perm_b32 v{L+i}, v{L+i}, v249, s{56+i}')
            a(f'buffer_store_dwordx4 {vr(L,4)}, v248, s[24:27], s{76+j} offen {o.xst}')
        if o.x_ack: a('s_waitcnt vmcnt(0)')
        s.ts(5)
        a('s_cmp_ge_u32 s3, 4\n s_cbranch_scc1 L_BF')
        a('s_mov_b32 s35, 0\n .p2align 3\n L_Bl3:')
        a(resolve(s.stage('v', False, ['s_add_u32 s35, s35, 1', 's_cmp_lt_u32 s35, 3']), cap=6))
        a('s_cbranch_scc1 L_Bl3')
        s.stagew(s.AV, 86, 0)
        a(f'v_cvt_pk_bf16_f32 v{s.HV}, v{s.HV}, v{s.HV+1}\n v_cvt_pk_bf16_f32 v{s.HV+1}, v{s.HV+2}, v{s.HV+3}\n ds_write_b64 v206, {vr(s.HV,2)} offset:2048')
        inl = f'buffer_load_dwordx4 {vr(s.IN,4)}, v248, s[24:27], s78 offen {o.xld}\n buffer_load_dwordx4 {vr(s.IN+4,4)}, v248, s[24:27], s79 offen {o.xld}'
        a('s_waitcnt lgkmcnt(0)\n s_barrier\n' + inl)
        a('L_BF:')
        s.ts(6)
        s.qmask(2, 0); s.qmask(2, 1); s.qmask(3, 0)
        for sl in (1, 2, 3):
            a(f'{MF} {vr(s.Lr(sl),4)}, {vr(s.KC+2*sl-2,4)}, {vr(s.QM+4*sl-2,4)}, v[192:195]')
            a(f'{MF} {vr(s.TT+4*sl-4,4)}, {vr(s.KP+2*sl-2,4)}, {vr(s.QM+4*sl-2,4)}, v[196:199]')
        inl = f'buffer_load_dwordx4 {vr(s.IN,4)}, v248, s[24:27], s78 offen {o.xld}\n buffer_load_dwordx4 {vr(s.IN+4,4)}, v248, s[24:27], s79 offen {o.xld}'
        for sl in (1, 2, 3):
            for i in range(4): a(f'v_max_f32 v{s.Lr(sl)+i}, v{s.Lr(sl)+i}, v{s.TT+4*sl-4+i}')
        s.softmax((1, 2, 3))
        s.ts(7)
        a('s_cmp_lt_u32 s3, 4\n s_cbranch_scc1 L_Bw\n' + inl + '\n s_barrier\n L_Bw:')
        s.ts(8)
        for t in range(4):
            a(f'ds_read_b64 {vr(s.VV+4*t,2)}, v203 offset:{(t>>1)*1024+(t&1)*8}')
            a(f'ds_read_b64 {vr(s.VV+4*t+2,2)}, v205 offset:{(t>>1)*1024+(t&1)*8}')
        I = s.IN; T = s.TT
        a(f'''s_movk_i32 s5, {SPIN}
        L_By:
        s_waitcnt vmcnt(0)
        v_perm_b32 v{T}, v{I+1}, v{I}, s60
        v_perm_b32 v{T+1}, v{I+3}, v{I+2}, s60
        v_perm_b32 v{T+2}, v{I+5}, v{I+4}, s60
        v_perm_b32 v{T+3}, v{I+7}, v{I+6}, s60
        v_perm_b32 v{T}, v{T+1}, v{T}, s61
        v_perm_b32 v{T+2}, v{T+3}, v{T+2}, s61
        v_cmp_ne_u32 vcc, v{T}, v249
        v_cmp_ne_u32 s[6:7], v{T+2}, v249
        s_or_b64 vcc, vcc, s[6:7]
        s_cbranch_scc0 L_Byd
        {inl}
        s_sub_u32 s5, s5, 1
        s_cbranch_scc0 L_By
        s_waitcnt vmcnt(0)
        L_Byd:''')
        s.ts(9)
        if o.x_cnt: a(f's_sub_u32 s81, {SPIN}, s5\n s_mul_i32 s81, s81, 100\n s_add_u32 s81, s81, s80')
        for i in range(8): a(f'v_add_f32 v{128+i}, v{128+i}, v{I+i}')
        a('s_waitcnt lgkmcnt(0)')
        O = 88
        def pv(t, hi): a(f'{MF} {vr(O+8*t+4*hi,4)}, {vr(s.VV+4*t,4)}, {vr(s.PP+4*(t+hi),4)}, 0')
        for t, hi in ((0, 1), (1, 0), (1, 1), (2, 0), (2, 1), (3, 0)): pv(t, hi)
        s.softmax((0, 4))
        pv(3, 1); pv(0, 0)
        for t in (1, 2, 3, 0):
            for h in range(2):
                a(f'v_cvt_pk_bf16_f32 v{O+8*t+2*h}, v{O+8*t+2*h}, v{O+8*t+2*h+1}')
                a(f'v_cvt_pk_bf16_f32 v{O+8*t+4+2*h}, v{O+8*t+4+2*h}, v{O+8*t+4+2*h+1}')
                a(f'v_cndmask_b32 v{s.OF+2*t+h}, v{O+8*t+4+2*h}, v{O+8*t+2*h}, s[{40+4*t+2*h}:{41+4*t+2*h}]')
            if t == 3: a(f's_lshl_b32 s4, s33, 11\n s_add_u32 s4, s4, s74\n buffer_store_dwordx4 {vr(s.OF+4,4)}, v248, s[24:27], s4 offen offset:1024 sc1')
        a(f'buffer_store_dwordx4 {vr(s.OF,4)}, v248, s[24:27], s4 offen sc1')
    def b2(s):
        a = s.a
        ACC = 72; W = 88
        def rd(pos):
            r = []
            for c in range(4):
                for h in range(2):
                    off = (pos//6)*SL + (pos % 6)*BL + 32*c + 512*h
                    d = W + 16*(pos % 9) + 4*c + 2*h
                    r.append(('r', f'ds_read_b64_tr_b16 {vr(d,2)}, v{250 if off < 59968 else 251} offset:{off if off < 59968 else off-59968}', R(d, 2)))
            return r
        def mm(pos, pend):
            B = s.OF + 4*pos if pos < 2 else 8 + 4*(pos-2)
            r = []
            for c in range(4):
                A = W + 16*(pos % 9) + 4*c
                r.append(('m', f'{MF} {vr(ACC+4*c,4)}, {vr(A,4)}, {vr(B,4)}, {vr(ACC+4*c,4) if pos else 0}', R(A, 4)))
                for _ in range(2):
                    if pend: r.append(pend.pop(0))
            return r
        s.ts(10)
        a('s_cmp_lt_u32 s3, 4\n s_cbranch_scc1 L_Bw2')
        for i in range(18):
            off = (i//6)*SL + (i % 6)*BL
            a(f'ds_write_b128 v{208 if off < 59968 else 209}, {vr(8+4*i,4)} offset:{off if off < 59968 else off-59968}')
        a(f'L_Bw2:\n s_lshl_b32 s4, s33, 7\n s_add_u32 s4, s4, s75\n s_waitcnt vmcnt(0)\n s_mov_b64 exec, 1\n buffer_store_dword v249, off, s[24:27], s4 sc1\n s_mov_b64 exec, -1')
        s.ts(11)
        a('s_waitcnt lgkmcnt(0)\n s_barrier')
        ops = []
        for p in range(5): ops += rd(p)
        ops.append(('t', 's_mov_b64 exec, 0x1ff\n buffer_load_dword v232, v255, s[24:27], s75 offen sc1\n s_mov_b64 exec, -1'))
        for p in range(5, 9): ops += rd(p)
        ops += mm(0, []); ops += mm(1, rd(9)); ops += rd(10); ops.append(('t', s.tst(12)))
        ops.append(('t', f'''s_movk_i32 s5, {SPIN}
        s_mov_b64 exec, 0x1ff
        L_Bp:
        s_waitcnt vmcnt(0)
        v_cmp_ne_u32 vcc, v232, v249
        s_cbranch_vccz L_Bpd
        buffer_load_dword v232, v255, s[24:27], s75 offen sc1
        s_sub_u32 s5, s5, 1
        s_cbranch_scc0 L_Bp
        s_waitcnt vmcnt(0)
        L_Bpd:
        s_mov_b64 exec, -1'''))
        ops.append(('t', s.tst(13)))
        t = f's_mov_b32 s4, s33\n'
        for i in range(8):
            t += f's_add_u32 s4, s4, 1\n s_cmp_eq_u32 s4, 9\n s_cselect_b32 s4, 0, s4\n s_lshl_b32 s5, s4, 11\n s_add_u32 s5, s5, s74\n'
            t += f'buffer_load_dwordx4 {vr(8+8*i,4)}, v248, s[24:27], s5 offen sc1\n buffer_load_dwordx4 {vr(12+8*i,4)}, v248, s[24:27], s5 offen offset:1024 sc1\n'
        ops.append(('t', t))
        pend = []
        for p in range(2, 18):
            ops.append(('t', f's_waitcnt vmcnt({17-p})'))
            ops += mm(p, pend)
            if p + 9 < 18: pend = rd(p+9)
        a(resolve(ops, loop=False))
        s.ts(14)
        for c in range(4):
            for h in range(2): a(f'v_cvt_pk_bf16_f32 v{ACC+4*c+h}, v{ACC+4*c+2*h}, v{ACC+4*c+2*h+1}')
            a(f'ds_write_b64 v252, {vr(ACC+4*c,2)} offset:{32*c}')
        a(f'''s_waitcnt lgkmcnt(0)
        ds_read_b128 v[8:11], v253
        ds_read_b128 v[12:15], v253 offset:{8*144}
        s_add_u32 s4, s73, {16*2304}
        s_waitcnt lgkmcnt(1)
        buffer_store_dwordx4 v[8:11], v254, s[20:23], s73 offen {s.o.osf}
        s_waitcnt lgkmcnt(0)
        buffer_store_dwordx4 v[12:15], v254, s[20:23], s4 offen {s.o.osf}''')
        s.ts_dump(16)
        if s.o.x_delay:
            a(f'''s_or_b32 s4, s2, s3
            s_cmp_lg_u32 s4, 0
            s_cbranch_scc1 L_end
            {'s_or_b32 s5, s96, 0x80000000' if s.o.x_dbase else 'v_readfirstlane_b32 s5, v249'}
            s_movk_i32 s36, 20000
            L_dly:
            s_memrealtime s[6:7]
            s_waitcnt lgkmcnt(0)
            s_or_b32 s6, s6, 0x80000000
            s_sub_u32 s6, s6, s5
            s_cmp_ge_u32 s6, {s.o.x_delay}
            s_cbranch_scc1 L_end
            s_sub_u32 s36, s36, 1
            s_cbranch_scc0 L_dly''')
        a('s_endpgm')
    def a_part(s):
        a = s.a; o = s.o
        a('L_A:')
        if not o.doA: a('s_endpgm'); return
        import genA
        genA.a_part(s)
    def build(s):
        s.entry(); s.b_loader(); s.b_compute(); s.b_attn(); s.b2(); s.a_part()
        s.a('L_end:\n L_last:\n s_endpgm')
        return single_file(haz.fix(s.a.text()), NWG, 512, LDS_BYTES)
def gen(**kw):
    o = Opt()
    for k, v in kw.items(): setattr(o, k, v)
    return G(o).build()
if __name__ == '__main__':
    kw = {}
    for x in sys.argv[2:]:
        k, v = x.split('='); kw[k] = eval(v)
    open(sys.argv[1], 'w').write(gen(**kw))
```

```python
from gen import *
AST = 4*BL
def a_part(s):
    a = s.a; o = s.o
    a(f'''s_sub_u32 s33, s33, 18
    s_mul_i32 s40, s32, 6
    s_add_u32 s40, s40, s33
    s_cmp_ge_u32 s33, 6
    s_cselect_b32 s6, 6, 0
    s_addc_u32 s32, s32, 0
    s_sub_u32 s33, s33, s6
    s_mul_i32 s34, s33, 3
    s_lshr_b32 s34, s34, 1
    s_mul_i32 s34, s34, {o.rota}
    s_cmp_lt_u32 s3, 4
    s_cbranch_scc1 L_Ac''')
    a(f'''s_sub_u32 s39, s3, 4
    v_and_b32 v1, 7, v0
    v_lshlrev_b32 v1, 4, v1
    v_bfe_u32 v2, v0, 3, 1
    v_bfe_u32 v3, v0, 4, 1
    v_lshrrev_b32 v4, 5, v0
    v_lshl_add_u32 v2, v3, 4, v2
    v_lshl_add_u32 v2, v4, 2, v2
    s_and_b32 s6, s39, 1
    s_lshl_b32 s6, s6, 1
    s_lshr_b32 s7, s39, 1
    s_lshl_b32 s7, s7, 3
    s_add_u32 s6, s6, s7
    v_add_u32 v2, s6, v2
    v_mul_u32_u24 v2, {32*1152}, v2
    v_add_u32 v2, v2, v1
    s_mul_i32 s63, s32, 2304
    s_mul_i32 s64, s39, 1056
    s_mov_b32 s66, 0
    s_waitcnt lgkmcnt(0)
    s_mov_b32 s8, s4
    s_mov_b32 s9, s5
    L_Ald:''')
    def stage(lab, n):
        a('s_lshl_b32 s68, s34, 7\n s_add_u32 s68, s68, s63')
        for b in range(4):
            s.dma('s64', b*BL, 's68', (1024*(b & 1) + (b >> 1))*1152, 'v2', 's[8:11]')
        a(f'''s_add_u32 s34, s34, 1
        s_cmp_eq_u32 s34, 9
        s_cselect_b32 s34, 0, s34
        s_add_u32 s64, s64, {AST}
        s_add_u32 s66, s66, 1
        s_cmp_lt_u32 s66, {n}
        s_cbranch_scc1 {lab}''')
    ap = o.apos
    stage('L_Ald', ap)
    a(f'''v_lshlrev_b32 v5, 4, v0
    v_mov_b32 v8, -1
    v_mov_b32 v9, -1
    v_mov_b32 v10, -1
    v_mov_b32 v11, -1
    s_mul_i32 s6, s40, 24576
    s_mul_i32 s7, s39, 6144
    s_add_u32 s6, s6, s7
    v_lshrrev_b32 v6, 4, v0
    v_mul_u32_u24 v6, 147456, v6
    v_and_b32 v7, 0xf0, v5
    v_add_u32 v6, v6, v7''')
    a(f's_mul_i32 s50, s40, 768\n s_mul_i32 s7, s39, {8*73728}\n s_add_u32 s50, s50, s7')
    P = []
    for base in (WS_XC, WS_O):
        for h in range(2):
            for k in range(3): P.append(f's_add_u32 s7, s6, {base + 3072*h}\n buffer_store_dwordx4 v[8:11], v5, s[24:27], s7 offen offset:{1024*k} {o.psf}')
    for cl in range(2):
        for k in range(3): P.append(f's_add_u32 s7, s50, {WS_U + 73728*cl}\n buffer_store_dwordx4 v[8:11], v6, s[24:27], s7 offen offset:{256*k} sc1')
    n = 0; b = 0
    while n < 18:
        a(f's_waitcnt vmcnt({32-4*b+n})\n s_barrier')
        for y in P[n:n+o.aper]: a(y)
        n = min(18, n + o.aper); b += 1
    a(f's_waitcnt vmcnt({32-4*b+n})\n s_barrier\n s_waitcnt vmcnt(0)\n s_barrier')
    b += 2
    assert b <= 9
    a('s_cmp_lg_u32 s3, 4\n s_cbranch_scc1 L_Ald3\n v_mov_b32 v8, 1\n s_lshl_b32 s6, s32, 4\n s_mov_b64 exec, 1\n buffer_atomic_add v8, off, s[28:31], s6\n L_Ald3:')
    a('s_endpgm')
    ACC, HID, XB, FF = 8, 72, 144, 208
    a('L_Ac:')
    s.prefetch(250)
    a('s_cmp_eq_u32 s3, 3\n s_cbranch_scc1 L_end')
    a(f'''v_and_b32 v240, 15, v0
    v_lshrrev_b32 v241, 4, v0
    s_mul_i32 s41, s33, 3
    s_add_u32 s41, s41, s3
    s_lshl_b32 s6, s41, 4
    v_add_u32 v242, s6, v240
    v_mul_u32_u24 v243, 911, v242
    v_lshrrev_b32 v243, 16, v243
    v_mul_u32_u24 v244, 287, v243
    v_lshlrev_b32 v245, 2, v242
    v_sub_u32 v244, v245, v244
    v_cvt_f32_u32 v245, v244
    v_mul_f32 v245, {fb(1/576)}, v245
    v_and_b32 v246, 1, v244
    v_mul_u32_u24 v246, 0x8000, v246
    v_lshl_or_b32 v246, v246, 16, v246
    s_lshl_b32 s6, s34, 6
    v_lshl_add_u32 v247, v241, 3, s6
    v_cvt_f32_u32 v247, v247''')
    T = XB
    for i in range(9):
        a(f'v_mul_f32 v{T}, v247, v245\n v_add_f32 v247, {fb(32.0)}, v247\n v_fract_f32 v{T}, v{T}')
        for j in range(1, 8): a(f'v_add_f32 v{T+j}, v{T+j-1}, v245')
        for j in range(8): a(f'v_cos_f32 v{T+8+j}, v{T+j}')
        for j in range(8): a(f'v_sin_f32 v{T+j}, -v{T+j}')
        for h in range(4): a(f'v_cvt_pk_bf16_f32 v{HID+8*i+h}, v{T+8+2*h}, v{T+9+2*h}')
        for h in range(4): a(f'v_cvt_pk_bf16_f32 v{HID+8*i+4+h}, v{T+2*h}, v{T+1+2*h}')
    a('s_cmp_lg_u32 s41, 0\n s_cbranch_scc1 L_Ac1\n s_mov_b32 exec_lo, 0x10001\n s_mov_b32 exec_hi, 0x10001\n s_mov_b32 s6, 0xbf803f80')
    for i in range(9):
        for h in range(4): a(f'v_mov_b32 v{HID+8*i+4+h}, s6')
    a('s_mov_b64 exec, -1\n L_Ac1:')
    a(f'''v_lshrrev_b32 v1, 1, v240
    v_cvt_f32_u32 v1, v1
    v_mul_f32 v1, {fb(1/64)}, v1
    v_and_b32 v2, 1, v240
    v_cvt_f32_u32 v2, v2
    v_mul_f32 v2, {fb(0.25)}, v2
    v_lshlrev_b32 v3, 3, v241
    v_cvt_f32_u32 v3, v3
    v_add_f32 v4, {fb(32.0)}, v3
    v_cmp_eq_u32 vcc, 1, v240
    v_cndmask_b32 v5, v1, 0.5, vcc
    v_cndmask_b32 v6, v2, 0, vcc''')
    for m in range(4):
        w, ph = ('v5', 'v6') if m == 0 else ('v1', 'v2')
        if m: a(f'v_add_f32 v1, {fb(0.125)}, v1')
        for q in range(2):
            a(f'v_fma_f32 v{T}, v{3+q}, {w}, {ph}')
            for j in range(1, 8): a(f'v_add_f32 v{T+j}, v{T+j-1}, {w}')
            for j in range(8): a(f'v_cos_f32 v{T+j}, v{T+j}')
            for h in range(4): a(f'v_cvt_pk_bf16_f32 v{FF+8*m+4*q+h}, v{T+2*h}, v{T+1+2*h}')
    a(f'''v_bfe_u32 v6, v0, 1, 2
    v_and_b32 v7, 1, v0
    v_bfe_u32 v4, v0, 3, 1
    v_lshl_add_u32 v7, v4, 1, v7
    v_and_b32 v4, 0x30, v0
    v_lshl_add_u32 v7, v7, 7, v4
    v_mul_u32_u24 v2, 1056, v6
    v_add_u32 v2, v2, v7
    v_add_u32 v3, {3*AST}, v2
    v_add_u32 v4, {6*AST}, v2
    s_waitcnt lgkmcnt(0)''')
    s.ts(1)
    a('s_barrier')
    s.ts(2)
    def rdx(ks):
        st = ks >> 1
        return [('r', f'ds_read_b128 {vr(XB+32*(ks&1)+4*t,4)}, v{2+st//3} offset:{(st%3)*AST+(t>>1)*BL+(t&1)*512+(ks&1)*64}', R(XB+32*(ks&1)+4*t, 4)) for t in range(8)]
    ops = rdx(0)
    for ks in range(18):
        pend = []
        if ks < 17:
            if ks & 1: ops.append(('t', 's_barrier'))
            pend += rdx(ks+1)
        if 1 <= ks <= 9: pend += [('t', f'v_xor_b32 v{HID+8*(ks-1)+h}, v246, v{HID+8*(ks-1)+h}') for h in range(8)]
        for t in range(8):
            for ab in range(2):
                x = XB+32*(ks&1)+4*t; acc = ACC + 32*ab + 4*t
                ops.append(('m', f'{MF} {vr(acc,4)}, {vr(x,4)}, {vr(HID+8*(ks%9)+4*ab,4)}, {vr(acc,4) if ks else 0}', R(x, 4)))
                if pend: ops.append(pend.pop(0))
        ops += pend
    a(resolve(ops, loop=False, cap=4))
    s.ts(3)
    Z, U = XB, HID
    a(f'''s_mul_i32 s6, s32, 4608
    v_mul_u32_u24 v5, 147456, v241
    v_lshl_add_u32 v5, v242, 4, v5
    v_add_u32 v5, s6, v5''')
    for k in range(8):
        for h in range(4): a(f'v_cvt_pk_bf16_f32 v{Z+4*k+h}, v{ACC+8*k+2*h}, v{ACC+8*k+2*h+1}')
    for m in range(4):
        for q in range(2):
            for ab in range(2):
                for s2 in range(2):
                    u = U + 16*m + 8*ab + 4*s2
                    a(f'{MF} {vr(u,4)}, {vr(FF+8*m+4*q,4)}, {vr(Z+16*ab+8*s2+4*q,4)}, {vr(u,4) if q else 0}')
        for mm in ([m-1] if m else []) + ([3] if m == 3 else []):
            for cl in range(2):
                g = ACC + 8*mm + 4*cl
                for ab in range(2):
                    for ri in range(2):
                        u = U + 16*mm + 8*ab + 2*cl + ri
                        a(f'v_cvt_pk_bf16_f32 v{g+2*ab+ri}, v{u}, v{u+4}')
                a(f'v_min_u32 v{g}, -2, v{g}\n s_mov_b32 s6, {WS_U + (8*mm+cl)*73728}\n buffer_store_dwordx4 {vr(g,4)}, v5, s[24:27], s6 offen sc1')
    a('v_lshlrev_b32 v248, 4, v240\n buffer_load_dword v249, v248, s[28:31], 0 offen sc1')
    s.ts(4)
    CF, UD, AC2, AD = 72, 136, 8, 216
    CS = 200
    a(f'''s_mul_i32 s42, s40, 43
    s_lshr_b32 s42, s42, 7
    s_mul_i32 s6, s42, 3
    s_sub_u32 s43, s40, s6
    s_mul_i32 s43, s43, 3
    s_add_u32 s43, s43, s3
    v_lshlrev_b32 v3, 3, v241
    v_cvt_f32_u32 v3, v3
    s_mov_b32 s44, 0x80008000''')
    def trig(cl):
        a(f'v_lshl_add_u32 v1, v240, 6, {cl}\n v_cvt_f32_u32 v1, v1\n v_mul_f32 v1, {fb(1/2048)}, v1')
        for tt in range(2):
            if tt: a('v_add_f32 v1, 0.5, v1')
            a(f'v_mul_f32 v{UD}, v3, v1')
            for j in range(1, 8): a(f'v_add_f32 v{UD+j}, v{UD+j-1}, v1')
            for j in range(8): a(f'v_cos_f32 v{UD+8+j}, v{UD+j}')
            for j in range(8): a(f'v_sin_f32 v{UD+j}, v{UD+j}')
            for q in range(4): a(f'v_cvt_pk_bf16_f32 v{CS+8*tt+q}, v{UD+8+2*q}, v{UD+9+2*q}')
            for q in range(4): a(f'v_cvt_pk_bf16_f32 v{CS+8*tt+4+q}, v{UD+2*q}, v{UD+1+2*q}')
    trig('s42')
    for tt in range(2):
        for q in range(4):
            c = CS+8*tt+q; sn = c+4; M = CF + 16*tt + 4*q; N = M + 32
            a(f'''v_mov_b32 v{M}, v{c}
            v_mov_b32 v{M+1}, v{sn}
            v_mov_b32 v{M+2}, v{sn}
            v_xor_b32 v{M+3}, s44, v{c}
            v_mov_b32 v{N}, v{c}
            v_mov_b32 v{N+1}, v{sn}
            v_xor_b32 v{N+2}, s44, v{sn}
            v_mov_b32 v{N+3}, v{c}''')
    a('s_mov_b32 s45, s42\n s_cmp_lg_u32 s42, 0\n s_cbranch_scc1 L_Ac2\n s_mov_b32 s45, 32')
    trig('32')
    for tt in range(2):
        for q in range(4):
            c = CS+8*tt+q; sn = c+4; M = CF + 16*tt + 4*q; N = M + 32
            a(f'''v_mov_b32 v{M+1}, 0
            v_mov_b32 v{M+3}, 0
            v_mov_b32 v{N}, 0
            v_mov_b32 v{N+1}, v{c}
            v_mov_b32 v{N+2}, 0
            v_xor_b32 v{N+3}, s44, v{sn}''')
    a('L_Ac2:')
    a(f'''s_lshl_b32 s6, s43, 6
    v_lshl_add_u32 v1, v240, 2, s6
    v_mul_u32_u24 v2, 18432, v241
    s_movk_i32 s7, 288
    v_cmp_gt_u32 s[46:47], s7, v1
    v_cmp_eq_u32 s[48:49], s7, v1
    v_cmp_eq_u32 s[50:51], 0, v1''')
    for j in range(4):
        a(f'''v_add_u32 v3, {j}, v1
        v_sub_u32 v4, 576, v3
        v_cndmask_b32 v3, v4, v3, s[46:47]''')
        if j == 0: a('v_cndmask_b32 v3, v3, 0, s[48:49]')
        a(f'''v_and_b32 v4, 3, v3
        v_lshrrev_b32 v3, 2, v3
        v_mul_u32_u24 v4, 72, v4
        v_add_u32 v3, v3, v4
        v_lshl_add_u32 v{232+j}, v3, 4, v2''')
    a(f'''s_or_b64 s[50:51], s[50:51], s[48:49]
    v_lshlrev_b32 v1, 1, v1
    v_lshlrev_b32 v2, 8, v241
    v_add_u32 v3, s42, v2
    v_sub_u32 v4, 2048, v3
    v_cndmask_b32 v3, v4, v3, s[46:47]
    v_add_u32 v5, s45, v2
    v_sub_u32 v4, 2048, v5
    v_cndmask_b32 v5, v5, v4, s[46:47]
    v_mov_b32 v6, {64*2304}
    v_mov_b32 v7, {-64*2304 & 0xffffffff}
    v_cndmask_b32 v6, v7, v6, s[46:47]
    v_lshlrev_b32 v7, 4, v6
    s_movk_i32 s6, 2304
    v_mad_u32_u24 v{AD}, v3, s6, v1
    v_mad_u32_u24 v{AD+8}, v5, s6, v1''')
    for i in range(1, 4): a(f'v_add_u32 v{AD+i}, v{AD+i-1}, v6\n v_sub_u32 v{AD+8+i}, v{AD+8+i-1}, v6')
    for i in range(4): a(f'v_add_u32 v{AD+4+i}, v{AD+i}, v7\n v_sub_u32 v{AD+12+i}, v{AD+8+i}, v7')
    a(f'''v_and_b32 v3, 2047, v3
    v_mad_u32_u24 v{AD}, v3, s6, v1
    s_mul_i32 s52, s42, 73728
    s_movk_i32 s5, {SPIN}''')
    for q in range(4): a(f's_add_u32 s{56+q}, s52, {WS_U + q*4608}')
    s.ts(5)
    a(f'''s_waitcnt vmcnt(0)
    L_An:
    v_cmp_ne_u32 vcc, 6, v249
    s_cbranch_vccz L_And
    buffer_load_dword v249, v248, s[28:31], 0 offen sc1
    s_sub_u32 s5, s5, 1
    s_waitcnt vmcnt(0)
    s_cbranch_scc0 L_An
    L_And:
    s_movk_i32 s5, {SPIN}''')
    s.ts(6)
    order = [1, 2, 3, 0]
    ld = lambda q: '\n'.join(f'buffer_load_dwordx4 {vr(UD+16*q+4*j,4)}, v{232+j}, s[24:27], s{56+q} offen sc1' for j in range(4))
    for q in range(4): a(ld(q))
    retry = []
    for q in range(4):
        u = UD + 16*q
        a(f's_waitcnt vmcnt({12-4*q})\n L_Ak{q}:\n v_max3_u32 v1, v{u}, v{u+4}, v{u+8}\n v_max_u32 v1, v1, v{u+12}\n v_cmp_eq_u32 vcc, -1, v1\n s_cbranch_vccnz L_Ak{q}r\n L_Ak{q}d:')
        retry.append(f'L_Ak{q}r:\n s_sub_u32 s5, s5, 1\n s_cmp_lt_i32 s5, 0\n s_cbranch_scc1 L_Ak{q}d\n' + '\n'.join(ld(k) for k in range(q, 4)) + f'\n s_waitcnt vmcnt({12-4*q})\n s_branch L_Ak{q}')
        if q == 0: s.ts(9)
        u = UD + 16*q
        a(f'''v_cndmask_b32 v{u}, v{u}, v{u+2}, s[48:49]
        v_cndmask_b32 v{u+1}, v{u+1}, v{u+3}, s[48:49]
        v_cndmask_b32 v{u+2}, v{u+2}, 0, s[50:51]
        v_cndmask_b32 v{u+3}, v{u+3}, 0, s[50:51]''')
        for st in range(4):
            for j in order:
                acc = AC2 + 16*st + 4*j
                a(f'{MF} {vr(acc,4)}, {vr(CF+16*st+4*q,4)}, {vr(u+4*j,4)}, {vr(acc,4) if q else 0}')
    s.ts(7)
    for st in range(4):
        for i in range(4):
            b = AC2 + 16*st + i; d = UD + 8*st + 2*i
            a(f'v_cvt_pk_bf16_f32 v{d}, v{b}, v{b+4}\n v_cvt_pk_bf16_f32 v{d+1}, v{b+8}, v{b+12}')
            a(f'buffer_store_dwordx2 {vr(d,2)}, v{AD+4*st+i}, s[20:23], 0 offen {o.osf}')
    s.ts(8)
    s.ts_dump(16, 'a')
    a('s_endpgm')
    for r in retry: a(r)
```

```python
import sys, struct, math
sys.path.insert(0, 'v1')
from asmlib import *
import haz
def fb(x): return hex(struct.unpack('<I', struct.pack('<f', x))[0])
WS_U, WS_O, WS_XC, WS_FO, WS_FU, WS_TS = 0, 0x400000, 0x800000, 0xC00000, 0xC40000, 0xD00000
SL = 44416; L_X = 0; L_WV = 16896; L_XH = 25344; L_WQK = 27520; BL = 4224
QS = L_WQK; KS = SL + L_WQK; VS = 2*SL + L_WQK
HS = 3*SL; TR = HS + 4096; L_NON = TR + 8*2304; LDS_BYTES = L_NON + 128
NWG = 240
SPIN = 30000
class Opt:
    meas = None; tsel = None
    prof = False; x_dbase = 0; osf = 'sc0 sc1'; swap = 0; x_early = 0; cat = 0; ldx = ''; ldw = ''; ldo = ''; lda = ''; cshare = 1; x_delay = 0; hold = 1; x_ack = 0; xst = 'sc1'; xld = 'sc1'; x_late = 0; x_nowo = False; bmap = 1; x_cnt = False; rotg = 0; touch = 0; cpos = 4; x_nold = False; x_nomm = False; x_nord = False; clk = 's_memrealtime'; rotc = 0; rota = 1; ldf = ''; doA = True; doB = True; pre = True
MF = 'v_mfma_f32_16x16x32_bf16'
MF16 = 'v_mfma_f32_16x16x16_bf16'

def resolve(ops, loop=True, cap=5):
    out = []
    seq = 0; last = {}; done = -1
    for it in range(2 if loop else 1):
        out = []
        for o in ops:
            if o[0] == 'r':
                for r in o[2]: last[r] = seq
                seq += 1; out.append(o[1])
            elif o[0] == 'm':
                nd = max([last.get(r, -1) for r in o[2]])
                if nd > done:
                    n = min(seq - 1 - nd, cap)
                    out.append(f's_waitcnt lgkmcnt({n})'); done = seq - 1 - n
                out.append(o[1])
            elif o[0] == 'w0':
                out.append('s_waitcnt lgkmcnt(0)'); done = seq - 1
            else: out.append(o[1])
    return '\n'.join(out)
def R(b, n): return list(range(b, b+n))

class G:
    def __init__(s, o):
        s.o = o; s.a = Asm(); s.nts = 0
    def ts(s, i):
        if s.o.prof: s.a(s.tst(i))
    def tsl(s, lvl):
        if s.o.prof and s.o.x_early == lvl:
            s.a(f'{s.o.clk} s[98:99]\n s_add_u32 m0, s66, 3\n s_waitcnt lgkmcnt(0)\n s_movreld_b32 s80, s98')
    def tse(s, i, cond=None):
        if s.o.prof and s.o.x_early == 1:
            s.nts += 1
            if cond is not None: s.a(f's_cmp_lg_u32 s66, {cond}\n s_cbranch_scc1 L_tse{s.nts}')
            s.a(f'{s.o.clk} s[98:99]\n s_waitcnt lgkmcnt(0)\n s_mov_b32 s{80+i}, s98\n L_tse{s.nts}:')
    def tst(s, i):
        if s.o.prof and s.o.tsel:
            if i not in s.o.tsel: return ''
            k = 80 + 2*s.o.tsel.index(i)
            return f'{s.o.clk} s[{k}:{k+1}]'
        if s.o.x_early and (9 if s.o.x_early == 1 else 5) <= i <= 14: return ''
        return f'{s.o.clk} s[98:99]\n s_waitcnt lgkmcnt(0)\n s_mov_b32 s{80+i}, s98' if s.o.prof else ''
    def ts_dump(s, n, part='b'):
        if not s.o.prof: return
        a = s.a
        a('s_waitcnt vmcnt(0)')
        s.ts(n-1)
        if s.o.meas:
            S, who = s.o.meas
            if (who == 'a') != (part == 'a'): return
            s.nts += 1; L = f'L_ms{s.nts}'
            if who == 'c': a('s_cmp_ge_u32 s3, 4\n s_cbranch_scc1 L_end')
            if who == 'h': a('s_cmp_lt_u32 s3, 4\n s_cbranch_scc1 L_end')
            a(f'''s_movk_i32 s36, 20000
            {L}:
            s_memrealtime s[6:7]
            s_waitcnt lgkmcnt(0)
            s_sub_u32 s6, s6, s{80 + 2*s.o.tsel.index(S)}
            s_cmp_ge_u32 s6, 2000
            s_cbranch_scc1 L_end
            s_sub_u32 s36, s36, 1
            s_cbranch_scc0 {L}''')
            return
        a(f's_lshl_b32 s4, s2, 3\n s_add_u32 s4, s4, s3\n s_lshl_b32 s4, s4, 6\n s_add_u32 s4, s4, {WS_TS}\n s_mov_b64 exec, 1\n v_mov_b32 v1, 0')
        a('s_waitcnt lgkmcnt(0)')
        for i in range(n):
            k = 80 + i if not s.o.tsel else (80 + 2*s.o.tsel.index(i) if i in s.o.tsel else 80)
            a(f'v_mov_b32 v2, s{k}\n buffer_store_dword v2, v1, s[24:27], s4 offen offset:{4*i}')
    def dma(s, ldsreg, ldsoff, kreg, koff, voff, srd, fl=''):
        s.a(f's_add_u32 m0, {ldsreg}, {ldsoff}\n s_add_u32 s7, {kreg}, {koff}')
        if not s.o.x_nold: s.a(f'buffer_load_dwordx4 {voff}, {srd}, s7 offen {s.o.ldf or fl} lds')
    def srds(s):
        s.a('''s_mov_b32 s14, 1990656
        s_mov_b32 s15, s11
        s_mov_b32 s18, 663552
        s_mov_b32 s19, s11
        s_mov_b32 s22, 4718592
        s_mov_b32 s23, s11
        s_mov_b32 s26, 0x1000000
        s_mov_b32 s27, s11
        s_movk_i32 s30, 256
        s_mov_b32 s31, s11''')
    def prefetch(s, r=232):
        if not s.o.pre: return
        s.nts += 1; L = f'L_pc{s.nts}'
        s.a(f'''s_getpc_b64 s[36:37]
        {L}:
        s_sub_u32 s36, s36, {L}-L_top
        s_subb_u32 s37, s37, 0
        s_lshl_b32 s38, s3, 13
        v_lshl_add_u32 v{r}, v0, 7, s38
        v_min_u32 v{r}, L_last-L_top, v{r}
        global_load_dword v{r+1}, v{r}, s[36:37]''')
    def nonce_wait(s, lab, v):
        s.a(f'''s_movk_i32 s5, {SPIN}
        {lab}:
        s_waitcnt vmcnt(0)
        v_cmp_ne_u32 vcc, 0, v{v}
        s_cbranch_vccnz {lab}d
        buffer_load_dword v{v}, off, s[28:31], 0 sc1
        s_sub_u32 s5, s5, 1
        s_cbranch_scc0 {lab}
        s_waitcnt vmcnt(0)
        {lab}d:''')
    def entry(s):
        a = s.a
        a(f'''L_top:
        s_cmpk_ge_u32 s2, {NWG}
        s_cbranch_scc1 L_end
        s_load_dwordx2 s[8:9], s[0:1], 40
        s_load_dwordx2 s[12:13], s[0:1], 48
        s_load_dwordx2 s[4:5], s[0:1], 0
        s_load_dwordx2 s[16:17], s[0:1], 56
        s_load_dwordx2 s[20:21], s[0:1], 64
        s_load_dwordx2 s[28:29], s[0:1], 72
        s_load_dwordx2 s[24:25], s[0:1], 80''')
        if s.o.prof: a(f'{s.o.clk} s[80:81]')
        if s.o.x_dbase: a('s_memrealtime s[96:97]')
        a(f'''v_lshrrev_b32 v1, 6, v0
        v_and_b32 v0, 63, v0
        v_readfirstlane_b32 s3, v1
        s_mov_b32 s10, 2359296
        s_mov_b32 s11, 0x20000''')
        s.srds()
        if s.o.swap: a('s_xor_b32 s3, s3, 4')
        a(f'''s_and_b32 s32, s2, 7
        s_lshl_b32 s32, s32, 1
        s_lshr_b32 s33, s2, 3
        s_cmp_ge_u32 s33, 18
        s_cbranch_scc1 L_A
        s_cmp_ge_u32 s33, 9
        s_cselect_b32 s6, 9, 0
        s_addc_u32 s32, s32, 0
        s_sub_u32 s33, s33, s6''')
        if s.o.bmap > 1:
            m = s.o.bmap; lg = m.bit_length() - 1
            a(f'''s_and_b32 s6, s2, {m-1}
            s_mul_i32 s6, s6, 18
            s_lshr_b32 s7, s2, 3
            s_add_u32 s6, s6, s7
            s_lshr_b32 s33, s6, {lg+1}
            s_and_b32 s6, s6, {2*m-1}
            s_and_b32 s7, s2, {7 & ~(m-1)}
            s_lshl_b32 s7, s7, 1
            s_add_u32 s32, s7, s6''')
        a(f'''s_cmp_lt_u32 s3, 4
        s_cbranch_scc1 L_Bc''')
        if not s.o.doB: a('s_endpgm')
    def b_loader(s):
        a = s.a; o = s.o
        a(f'''s_sub_u32 s39, s3, 4
        v_and_b32 v1, 7, v0
        v_lshlrev_b32 v1, 4, v1
        v_bfe_u32 v2, v0, 3, 1
        v_bfe_u32 v3, v0, 4, 1
        v_lshrrev_b32 v4, 5, v0
        s_lshl_b32 s6, s39, 1
        v_lshl_add_u32 v5, v3, 3, v2
        v_add_u32 v5, s6, v5
        v_lshl_add_u32 v83, v4, 4, v5
        v_mul_u32_u24 v80, 2304, v83
        v_add_u32 v80, v80, v1
        v_lshl_add_u32 v6, v3, 2, v2
        v_lshl_add_u32 v6, v4, 4, v6
        s_and_b32 s34, s39, 1
        s_lshl_b32 s34, s34, 1
        s_lshr_b32 s35, s39, 1
        s_lshl_b32 s35, s35, 3
        s_add_u32 s34, s34, s35
        v_add_u32 v6, s34, v6
        v_mul_u32_u24 v82, 3456, v6
        s_lshl_b32 s35, s33, 7
        v_add3_u32 v82, v82, v1, s35
        v_add_u32 v6, s6, v2
        v_lshl_add_u32 v6, v6, 1, v3
        s_lshl_b32 s34, s32, 7
        s_sub_u32 s34, s34, 16
        s_max_i32 s34, s34, 0
        v_add_u32 v6, s34, v6
        v_mul_u32_u24 v81, 1152, v6
        v_add_u32 v81, v81, v1
        s_mul_i32 s63, s32, {128*1152}
        s_mul_i32 s34, s32, {o.rotc}
        s_mul_i32 s6, s33, {o.rotg}
        s_add_u32 s34, s34, s6
        s_mul_i32 s6, s34, 57
        s_lshr_b32 s6, s6, 9
        s_mul_i32 s6, s6, 9
        s_sub_u32 s34, s34, s6
        s_mul_i32 s64, s39, 1056
        s_mul_i32 s65, s39, 544
        s_mov_b32 s66, 0
        v_mov_b32 v248, 0
        v_mov_b32 v254, 0
        v_mov_b32 v255, 0
        s_waitcnt lgkmcnt(0)''')
        s.tse(9)
        a(f'''L_ld:
        s_lshl_b32 s67, s34, 7
        s_add_u32 s68, s67, s63
        s_mul_i32 s69, s34, {64*3456}''')
        for cw in range(4):
            s.dma('s64', L_X + cw*BL, 's68', (64*(cw >> 1) + (cw & 1))*1152, 'v80', 's[8:11]', o.ldx)
        a(f's_add_u32 m0, s65, {L_XH}\n s_mov_b32 exec_hi, 0')
        a(f'buffer_load_dwordx4 v81, s[8:11], s67 offen {o.ldf or o.ldx} lds\n s_mov_b32 exec_hi, -1')
        for ks in range(2):
            for m in range(2):
                s.dma('s64', L_WQK + (2*ks+m)*BL, 's69', ks*32*3456 + m*1152, 'v82', 's[12:15]', o.ldw)
        s.tse(10, 0)
        if o.cshare and o.cat == 0:
            a('s_cmp_eq_u32 s66, 0\n s_cbranch_scc1 L_const\n L_cret:')
        a('s_cmp_ge_u32 s66, 6\n s_cbranch_scc1 L_ld1')
        for ks in range(2):
            s.dma('s64', L_WV + ks*BL, 's69', ks*32*3456 + 2304, 'v82', 's[12:15]', o.ldw)
        s.tse(11, 0); s.tse(12, 1)
        if o.cshare and o.cat >= 1:
            a(f's_cmp_eq_u32 s66, {o.cat-1}\n s_cbranch_scc1 L_const\n L_cret:')
        a(f'''L_ld1:
        s_add_u32 s34, s34, 1
        s_cmp_eq_u32 s34, 9
        s_cselect_b32 s34, 0, s34
        s_add_u32 s64, s64, {SL}
        s_add_u32 s65, s65, {SL}
        s_cmp_ge_u32 s64, {3*SL}
        s_cselect_b32 s6, {3*SL}, 0
        s_sub_u32 s64, s64, s6
        s_sub_u32 s65, s65, s6
        s_add_u32 s66, s66, 1
        s_cmp_lt_u32 s66, 2
        s_cbranch_scc1 L_ld''')
        if not o.cshare:
            a(f's_cmp_lg_u32 s66, {o.cpos}\n s_cbranch_scc1 L_ld2')
            s.ts(1)
            s.b_const('h')
            s.ts(2)
        a('L_ld2:')
        s.tsl(4)
        a(f'''s_waitcnt vmcnt(11)
        s_cmp_lt_u32 s66, 7
        s_cbranch_scc1 L_ld3
        s_waitcnt vmcnt(9)
        L_ld3:''')
        s.tsl(3)
        a('s_barrier')
        s.tsl(2)
        a(f'''s_cmp_lt_u32 s66, 9
        s_cbranch_scc1 L_ld''')
        a('s_add_u32 s34, s34, 6')
        for i in range(3):
            a(f's_cmp_ge_u32 s34, 9\n s_cselect_b32 s6, 9, 0\n s_sub_u32 s34, s34, s6\n s_mul_i32 s69, s34, {64*3456}\n s_add_u32 s34, s34, 1')
            for ks in range(2):
                s.dma('s64', i*SL + L_WV + ks*BL, 's69', ks*32*3456 + 2304, 'v82', 's[12:15]', o.ldw)
        a(f'''v_mul_u32_u24 v83, 1152, v83
        v_add3_u32 v83, v83, v1, s35
        v_add_u32 v84, {32*1152}, v83
        s_mul_i32 s69, s33, {64*1152}
        s_waitcnt vmcnt(6)
        s_add_u32 s66, s66, 1''')
        s.tsl(3)
        a('s_barrier')
        s.tsl(2)
        for i in range(0 if o.x_nowo else 9):
            a(f'buffer_load_dwordx4 {vr(8+8*i,4)}, v83, s[16:19], s69 offen {o.ldf or o.ldo}\n buffer_load_dwordx4 {vr(12+8*i,4)}, v84, s[16:19], s69 offen {o.ldf or o.ldo}')
            if i < 8: a(f's_add_u32 s69, s69, {64*1152}\n s_cmp_eq_u32 s69, s18\n s_cselect_b32 s69, 0, s69')
        a('s_waitcnt vmcnt(0)' if o.x_nowo else 's_waitcnt vmcnt(18)')
        s.ts(3)
        a('s_branch L_Bqk')
    def b_const(s, sfx):
        a = s.a
        a(f'''v_and_b32 v216, 15, v0
        v_lshrrev_b32 v217, 4, v0
        v_lshlrev_b32 v218, 2, v217
        v_sub_u32 v219, v216, v218
        v_lshlrev_b32 v248, 4, v0
        s_lshr_b32 s6, s3, 1
        s_or_b32 s6, s6, s32
        s_cmp_eq_u32 s6, 0
        s_cselect_b32 s6, -16, -8
        v_mov_b32 v220, {fb(-1e30)}
        v_mov_b32 v222, 0xffff
        v_mov_b32 v223, 0xffff0000''')
        for i in range(4):
            a(f'''v_subrev_u32 v221, {i}, v219
            v_cmp_le_u32 s[40:41], 8, v221
            v_cmp_le_i32 s[42:43], s6, v221
            v_cmp_le_i32 s[44:45], 0, v221
            v_cndmask_b32 v{192+i}, 0, v220, s[40:41]
            v_cndmask_b32 v{196+i}, 0, v220, s[42:43]
            v_cndmask_b32 v{224+i}, 0, v{222+(i&1)}, s[44:45]''')
        a('v_or_b32 v200, v224, v225\n v_or_b32 v201, v226, v227')
        a(f'''s_lshl_b32 s6, s33, 6
        s_add_u32 s7, s6, 17
        s_mul_i32 s7, s7, 3641
        s_lshr_b32 s7, s7, 16
        s_mul_i32 s7, s7, 18
        s_sub_u32 s6, s7, s6
        s_mov_b32 s7, s6''')
        for t in range(4):
            if t: a(f's_cmp_eq_u32 s6, {18-2*t}\n s_cselect_b32 s4, -16, 2\n s_add_u32 s7, s7, s4')
            a(f's_sub_u32 s4, s7, 2\n v_cmp_gt_i32 s[{40+4*t}:{41+4*t}], s7, v218\n v_cmp_gt_i32 s[{42+4*t}:{43+4*t}], s4, v218')
        a(f'''s_mov_b32 s56, 0x07060500
        s_mov_b32 s57, 0x07060501
        s_mov_b32 s58, 0x07060502
        s_mov_b32 s59, 0x07060503
        s_mov_b32 s60, 0x0c0c0400
        s_mov_b32 s61, 0x05040100
        s_mov_b32 s62, {fb(math.log2(math.e)/math.sqrt(18))}
        s_and_b32 s70, s3, 3
        s_lshr_b32 s71, s3, 2
        s_lshl_b32 s72, s70, 1
        s_add_u32 s72, s72, s71
        s_lshl_b32 s6, s72, 11
        s_add_u32 s6, s6, {QS}
        v_add_u32 v202, s6, v248
        v_add_u32 v203, {VS-QS}, v202
        s_cmp_ge_u32 s3, 4
        s_cselect_b32 s4, 1, 3
        s_lshl_b32 s4, s4, 11
        s_sub_u32 s4, {KS-QS}, s4
        v_add_u32 v204, s4, v202
        v_add_u32 v205, {VS-KS}, v204
        s_cmp_ge_u32 s3, 2
        s_cbranch_scc1 L_Bc1{sfx}
        s_lshl_b32 s4, s3, 7
        s_add_u32 s4, s4, {HS}
        v_and_b32 v204, 0x370, v248
        v_add_u32 v204, s4, v204
        s_lshl_b32 s4, s3, 9
        s_add_u32 s4, s4, {HS+2048}
        v_and_b32 v205, 0x1f0, v248
        v_add_u32 v205, s4, v205
        L_Bc1{sfx}:
        s_lshr_b32 s4, s70, 1
        s_lshl_b32 s5, s4, 10
        s_and_b32 s6, s70, 1
        s_lshl_b32 s7, s6, 3
        s_add_u32 s5, s5, s7
        s_add_u32 s5, s5, {HS}
        v_add_u32 v206, s5, v248
        s_lshl_b32 s4, s4, 6
        s_add_u32 s4, s4, s6
        s_lshl_b32 s5, s71, 5
        s_add_u32 s4, s4, s5
        s_lshl_b32 s5, s32, 7
        s_add_u32 s4, s4, s5
        s_mul_i32 s4, s4, 2304
        s_lshl_b32 s5, s33, 7
        s_add_u32 s4, s4, s5
        s_add_u32 s73, s4, 1152
        v_lshrrev_b32 v221, 3, v0
        v_and_b32 v222, 0x70, v248
        v_mov_b32 v223, 4608
        v_mad_u32_u24 v254, v221, v223, v222
        s_mul_i32 s4, s3, 2304
        s_add_u32 s4, s4, {TR}
        v_mul_u32_u24 v253, 144, v221
        v_add3_u32 v253, v253, v222, s4
        v_mul_u32_u24 v252, 144, v216
        v_lshl_add_u32 v252, v217, 3, v252
        v_add_u32 v252, s4, v252
        v_bfe_u32 v221, v0, 3, 2
        v_mul_u32_u24 v221, 1056, v221
        v_bfe_u32 v222, v0, 2, 1
        v_lshl_add_u32 v221, v222, 7, v221
        v_and_b32 v222, 3, v0
        v_lshl_add_u32 v207, v222, 3, v221
        v_lshrrev_b32 v222, 5, v0
        v_lshl_add_u32 v250, v222, 8, v207
        v_add_u32 v251, 59968, v250
        v_lshl_add_u32 v207, v222, 9, v207
        s_mul_i32 s4, s70, 1056
        v_add_u32 v208, s4, v248
        v_add_u32 v209, 59968, v208
        v_lshlrev_b32 v255, 7, v0
        s_lshl_b32 s4, s32, 3
        s_add_u32 s4, s4, s72
        s_mul_i32 s74, s4, 18432
        s_add_u32 s74, s74, {WS_O}
        s_mul_i32 s75, s4, 1152
        s_add_u32 s75, s75, {WS_FO}
        s_mul_i32 s4, s32, 9
        s_add_u32 s4, s4, s33
        s_lshl_b32 s4, s4, 14
        s_lshl_b32 s5, s72, 10
        s_add_u32 s4, s4, s5
        s_add_u32 s76, s4, {WS_XC}
        s_add_u32 s77, s76, 8192
        s_cmp_eq_u32 s33, 0
        s_cselect_b32 s4, 0, 8192
        s_sub_u32 s78, s76, s4
        s_cmp_eq_u32 s33, 8
        s_cselect_b32 s4, 0, 8192
        s_add_u32 s79, s77, s4''')
    AV, HV, XB, WV_, AQ, AK, HK, WQ = 8, 40, 44, 212, 88, 120, 152, 156
    def frags(s, mode):
        F = []
        if 'q' in mode:
            for m, acc in ((0, s.AQ), (1, s.AK)):
                for i in range(2):
                    F.append((s.WQ + 8*m + 4*i, 4+i, lambda ks, m=m: L_WQK + (2*ks+m)*BL,
                              [(acc + 8*t + 4*i, t) for t in range(4)] + ([(s.HK, 4)] if m == 1 and i == 0 else []), 0))
        if 'v' in mode:
            for i in range(2):
                F.append((s.WV_ + 4*i, 4+i, lambda ks: L_WV + ks*BL, [(s.AV + 8*t + 4*i, t) for t in range(4)] + ([(s.HV, 4)] if i == 0 else []), 1))
        return F
    def rd_w(s, f, ks):
        return [('r', f'ds_read_b64_tr_b16 {vr(f[0]+2*h,2)}, v{f[1]} offset:{f[2](ks)+256*h}', R(f[0]+2*h, 2)) for h in range(2)]
    def rd_x(s, ks):
        b = s.XB + 20*ks
        return [('r', f'ds_read_b128 {vr(b+4*t,4)}, v{2 if t < 4 else 3} offset:{((t>>1)*2*BL+512*(t&1) if t < 4 else 0)+64*ks}', R(b+4*t, 4)) for t in range(5)]
    def mm(s, f, ks):
        r = []
        for acc, t in f[3]:
            x = s.XB + 20*ks + 4*t
            A, B = (x, f[0]) if f[4] else (f[0], x)
            r.append(('m', f'{MF} {vr(acc,4)}, {vr(A,4)}, {vr(B,4)}, {vr(acc,4)}', R(x, 4) + R(f[0], 4)))
        return r
    def stagew(s, base, areg, stg):
        for t in range(4):
            for i in range(2):
                b = base + 8*t + 4*i
                s.a(f'v_cvt_pk_bf16_f32 v{b}, v{b}, v{b+1}\n v_cvt_pk_bf16_f32 v{b+1}, v{b+2}, v{b+3}')
                s.a(f'ds_write_b64 v{areg+i}, {vr(b,2)} offset:{stg + (4*(t>>1)+(t&1))*2048}')
    def stage(s, mode, barrier, extra=[]):
        F = s.frags(mode); ops = []
        def issue(pend):
            while pend and pend[0][0] == 't' and pend[0][1].startswith('s_'): ops.append(pend.pop(0)); break
            if pend: ops.append(pend.pop(0))
        def phase(ks, pend, hold):
            for i, f in enumerate(F):
                if i == hold:
                    ops.extend(pend); pend.clear()
                    if barrier == 1: ops.extend([('w0',), ('t', 's_barrier')])
                    if barrier == 2: ops.extend([('w0',), ('t', 's_cbranch_scc0 L_Bnb\n s_barrier\n L_Bnb:')])
                    ops.extend([('t', f'v_add_u32 v{r}, s38, v{r}') for r in (4, 5)])
                    for g in F[:hold]: pend.extend(s.rd_w(g, 0))
                    pend.extend(s.rd_x(0))
                for m in s.mm(f, ks):
                    ops.append(m); issue(pend)
                if hold is None or i >= hold: pend.extend(s.rd_w(f, 1-ks))
            return pend
        sal = [('t', t) for t in ['s_add_u32 s36, s36, 1', 's_cmp_eq_u32 s36, 3', 's_cselect_b32 s36, 0, s36', f's_cselect_b32 s38, s37, {SL}'] + extra]
        pend = []
        for k, r in enumerate(s.rd_x(1)): pend += [sal[k], r]
        pend += [sal[5]] + [('t', f'v_add_u32 v{r}, s38, v{r}') for r in (2, 3)]
        pend = phase(0, pend, None)
        pend = phase(1, pend, s.o.hold if barrier else 0)
        ops.extend(pend)
        if s.o.x_nomm: ops = [x for x in ops if x[0] != 'm']
        if s.o.x_nord: ops = [x for x in ops if x[0] != 'r']
        return ops
    def b_compute(s):
        a = s.a; o = s.o
        a('L_Bc:')
        if not o.doB: a('s_endpgm')
        s.prefetch()
        a(f'''v_bfe_u32 v6, v0, 1, 2
        v_and_b32 v7, 1, v0
        v_bfe_u32 v4, v0, 3, 1
        v_lshl_add_u32 v7, v4, 1, v7
        v_and_b32 v4, 0x30, v0
        v_lshl_add_u32 v7, v7, 7, v4
        s_and_b32 s6, s3, 1
        s_mul_i32 s6, s6, {BL}
        v_mul_u32_u24 v2, 1056, v6
        v_add3_u32 v2, v2, v7, s6
        v_mul_u32_u24 v3, 544, v6
        v_add_u32 v3, v3, v7
        v_add_u32 v3, {L_XH}, v3''')
        for r in list(range(8, 44)) + list(range(88, 156)) + [80, 81, 82, 83]: a(f'v_mov_b32 v{r}, 0')
        a(f'''s_waitcnt lgkmcnt(0)
        s_or_b32 s6, s2, s3
        s_cmp_lg_u32 s6, 0
        s_cbranch_scc1 L_Bc2
        s_memrealtime s[6:7]
        s_waitcnt lgkmcnt(0)
        s_or_b32 s6, s6, 0x80000000
        v_mov_b32 v6, s6
        v_mov_b32 v7, 0
        s_mov_b64 exec, 1
        global_store_dword v7, v6, s[28:29] sc1
        s_mov_b64 exec, -1
        L_Bc2:''')
        if o.cshare: a('L_const:')
        s.b_const('c')
        if o.cshare:
            s.ts(1)
            a('s_cmp_ge_u32 s3, 4\n s_cbranch_scc1 L_cret')
        a(f'''s_lshl_b32 s6, s3, 5
        v_add_u32 v4, s6, v207
        s_xor_b32 s6, s6, 32
        v_add_u32 v5, s6, v207
        s_and_b32 s6, s3, 1
        s_mul_i32 s7, s6, 4104
        s_lshr_b32 s4, s3, 1
        s_lshl_b32 s4, s4, 10
        s_add_u32 s7, s7, s4
        s_add_u32 s7, s7, {QS}
        v_add_u32 v84, s7, v248
        v_xor_b32 v85, 8, v84
        v_add_u32 v86, {VS-QS}, v84
        v_xor_b32 v87, 8, v86
        s_mov_b32 s36, 0
        s_mov_b32 s37, {-2*SL & 0xffffffff}
        s_mov_b32 s35, 0''')
        if o.touch == 2:
            for r in ('s76', 's77'): a(f'buffer_load_dwordx4 v[236:239], v248, s[24:27], {r} offen\n buffer_load_dwordx4 v[236:239], v248, s[24:27], {r} offen offset:1024')
        if o.touch == 3:
            for r in ('s76', 's77'): a(f'buffer_store_dwordx4 v[8:11], v248, s[24:27], {r} offen sc1\n buffer_store_dwordx4 v[8:11], v248, s[24:27], {r} offen offset:1024 sc1')
        if o.touch == 1:
            a('s_mov_b64 exec, 1')
            for r in ('s76', 's78', 's79', 's74', 's75'): a(f'buffer_load_dword v233, off, s[24:27], {r} sc1')
            a('buffer_load_dword v233, off, s[20:23], s73\n buffer_load_dword v233, off, s[16:19], 0\n s_mov_b64 exec, -1')
        s.ts(1)
        a('s_barrier')
        s.ts(2)
        ops = s.rd_x(0)
        for f in s.frags('qkv'): ops += s.rd_w(f, 0)
        a(resolve(ops, loop=False))
        a('.p2align 3\n L_Bl1:')
        a(resolve(s.stage('qkv', True, ['s_add_u32 s35, s35, 1', 's_cmp_lt_u32 s35, 6'])))
        a('s_cbranch_scc1 L_Bl1')
        a('buffer_load_dword v249, off, s[28:31], 0 sc1')
        a('.p2align 3\n L_Bl2:')
        a(resolve(s.stage('qk', 2, ['s_add_u32 s35, s35, 1', 's_cmp_lt_u32 s35, 9'])))
        a('s_cbranch_scc1 L_Bl2')
        s.ts(3)
        s.stagew(s.AQ, 84, 0); s.stagew(s.AK, 84, KS-QS)
        a(f'v_cvt_pk_bf16_f32 v{s.HK}, v{s.HK}, v{s.HK+1}\n v_cvt_pk_bf16_f32 v{s.HK+1}, v{s.HK+2}, v{s.HK+3}\n ds_write_b64 v206, {vr(s.HK,2)}')
        a('s_cmp_lg_u32 s3, 0\n s_cbranch_scc1 L_Bn2')
        s.nonce_wait('L_Bn', 249)
        a(f'v_mov_b32 v6, {L_NON}\n ds_write_b32 v6, v249\n L_Bn2:\n s_waitcnt vmcnt(0) lgkmcnt(0)')
    QR, KC, KP, QM, LL, TT, PP, MM, IN, VV, OF = 88, 96, 104, 112, 128, 148, 160, 180, 216, 224, 240
    def Lr(s, sl): return {0: 128, 4: 132, 1: 136, 2: 140, 3: 144}[sl]
    def qmask(s, t, hi):
        for h in range(2):
            m = f's[{40+4*t+2*h}:{41+4*t+2*h}]'; q = f'v{s.QR+2*t+h}'
            s.a(f'v_cndmask_b32 v{s.QM+4*t+2*hi+h}, {q}, 0, {m}' if hi else f'v_cndmask_b32 v{s.QM+4*t+h}, 0, {q}, {m}')
    def bfly(s, n, op, mid):
        a = s.a; b, c, d, t = [f'v{s.MM+i}' for i in range(4)]
        if n == 3:
            a(f'''v_mov_b32 {t}, {d}
            v_permlane32_swap_b32 {b}, {c}
            v_permlane32_swap_b32 {d}, {t}
            {op} {b}, {b}, {c}
            {op} {d}, {d}, {t}
            v_permlane16_swap_b32 {b}, {d}
            {op} {b}, {b}, {d}
            {mid(d, b)}
            {mid(b, b)}
            v_permlane16_swap_b32 {b}, {d}
            v_mov_b32 {c}, {b}
            v_permlane32_swap_b32 {b}, {c}''')
        else:
            a(f'''v_permlane32_swap_b32 {b}, {c}
            {op} {t}, {b}, {c}
            {op} {b}, {b}, {c}
            v_permlane16_swap_b32 {b}, {t}
            {op} {b}, {b}, {t}
            {mid(c, b)}
            {mid(b, b)}
            v_permlane32_swap_b32 {b}, {c}''')
    def softmax(s, slots):
        a = s.a; n = len(slots)
        for j, sl in enumerate(slots):
            L = s.Lr(sl); a(f'v_max3_f32 v{s.MM+j}, v{L}, v{L+1}, v{L+2}')
        for j, sl in enumerate(slots):
            L = s.Lr(sl); a(f'v_max_f32 v{s.MM+j}, v{s.MM+j}, v{L+3}')
        s.bfly(n, 'v_max_f32', lambda d, x: f'v_mul_f32 {d}, s62, {x}')
        for j, sl in list(enumerate(slots))[::-1]:
            L = s.Lr(sl)
            for i in range(4): a(f'v_fma_f32 v{L+i}, v{L+i}, s62, -v{s.MM+j}')
            for i in range(4): a(f'v_exp_f32 v{L+i}, v{L+i}')
        for j, sl in list(enumerate(slots))[::-1]:
            L = s.Lr(sl); a(f'v_add_f32 v{s.MM+j}, v{L}, v{L+1}\n v_add_f32 v{s.MM+4+j}, v{L+2}, v{L+3}')
        for j, sl in list(enumerate(slots))[::-1]:
            a(f'v_add_f32 v{s.MM+j}, v{s.MM+j}, v{s.MM+4+j}')
        s.bfly(n, 'v_add_f32', lambda d, x: f'v_rcp_f32 {d}, {x}')
        for j, sl in list(enumerate(slots))[::-1]:
            L = s.Lr(sl); P = s.PP + 4*sl
            for i in range(4): a(f'v_mul_f32 v{L+i}, v{L+i}, v{s.MM+j}')
            for h in range(2): a(f'v_cvt_pk_bf16_f32 v{P+2+h}, v{L+2*h}, v{L+2*h+1}')
            for h in range(2): a(f'v_and_b32 v{P+h}, v{P+2+h}, v{200+h}')
            for h in range(2): a(f'v_xor_b32 v{P+2+h}, v{P+2+h}, v{P+h}')
    def b_attn(s):
        a = s.a; o = s.o
        a('L_Bqk:\n s_barrier')
        s.ts(4)
        a(f'v_mov_b32 v6, {L_NON}')
        for j in range(2):
            a(f'ds_read_b128 {vr(s.QR+4*j,4)}, v202 offset:{1024*j}')
            a(f'ds_read_b128 {vr(s.KC+4*j,4)}, v202 offset:{KS-QS+1024*j}')
            a(f'ds_read_b128 {vr(s.KP+4*j,4)}, v204 offset:{1024*j}')
        a('ds_read_b32 v249, v6')
        a('s_cmp_ge_u32 s3, 4\n s_cbranch_scc1 L_Bx0')
        for f in s.frags('v'):
            for r in s.rd_w(f, 0): a(r[1])
        a('s_waitcnt lgkmcnt(4)\n s_branch L_Bx1\n L_Bx0:\n s_waitcnt lgkmcnt(0)\n L_Bx1:')
        s.qmask(0, 0); s.qmask(3, 1)
        for j, (sl, k, q) in enumerate(((0, 0, s.QM), (4, 6, s.QM+14))):
            a(f'{MF16} {vr(s.Lr(sl),4)}, {vr(s.KC+k,2)}, {vr(q,2)}, v[192:195]')
            a(f'{MF16} {vr(s.TT+4*j,4)}, {vr(s.KP+k,2)}, {vr(q,2)}, v[196:199]')
        s.qmask(0, 1); s.qmask(1, 0); s.qmask(1, 1)
        for j, sl in enumerate((0, 4)):
            L = s.Lr(sl)
            for i in range(4): a(f'v_max_f32 v{L+i}, v{L+i}, v{s.TT+4*j+i}')
            for i in range(4): a(f'v_perm_b32 v{L+i}, v{L+i}, v249, s{56+i}')
            a(f'buffer_store_dwordx4 {vr(L,4)}, v248, s[24:27], s{76+j} offen {o.xst}')
        if o.x_ack: a('s_waitcnt vmcnt(0)')
        s.ts(5)
        a('s_cmp_ge_u32 s3, 4\n s_cbranch_scc1 L_BF')
        a('s_mov_b32 s35, 0\n .p2align 3\n L_Bl3:')
        a(resolve(s.stage('v', False, ['s_add_u32 s35, s35, 1', 's_cmp_lt_u32 s35, 3']), cap=6))
        a('s_cbranch_scc1 L_Bl3')
        s.stagew(s.AV, 86, 0)
        a(f'v_cvt_pk_bf16_f32 v{s.HV}, v{s.HV}, v{s.HV+1}\n v_cvt_pk_bf16_f32 v{s.HV+1}, v{s.HV+2}, v{s.HV+3}\n ds_write_b64 v206, {vr(s.HV,2)} offset:2048')
        inl = f'buffer_load_dwordx4 {vr(s.IN,4)}, v248, s[24:27], s78 offen {o.xld}\n buffer_load_dwordx4 {vr(s.IN+4,4)}, v248, s[24:27], s79 offen {o.xld}'
        a('s_waitcnt lgkmcnt(0)\n s_barrier\n' + inl)
        a('L_BF:')
        s.ts(6)
        s.qmask(2, 0); s.qmask(2, 1); s.qmask(3, 0)
        for sl in (1, 2, 3):
            a(f'{MF} {vr(s.Lr(sl),4)}, {vr(s.KC+2*sl-2,4)}, {vr(s.QM+4*sl-2,4)}, v[192:195]')
            a(f'{MF} {vr(s.TT+4*sl-4,4)}, {vr(s.KP+2*sl-2,4)}, {vr(s.QM+4*sl-2,4)}, v[196:199]')
        inl = f'buffer_load_dwordx4 {vr(s.IN,4)}, v248, s[24:27], s78 offen {o.xld}\n buffer_load_dwordx4 {vr(s.IN+4,4)}, v248, s[24:27], s79 offen {o.xld}'
        for sl in (1, 2, 3):
            for i in range(4): a(f'v_max_f32 v{s.Lr(sl)+i}, v{s.Lr(sl)+i}, v{s.TT+4*sl-4+i}')
        s.softmax((1, 2, 3))
        s.ts(7)
        a('s_cmp_lt_u32 s3, 4\n s_cbranch_scc1 L_Bw\n' + inl + '\n s_barrier\n L_Bw:')
        s.ts(8)
        for t in range(4):
            a(f'ds_read_b64 {vr(s.VV+4*t,2)}, v203 offset:{(t>>1)*1024+(t&1)*8}')
            a(f'ds_read_b64 {vr(s.VV+4*t+2,2)}, v205 offset:{(t>>1)*1024+(t&1)*8}')
        I = s.IN; T = s.TT
        a(f'''s_movk_i32 s5, {SPIN}
        L_By:
        s_waitcnt vmcnt(0)
        v_perm_b32 v{T}, v{I+1}, v{I}, s60
        v_perm_b32 v{T+1}, v{I+3}, v{I+2}, s60
        v_perm_b32 v{T+2}, v{I+5}, v{I+4}, s60
        v_perm_b32 v{T+3}, v{I+7}, v{I+6}, s60
        v_perm_b32 v{T}, v{T+1}, v{T}, s61
        v_perm_b32 v{T+2}, v{T+3}, v{T+2}, s61
        v_cmp_ne_u32 vcc, v{T}, v249
        v_cmp_ne_u32 s[6:7], v{T+2}, v249
        s_or_b64 vcc, vcc, s[6:7]
        s_cbranch_scc0 L_Byd
        {inl}
        s_sub_u32 s5, s5, 1
        s_cbranch_scc0 L_By
        s_waitcnt vmcnt(0)
        L_Byd:''')
        s.ts(9)
        if o.x_cnt: a(f's_sub_u32 s81, {SPIN}, s5\n s_mul_i32 s81, s81, 100\n s_add_u32 s81, s81, s80')
        for i in range(8): a(f'v_add_f32 v{128+i}, v{128+i}, v{I+i}')
        a('s_waitcnt lgkmcnt(0)')
        O = 88
        def pv(t, hi): a(f'{MF} {vr(O+8*t+4*hi,4)}, {vr(s.VV+4*t,4)}, {vr(s.PP+4*(t+hi),4)}, 0')
        for t, hi in ((0, 1), (1, 0), (1, 1), (2, 0), (2, 1), (3, 0)): pv(t, hi)
        s.softmax((0, 4))
        pv(3, 1); pv(0, 0)
        for t in (1, 2, 3, 0):
            for h in range(2):
                a(f'v_cvt_pk_bf16_f32 v{O+8*t+2*h}, v{O+8*t+2*h}, v{O+8*t+2*h+1}')
                a(f'v_cvt_pk_bf16_f32 v{O+8*t+4+2*h}, v{O+8*t+4+2*h}, v{O+8*t+4+2*h+1}')
                a(f'v_cndmask_b32 v{s.OF+2*t+h}, v{O+8*t+4+2*h}, v{O+8*t+2*h}, s[{40+4*t+2*h}:{41+4*t+2*h}]')
            if t == 3: a(f's_lshl_b32 s4, s33, 11\n s_add_u32 s4, s4, s74\n buffer_store_dwordx4 {vr(s.OF+4,4)}, v248, s[24:27], s4 offen offset:1024 sc1')
        a(f'buffer_store_dwordx4 {vr(s.OF,4)}, v248, s[24:27], s4 offen sc1')
    def b2(s):
        a = s.a
        ACC = 72; W = 88
        def rd(pos):
            r = []
            for c in range(4):
                for h in range(2):
                    off = (pos//6)*SL + (pos % 6)*BL + 32*c + 512*h
                    d = W + 16*(pos % 9) + 4*c + 2*h
                    r.append(('r', f'ds_read_b64_tr_b16 {vr(d,2)}, v{250 if off < 59968 else 251} offset:{off if off < 59968 else off-59968}', R(d, 2)))
            return r
        def mm(pos, pend):
            B = s.OF + 4*pos if pos < 2 else 8 + 4*(pos-2)
            r = []
            for c in range(4):
                A = W + 16*(pos % 9) + 4*c
                r.append(('m', f'{MF} {vr(ACC+4*c,4)}, {vr(A,4)}, {vr(B,4)}, {vr(ACC+4*c,4) if pos else 0}', R(A, 4)))
                for _ in range(2):
                    if pend: r.append(pend.pop(0))
            return r
        s.ts(10)
        a('s_cmp_lt_u32 s3, 4\n s_cbranch_scc1 L_Bw2')
        for i in range(18):
            off = (i//6)*SL + (i % 6)*BL
            a(f'ds_write_b128 v{208 if off < 59968 else 209}, {vr(8+4*i,4)} offset:{off if off < 59968 else off-59968}')
        a(f'L_Bw2:\n s_lshl_b32 s4, s33, 7\n s_add_u32 s4, s4, s75\n s_waitcnt vmcnt(0)\n s_mov_b64 exec, 1\n buffer_store_dword v249, off, s[24:27], s4 sc1\n s_mov_b64 exec, -1')
        s.ts(11)
        a('s_waitcnt lgkmcnt(0)\n s_barrier')
        ops = []
        for p in range(5): ops += rd(p)
        ops.append(('t', 's_mov_b64 exec, 0x1ff\n buffer_load_dword v232, v255, s[24:27], s75 offen sc1\n s_mov_b64 exec, -1'))
        for p in range(5, 9): ops += rd(p)
        ops += mm(0, []); ops += mm(1, rd(9)); ops += rd(10); ops.append(('t', s.tst(12)))
        ops.append(('t', f'''s_movk_i32 s5, {SPIN}
        s_mov_b64 exec, 0x1ff
        L_Bp:
        s_waitcnt vmcnt(0)
        v_cmp_ne_u32 vcc, v232, v249
        s_cbranch_vccz L_Bpd
        buffer_load_dword v232, v255, s[24:27], s75 offen sc1
        s_sub_u32 s5, s5, 1
        s_cbranch_scc0 L_Bp
        s_waitcnt vmcnt(0)
        L_Bpd:
        s_mov_b64 exec, -1'''))
        ops.append(('t', s.tst(13)))
        t = f's_mov_b32 s4, s33\n'
        for i in range(8):
            t += f's_add_u32 s4, s4, 1\n s_cmp_eq_u32 s4, 9\n s_cselect_b32 s4, 0, s4\n s_lshl_b32 s5, s4, 11\n s_add_u32 s5, s5, s74\n'
            t += f'buffer_load_dwordx4 {vr(8+8*i,4)}, v248, s[24:27], s5 offen sc1\n buffer_load_dwordx4 {vr(12+8*i,4)}, v248, s[24:27], s5 offen offset:1024 sc1\n'
        ops.append(('t', t))
        pend = []
        for p in range(2, 18):
            ops.append(('t', f's_waitcnt vmcnt({17-p})'))
            ops += mm(p, pend)
            if p + 9 < 18: pend = rd(p+9)
        a(resolve(ops, loop=False))
        s.ts(14)
        for c in range(4):
            for h in range(2): a(f'v_cvt_pk_bf16_f32 v{ACC+4*c+h}, v{ACC+4*c+2*h}, v{ACC+4*c+2*h+1}')
            a(f'ds_write_b64 v252, {vr(ACC+4*c,2)} offset:{32*c}')
        a(f'''s_waitcnt lgkmcnt(0)
        ds_read_b128 v[8:11], v253
        ds_read_b128 v[12:15], v253 offset:{8*144}
        s_add_u32 s4, s73, {16*2304}
        s_waitcnt lgkmcnt(1)
        buffer_store_dwordx4 v[8:11], v254, s[20:23], s73 offen {s.o.osf}
        s_waitcnt lgkmcnt(0)
        buffer_store_dwordx4 v[12:15], v254, s[20:23], s4 offen {s.o.osf}''')
        s.ts_dump(16)
        if s.o.x_delay:
            a(f'''s_or_b32 s4, s2, s3
            s_cmp_lg_u32 s4, 0
            s_cbranch_scc1 L_end
            {'s_or_b32 s5, s96, 0x80000000' if s.o.x_dbase else 'v_readfirstlane_b32 s5, v249'}
            s_movk_i32 s36, 20000
            L_dly:
            s_memrealtime s[6:7]
            s_waitcnt lgkmcnt(0)
            s_or_b32 s6, s6, 0x80000000
            s_sub_u32 s6, s6, s5
            s_cmp_ge_u32 s6, {s.o.x_delay}
            s_cbranch_scc1 L_end
            s_sub_u32 s36, s36, 1
            s_cbranch_scc0 L_dly''')
        a('s_endpgm')
    def a_part(s):
        a = s.a; o = s.o
        a('L_A:')
        if not o.doA: a('s_endpgm'); return
        import genA
        genA.a_part(s)
    def build(s):
        s.entry(); s.b_loader(); s.b_compute(); s.b_attn(); s.b2(); s.a_part()
        s.a('L_end:\n L_last:\n s_endpgm')
        return single_file(haz.fix(s.a.text()), NWG, 512, LDS_BYTES)
def gen(**kw):
    o = Opt()
    for k, v in kw.items(): setattr(o, k, v)
    return G(o).build()
if __name__ == '__main__':
    kw = {}
    for x in sys.argv[2:]:
        k, v = x.split('='); kw[k] = eval(v)
    open(sys.argv[1], 'w').write(gen(**kw))
```

```python
from gen import *
AST = 4*BL
def a_part(s):
    a = s.a; o = s.o
    a(f'''s_sub_u32 s33, s33, 18
    s_mul_i32 s40, s32, 6
    s_add_u32 s40, s40, s33
    s_cmp_ge_u32 s33, 6
    s_cselect_b32 s6, 6, 0
    s_addc_u32 s32, s32, 0
    s_sub_u32 s33, s33, s6
    s_mul_i32 s34, s33, 3
    s_lshr_b32 s34, s34, 1
    s_mul_i32 s34, s34, {o.rota}
    s_cmp_lt_u32 s3, 4
    s_cbranch_scc1 L_Ac''')
    a(f'''s_sub_u32 s39, s3, 4
    v_and_b32 v1, 7, v0
    v_lshlrev_b32 v1, 4, v1
    v_bfe_u32 v2, v0, 3, 1
    v_bfe_u32 v3, v0, 4, 1
    v_lshrrev_b32 v4, 5, v0
    v_lshl_add_u32 v2, v3, 4, v2
    v_lshl_add_u32 v2, v4, 2, v2
    s_and_b32 s6, s39, 1
    s_lshl_b32 s6, s6, 1
    s_lshr_b32 s7, s39, 1
    s_lshl_b32 s7, s7, 3
    s_add_u32 s6, s6, s7
    v_add_u32 v2, s6, v2
    v_mul_u32_u24 v2, {32*1152}, v2
    v_add_u32 v2, v2, v1
    s_mul_i32 s63, s32, 2304
    s_mul_i32 s64, s39, 1056
    s_mov_b32 s66, 0
    s_waitcnt lgkmcnt(0)
    s_mov_b32 s8, s4
    s_mov_b32 s9, s5
    L_Ald:
    s_lshl_b32 s68, s34, 7
    s_add_u32 s68, s68, s63''')
    for b in range(4):
        s.dma('s64', b*BL, 's68', (1024*(b & 1) + (b >> 1))*1152, 'v2', 's[8:11]', o.lda)
    a(f'''s_add_u32 s34, s34, 1
    s_cmp_eq_u32 s34, 9
    s_cselect_b32 s34, 0, s34
    s_add_u32 s64, s64, {AST}
    s_add_u32 s66, s66, 1
    s_cmp_lt_u32 s66, 9
    s_cbranch_scc1 L_Ald''')
    for i in range(9): a(f's_waitcnt vmcnt({32-4*i})\n s_barrier')
    a('s_endpgm')
    ACC, HID, XB, FF = 8, 72, 144, 208
    a('L_Ac:')
    s.prefetch(250)
    a('s_cmp_eq_u32 s3, 3\n s_cbranch_scc1 L_end')
    a(f'''v_and_b32 v240, 15, v0
    v_lshrrev_b32 v241, 4, v0
    s_mul_i32 s41, s33, 3
    s_add_u32 s41, s41, s3
    s_lshl_b32 s6, s41, 4
    v_add_u32 v242, s6, v240
    v_mul_u32_u24 v243, 911, v242
    v_lshrrev_b32 v243, 16, v243
    v_mul_u32_u24 v244, 287, v243
    v_lshlrev_b32 v245, 2, v242
    v_sub_u32 v244, v245, v244
    v_cvt_f32_u32 v245, v244
    v_mul_f32 v245, {fb(1/576)}, v245
    v_and_b32 v246, 1, v244
    v_mul_u32_u24 v246, 0x8000, v246
    v_lshl_or_b32 v246, v246, 16, v246
    s_lshl_b32 s6, s34, 6
    v_lshl_add_u32 v247, v241, 3, s6
    v_cvt_f32_u32 v247, v247''')
    T = XB
    for i in range(9):
        a(f'v_mul_f32 v{T}, v247, v245\n v_add_f32 v247, {fb(32.0)}, v247\n v_fract_f32 v{T}, v{T}')
        for j in range(1, 8): a(f'v_add_f32 v{T+j}, v{T+j-1}, v245')
        for j in range(8): a(f'v_cos_f32 v{T+8+j}, v{T+j}')
        for j in range(8): a(f'v_sin_f32 v{T+j}, -v{T+j}')
        for h in range(4): a(f'v_cvt_pk_bf16_f32 v{HID+8*i+h}, v{T+8+2*h}, v{T+9+2*h}')
        for h in range(4): a(f'v_cvt_pk_bf16_f32 v{HID+8*i+4+h}, v{T+2*h}, v{T+1+2*h}')
    a('s_cmp_lg_u32 s41, 0\n s_cbranch_scc1 L_Ac1\n s_mov_b32 exec_lo, 0x10001\n s_mov_b32 exec_hi, 0x10001\n s_mov_b32 s6, 0xbf803f80')
    for i in range(9):
        for h in range(4): a(f'v_mov_b32 v{HID+8*i+4+h}, s6')
    a('s_mov_b64 exec, -1\n L_Ac1:')
    a(f'''v_lshrrev_b32 v1, 1, v240
    v_cvt_f32_u32 v1, v1
    v_mul_f32 v1, {fb(1/64)}, v1
    v_and_b32 v2, 1, v240
    v_cvt_f32_u32 v2, v2
    v_mul_f32 v2, {fb(0.25)}, v2
    v_lshlrev_b32 v3, 3, v241
    v_cvt_f32_u32 v3, v3
    v_add_f32 v4, {fb(32.0)}, v3
    v_cmp_eq_u32 vcc, 1, v240
    v_cndmask_b32 v5, v1, 0.5, vcc
    v_cndmask_b32 v6, v2, 0, vcc''')
    for m in range(4):
        w, ph = ('v5', 'v6') if m == 0 else ('v1', 'v2')
        if m: a(f'v_add_f32 v1, {fb(0.125)}, v1')
        for q in range(2):
            a(f'v_fma_f32 v{T}, v{3+q}, {w}, {ph}')
            for j in range(1, 8): a(f'v_add_f32 v{T+j}, v{T+j-1}, {w}')
            for j in range(8): a(f'v_cos_f32 v{T+j}, v{T+j}')
            for h in range(4): a(f'v_cvt_pk_bf16_f32 v{FF+8*m+4*q+h}, v{T+2*h}, v{T+1+2*h}')
    a(f'''v_bfe_u32 v6, v0, 1, 2
    v_and_b32 v7, 1, v0
    v_bfe_u32 v4, v0, 3, 1
    v_lshl_add_u32 v7, v4, 1, v7
    v_and_b32 v4, 0x30, v0
    v_lshl_add_u32 v7, v7, 7, v4
    v_mul_u32_u24 v2, 1056, v6
    v_add_u32 v2, v2, v7
    v_add_u32 v3, {3*AST}, v2
    v_add_u32 v4, {6*AST}, v2
    s_waitcnt lgkmcnt(0)''')
    if o.touch == 1:
        a(f'''v_mul_u32_u24 v250, 36864, v0
        v_mul_u32_u24 v252, 73728, v0
        s_mov_b32 s6, {WS_FU}
        buffer_load_dword v251, v250, s[24:27], 0 offen sc1
        buffer_load_dword v251, v252, s[20:23], 0 offen
        buffer_load_dword v251, off, s[24:27], s6 sc1''')
    s.ts(1)
    a('s_barrier')
    s.ts(2)
    def rdx(ks):
        st = ks >> 1
        return [('r', f'ds_read_b128 {vr(XB+32*(ks&1)+4*t,4)}, v{2+st//3} offset:{(st%3)*AST+(t>>1)*BL+(t&1)*512+(ks&1)*64}', R(XB+32*(ks&1)+4*t, 4)) for t in range(8)]
    ops = rdx(0)
    for ks in range(18):
        pend = []
        if ks == 12: pend.append(('t', 'buffer_load_dword v249, off, s[28:31], 0 sc1'))
        if ks < 17:
            if ks & 1: ops.append(('t', 's_barrier'))
            pend += rdx(ks+1)
        if 1 <= ks <= 9: pend += [('t', f'v_xor_b32 v{HID+8*(ks-1)+h}, v246, v{HID+8*(ks-1)+h}') for h in range(8)]
        for t in range(8):
            for ab in range(2):
                x = XB+32*(ks&1)+4*t; acc = ACC + 32*ab + 4*t
                ops.append(('m', f'{MF} {vr(acc,4)}, {vr(x,4)}, {vr(HID+8*(ks%9)+4*ab,4)}, {vr(acc,4) if ks else 0}', R(x, 4)))
                if pend: ops.append(pend.pop(0))
        ops += pend
    a(resolve(ops, loop=False, cap=4))
    s.ts(3)
    Z, U = XB, HID
    a(f'''s_mul_i32 s6, s32, 4608
    v_mul_u32_u24 v5, 147456, v241
    v_lshl_add_u32 v5, v242, 4, v5
    v_add_u32 v5, s6, v5''')
    for k in range(8):
        for h in range(4): a(f'v_cvt_pk_bf16_f32 v{Z+4*k+h}, v{ACC+8*k+2*h}, v{ACC+8*k+2*h+1}')
    for m in range(4):
        for q in range(2):
            for ab in range(2):
                for s2 in range(2):
                    u = U + 16*m + 8*ab + 4*s2
                    a(f'{MF} {vr(u,4)}, {vr(FF+8*m+4*q,4)}, {vr(Z+16*ab+8*s2+4*q,4)}, {vr(u,4) if q else 0}')
        for mm in ([m-1] if m else []) + ([3] if m == 3 else []):
            for cl in range(2):
                g = ACC + 8*mm + 4*cl
                for ab in range(2):
                    for ri in range(2):
                        u = U + 16*mm + 8*ab + 2*cl + ri
                        a(f'v_cvt_pk_bf16_f32 v{g+2*ab+ri}, v{u}, v{u+4}')
                a(f's_mov_b32 s6, {WS_U + (8*mm+cl)*73728}\n buffer_store_dwordx4 {vr(g,4)}, v5, s[24:27], s6 offen sc1')
    s.ts(4)
    CF, UD, AC2, AD = 72, 136, 8, 216
    CS = 200
    a(f'''s_mul_i32 s42, s40, 43
    s_lshr_b32 s42, s42, 7
    s_mul_i32 s6, s42, 3
    s_sub_u32 s43, s40, s6
    s_mul_i32 s43, s43, 3
    s_add_u32 s43, s43, s3
    v_lshlrev_b32 v3, 3, v241
    v_cvt_f32_u32 v3, v3
    s_mov_b32 s44, 0x80008000''')
    def trig(cl):
        a(f'v_lshl_add_u32 v1, v240, 6, {cl}\n v_cvt_f32_u32 v1, v1\n v_mul_f32 v1, {fb(1/2048)}, v1')
        for tt in range(2):
            if tt: a('v_add_f32 v1, 0.5, v1')
            a(f'v_mul_f32 v{UD}, v3, v1')
            for j in range(1, 8): a(f'v_add_f32 v{UD+j}, v{UD+j-1}, v1')
            for j in range(8): a(f'v_cos_f32 v{UD+8+j}, v{UD+j}')
            for j in range(8): a(f'v_sin_f32 v{UD+j}, v{UD+j}')
            for q in range(4): a(f'v_cvt_pk_bf16_f32 v{CS+8*tt+q}, v{UD+8+2*q}, v{UD+9+2*q}')
            for q in range(4): a(f'v_cvt_pk_bf16_f32 v{CS+8*tt+4+q}, v{UD+2*q}, v{UD+1+2*q}')
    trig('s42')
    for tt in range(2):
        for q in range(4):
            c = CS+8*tt+q; sn = c+4; M = CF + 16*tt + 4*q; N = M + 32
            a(f'''v_mov_b32 v{M}, v{c}
            v_mov_b32 v{M+1}, v{sn}
            v_mov_b32 v{M+2}, v{sn}
            v_xor_b32 v{M+3}, s44, v{c}
            v_mov_b32 v{N}, v{c}
            v_mov_b32 v{N+1}, v{sn}
            v_xor_b32 v{N+2}, s44, v{sn}
            v_mov_b32 v{N+3}, v{c}''')
    a('s_mov_b32 s45, s42\n s_cmp_lg_u32 s42, 0\n s_cbranch_scc1 L_Ac2\n s_mov_b32 s45, 32')
    trig('32')
    for tt in range(2):
        for q in range(4):
            c = CS+8*tt+q; sn = c+4; M = CF + 16*tt + 4*q; N = M + 32
            a(f'''v_mov_b32 v{M+1}, 0
            v_mov_b32 v{M+3}, 0
            v_mov_b32 v{N}, 0
            v_mov_b32 v{N+1}, v{c}
            v_mov_b32 v{N+2}, 0
            v_xor_b32 v{N+3}, s44, v{sn}''')
    a('L_Ac2:')
    a('s_cmp_lg_u32 s3, 0\n s_cbranch_scc1 L_An2')
    s.nonce_wait('L_An', 249)
    a('L_An2:\n s_waitcnt vmcnt(0)\n s_barrier')
    s.ts(5)
    a(f'''s_cmp_lg_u32 s3, 0
    s_cbranch_scc1 L_Af
    s_lshl_b32 s6, s40, 7
    s_add_u32 s6, s6, {WS_FU}
    s_mov_b64 exec, 1
    buffer_store_dword v249, off, s[24:27], s6 sc1
    s_mov_b64 exec, -1
    L_Af:
    s_lshl_b32 s6, s43, 6
    v_lshl_add_u32 v1, v240, 2, s6
    v_mul_u32_u24 v2, 18432, v241
    s_movk_i32 s7, 288
    v_cmp_gt_u32 s[46:47], s7, v1
    v_cmp_eq_u32 s[48:49], s7, v1
    v_cmp_eq_u32 s[50:51], 0, v1''')
    for j in range(4):
        a(f'''v_add_u32 v3, {j}, v1
        v_sub_u32 v4, 576, v3
        v_cndmask_b32 v3, v4, v3, s[46:47]''')
        if j == 0: a('v_cndmask_b32 v3, v3, 0, s[48:49]')
        a(f'''v_and_b32 v4, 3, v3
        v_lshrrev_b32 v3, 2, v3
        v_mul_u32_u24 v4, 72, v4
        v_add_u32 v3, v3, v4
        v_lshl_add_u32 v{232+j}, v3, 4, v2''')
    a(f'''s_or_b64 s[50:51], s[50:51], s[48:49]
    v_lshlrev_b32 v1, 1, v1
    v_lshlrev_b32 v2, 8, v241
    v_add_u32 v3, s42, v2
    v_sub_u32 v4, 2048, v3
    v_cndmask_b32 v3, v4, v3, s[46:47]
    v_add_u32 v5, s45, v2
    v_sub_u32 v4, 2048, v5
    v_cndmask_b32 v5, v5, v4, s[46:47]
    v_mov_b32 v6, {64*2304}
    v_mov_b32 v7, {-64*2304 & 0xffffffff}
    v_cndmask_b32 v6, v7, v6, s[46:47]
    v_lshlrev_b32 v7, 4, v6
    s_movk_i32 s6, 2304
    v_mad_u32_u24 v{AD}, v3, s6, v1
    v_mad_u32_u24 v{AD+8}, v5, s6, v1''')
    for i in range(1, 4): a(f'v_add_u32 v{AD+i}, v{AD+i-1}, v6\n v_sub_u32 v{AD+8+i}, v{AD+8+i-1}, v6')
    for i in range(4): a(f'v_add_u32 v{AD+4+i}, v{AD+i}, v7\n v_sub_u32 v{AD+12+i}, v{AD+8+i}, v7')
    a(f'''v_and_b32 v3, 2047, v3
    v_mad_u32_u24 v{AD}, v3, s6, v1
    s_mul_i32 s52, s42, 73728
    s_cmp_lg_u32 s3, 0
    s_cbranch_scc1 L_Apd
    v_lshlrev_b32 v1, 8, v0
    s_mov_b32 s6, {WS_FU}
    s_movk_i32 s5, {SPIN}
    s_mov_b32 exec_hi, 0xffff
    L_Ap:
    buffer_load_dword v2, v1, s[24:27], s6 offen sc1
    buffer_load_dword v3, v1, s[24:27], s6 offen offset:128 sc1
    s_sub_u32 s5, s5, 1
    s_cbranch_scc1 L_Ap1
    s_waitcnt vmcnt(0)
    v_cmp_ne_u32 vcc, v2, v249
    v_cmp_ne_u32 s[54:55], v3, v249
    s_or_b64 vcc, vcc, s[54:55]
    s_cbranch_scc1 L_Ap
    L_Ap1:
    s_waitcnt vmcnt(0)
    s_mov_b32 exec_hi, -1
    L_Apd:
    s_barrier''')
    s.ts(6)
    order = [1, 2, 3, 0]
    for q in range(4):
        a(f's_add_u32 s6, s52, {WS_U + q*4608}')
        for j in [0, 1, 2, 3]: a(f'buffer_load_dwordx4 {vr(UD+16*q+4*j,4)}, v{232+j}, s[24:27], s6 offen sc1')
    for q in range(4):
        a(f's_waitcnt vmcnt({12-4*q})')
        u = UD + 16*q
        a(f'''v_cndmask_b32 v{u}, v{u}, v{u+2}, s[48:49]
        v_cndmask_b32 v{u+1}, v{u+1}, v{u+3}, s[48:49]
        v_cndmask_b32 v{u+2}, v{u+2}, 0, s[50:51]
        v_cndmask_b32 v{u+3}, v{u+3}, 0, s[50:51]''')
        for st in range(4):
            for j in order:
                acc = AC2 + 16*st + 4*j
                a(f'{MF} {vr(acc,4)}, {vr(CF+16*st+4*q,4)}, {vr(u+4*j,4)}, {vr(acc,4) if q else 0}')
    s.ts(7)
    for st in range(4):
        for i in range(4):
            b = AC2 + 16*st + i; d = UD + 8*st + 2*i
            a(f'v_cvt_pk_bf16_f32 v{d}, v{b}, v{b+4}\n v_cvt_pk_bf16_f32 v{d+1}, v{b+8}, v{b+12}')
            a(f'buffer_store_dwordx2 {vr(d,2)}, v{AD+4*st+i}, s[20:23], 0 offen {o.osf}')
    s.ts(8)
    s.ts_dump(16, 'a')
    a('s_endpgm')
```

```python
import sys, struct, math
sys.path.insert(0, 'exp')
from asmlib import *
import haz
def fb(x): return hex(struct.unpack('<I', struct.pack('<f', x))[0])
WS_U, WS_O, WS_XC, WS_FO, WS_FU, WS_TS = 0, 0x400000, 0x800000, 0xC00000, 0xC40000, 0xD00000
SL = 44416; L_X = 0; L_WV = 16896; L_XH = 25344; L_WQK = 27520; BL = 4224
QS = L_WQK; KS = SL + L_WQK; VS = 2*SL + L_WQK
HS = 3*SL; TR = HS + 4096; LDS_BYTES = TR + 4*BL
NWG = 240
SPIN = 30000
class Opt:
    meas = None; rotc = 1; rotg = 1; bmap = 1; tsel = None
    prof = False; clk = 's_memrealtime'; doA = True; doB = True; pre = True; hold = 2; osf = 'sc0 sc1'
    x_early = 0; x_nold = False; x_nomm = False; x_nord = False; rota = 1
    tsel = None; pk = 0; m64 = 1; lprio = 1; cinb = 1; wpf = 0; hsf = 'sc1'; psf = 'sc1'; clean = 0; cutA = 3; cpr = 0; xint = 5; nf = 3; lead = 7; bdel = 3; hpr = 0; apos = 9; aper = 3
MF = 'v_mfma_f32_16x16x32_bf16'
MF16 = 'v_mfma_f32_16x16x16_bf16'

def resolve(ops, loop=True, cap=5, age=None):
    out = []
    seq = 0; last = {}; done = -1; nm = 0; at = []
    for it in range(2 if loop else 1):
        out = []
        for o in ops:
            if o[0] == 'r':
                for r in o[2]: last[r] = seq
                seq += 1; out.append(o[1]); at.append(nm)
            elif o[0] == 'm':
                nd = max([last.get(r, -1) for r in o[2]])
                if nd > done:
                    n = min(seq - 1 - nd, cap)
                    if age: n = min(n, sum(1 for x in at if x > nm - age))
                    out.append(f's_waitcnt lgkmcnt({n})'); done = seq - 1 - n
                out.append(o[1])
                if 'mfma' in o[1]: nm += 1
            elif o[0] == 'w0':
                out.append('s_waitcnt lgkmcnt(0)'); done = seq - 1
            else: out.append(o[1])
    return '\n'.join(out)
def R(b, n): return list(range(b, b+n))

class G:
    def __init__(s, o):
        s.o = o; s.a = Asm(); s.nts = 0
    def ts(s, i):
        if s.o.prof: s.a(s.tst(i))
    def tsl(s, lvl):
        if s.o.prof and s.o.x_early == lvl:
            s.a(f'{s.o.clk} s[98:99]\n s_add_u32 m0, s66, 3\n s_waitcnt lgkmcnt(0)\n s_movreld_b32 s80, s98')
    def tse(s, i, cond=None):
        if s.o.prof and s.o.x_early == 1:
            s.nts += 1
            if cond is not None: s.a(f's_cmp_lg_u32 s66, {cond}\n s_cbranch_scc1 L_tse{s.nts}')
            s.a(f'{s.o.clk} s[98:99]\n s_waitcnt lgkmcnt(0)\n s_mov_b32 s{80+i}, s98\n L_tse{s.nts}:')
    def tst(s, i):
        if s.o.prof and s.o.tsel:
            if i not in s.o.tsel: return ''
            k = 80 + 2*s.o.tsel.index(i)
            return f'{s.o.clk} s[{k}:{k+1}]'
        if s.o.x_early and (9 if s.o.x_early == 1 else 5) <= i <= 14: return ''
        return f'{s.o.clk} s[98:99]\n s_waitcnt lgkmcnt(0)\n s_mov_b32 s{80+i}, s98' if s.o.prof else ''
    def ts_dump(s, n, part='b'):
        if not s.o.prof: return
        a = s.a
        a('s_waitcnt vmcnt(0)')
        s.ts(n-1)
        if s.o.meas:
            S, who = s.o.meas
            if (who == 'a') != (part == 'a'): return
            s.nts += 1; L = f'L_ms{s.nts}'
            if who == 'c': a('s_cmp_ge_u32 s3, 4\n s_cbranch_scc1 L_end')
            if who == 'h': a('s_cmp_lt_u32 s3, 4\n s_cbranch_scc1 L_end')
            a(f'''s_movk_i32 s36, 20000
            {L}:
            s_memrealtime s[6:7]
            s_waitcnt lgkmcnt(0)
            s_sub_u32 s6, s6, s{80 + 2*s.o.tsel.index(S)}
            s_cmp_ge_u32 s6, 2000
            s_cbranch_scc1 L_end
            s_sub_u32 s36, s36, 1
            s_cbranch_scc0 {L}''')
            return
        a(f's_lshl_b32 s4, s2, 3\n s_add_u32 s4, s4, s3\n s_lshl_b32 s4, s4, 6\n s_add_u32 s4, s4, {WS_TS}\n s_mov_b64 exec, 1\n v_mov_b32 v1, 0')
        a('s_waitcnt lgkmcnt(0)')
        for i in range(n):
            k = 80 + i if not s.o.tsel else (80 + 2*s.o.tsel.index(i) if i in s.o.tsel else 80)
            a(f'v_mov_b32 v2, s{k}\n buffer_store_dword v2, v1, s[24:27], s4 offen offset:{4*i}')
    def dma(s, ldsreg, ldsoff, kreg, koff, voff, srd):
        s.a(f's_add_u32 m0, {ldsreg}, {ldsoff}\n s_add_u32 s7, {kreg}, {koff}')
        if not s.o.x_nold: s.a(f'buffer_load_dwordx4 {voff}, {srd}, s7 offen lds')
    def srds(s):
        s.a('''s_mov_b32 s14, 1990656
        s_mov_b32 s15, s11
        s_mov_b32 s18, 663552
        s_mov_b32 s19, s11
        s_mov_b32 s22, 4718592
        s_mov_b32 s23, s11
        s_mov_b32 s26, 0x1000000
        s_mov_b32 s27, s11
        s_movk_i32 s30, 256
        s_mov_b32 s31, s11''')
    def prefetch(s, r=232):
        if not s.o.pre: return
        s.nts += 1; L = f'L_pc{s.nts}'
        s.a(f'''s_getpc_b64 s[36:37]
        {L}:
        s_sub_u32 s36, s36, {L}-L_top
        s_subb_u32 s37, s37, 0
        s_lshl_b32 s38, s3, 13
        v_lshl_add_u32 v{r}, v0, 7, s38
        v_min_u32 v{r}, L_last-L_top, v{r}
        global_load_dword v{r+1}, v{r}, s[36:37]''')
    def entry(s):
        a = s.a
        a(f'''L_top:
        s_cmpk_ge_u32 s2, {NWG}
        s_cbranch_scc1 L_end
        s_load_dwordx2 s[8:9], s[0:1], 40
        s_load_dwordx2 s[12:13], s[0:1], 48
        s_load_dwordx2 s[4:5], s[0:1], 0
        s_load_dwordx2 s[16:17], s[0:1], 56
        s_load_dwordx2 s[20:21], s[0:1], 64
        s_load_dwordx2 s[28:29], s[0:1], 72
        s_load_dwordx2 s[24:25], s[0:1], 80''')
        if s.o.prof: a(f'{s.o.clk} s[80:81]')
        a(f'''v_lshrrev_b32 v1, 6, v0
        v_and_b32 v0, 63, v0
        v_readfirstlane_b32 s3, v1
        s_mov_b32 s10, 2359296
        s_mov_b32 s11, 0x20000''')
        s.srds()
        a(f'''s_and_b32 s32, s2, 7
        s_lshl_b32 s32, s32, 1
        s_lshr_b32 s33, s2, 3
        s_cmp_ge_u32 s33, 18
        s_cbranch_scc1 L_A
        s_cmp_ge_u32 s33, 9
        s_cselect_b32 s6, 9, 0
        s_addc_u32 s32, s32, 0
        s_sub_u32 s33, s33, s6''')
        if s.o.bmap > 1:
            m = s.o.bmap; lg = m.bit_length() - 1
            a(f'''s_and_b32 s6, s2, {m-1}
            s_mul_i32 s6, s6, 18
            s_lshr_b32 s7, s2, 3
            s_add_u32 s6, s6, s7
            s_lshr_b32 s33, s6, {lg+1}
            s_and_b32 s6, s6, {2*m-1}
            s_and_b32 s7, s2, {7 & ~(m-1)}
            s_lshl_b32 s7, s7, 1
            s_add_u32 s32, s7, s6''')
        a(f'''s_cmp_lt_u32 s3, 4
        s_cbranch_scc1 L_Bc''')
        if not s.o.doB: a('s_endpgm')
    OS = [56, 57, 58, 59, 60, 61, 62, 75]
    NCH = 5
    def b_loader(s):
        a = s.a; o = s.o
        if o.lprio: a('s_setprio 3')
        a(f'''s_sub_u32 s39, s3, 4
        v_and_b32 v1, 7, v0
        v_lshlrev_b32 v1, 4, v1
        v_bfe_u32 v2, v0, 3, 1
        v_bfe_u32 v3, v0, 4, 1
        v_lshrrev_b32 v4, 5, v0
        s_lshl_b32 s6, s39, 1
        v_lshl_add_u32 v5, v3, 3, v2
        v_add_u32 v5, s6, v5
        v_lshl_add_u32 v83, v4, 4, v5
        v_mul_u32_u24 v80, 2304, v83
        v_add_u32 v80, v80, v1
        v_lshl_add_u32 v6, v3, 2, v2
        v_lshl_add_u32 v6, v4, 4, v6
        s_and_b32 s34, s39, 1
        s_lshl_b32 s34, s34, 1
        s_lshr_b32 s35, s39, 1
        s_lshl_b32 s35, s35, 3
        s_add_u32 s34, s34, s35
        v_add_u32 v6, s34, v6
        v_mul_u32_u24 v82, 3456, v6
        s_lshl_b32 s35, s33, 7
        v_add3_u32 v82, v82, v1, s35
        v_add_u32 v6, s6, v2
        v_lshl_add_u32 v6, v6, 1, v3
        s_lshl_b32 s34, s32, 7
        s_sub_u32 s34, s34, 16
        s_max_i32 s34, s34, 0
        v_add_u32 v6, s34, v6
        v_mul_u32_u24 v81, 1152, v6
        v_add_u32 v81, v81, v1
        s_mul_i32 s63, s32, {128*1152}
        s_mul_i32 s34, s32, {o.rotc}
        s_mul_i32 s6, s33, {o.rotg}
        s_add_u32 s34, s34, s6
        s_mul_i32 s6, s34, 57
        s_lshr_b32 s6, s6, 9
        s_mul_i32 s6, s6, 9
        s_sub_u32 s34, s34, s6
        s_lshl_b32 s67, s34, 7
        s_add_u32 s68, s63, s67
        s_mul_i32 s69, s67, 1728
        s_mul_i32 s64, s39, 1056
        s_mul_i32 s65, s39, 544
        s_mov_b32 s66, 0
        s_waitcnt lgkmcnt(0)''')
        s.tse(9)
        a('L_ld:')
        for cw in range(4):
            s.dma('s64', L_X + cw*BL, 's68', (64*(cw >> 1) + (cw & 1))*1152, 'v80', 's[8:11]')
        a(f's_add_u32 m0, s65, {L_XH}\n s_mov_b32 exec_hi, 0')
        a(f'buffer_load_dwordx4 v81, s[8:11], s67 offen lds\n s_mov_b32 exec_hi, -1')
        for ks in range(2):
            for m in range(2):
                s.dma('s64', L_WQK + (2*ks+m)*BL, 's69', ks*32*3456 + m*1152, 'v82', 's[12:15]')
            s.dma('s64', L_WV + ks*BL, 's69', ks*32*3456 + 2304, 'v82', 's[12:15]')
        s.tse(11, 0); s.tse(12, 1)
        a(f'''s_add_u32 s67, s67, 128
        s_cmp_eq_u32 s67, 1152
        s_cselect_b32 s67, 0, s67
        s_add_u32 s68, s63, s67
        s_mul_i32 s69, s67, 1728
        s_add_u32 s64, s64, {SL}
        s_add_u32 s65, s65, {SL}
        s_cmp_ge_u32 s64, {3*SL}
        s_cselect_b32 s6, {3*SL}, 0
        s_sub_u32 s64, s64, s6
        s_sub_u32 s65, s65, s6
        s_add_u32 s66, s66, 1
        s_cmp_lt_u32 s66, 2
        s_cbranch_scc1 L_ld''')
        s.tsl(4)
        a('s_waitcnt vmcnt(11)')
        s.tsl(3)
        a('s_barrier')
        s.tsl(2)
        a('s_cmp_lt_u32 s66, 9\n s_cbranch_scc1 L_ld')
        a(f'''v_lshl_add_u32 v84, v4, 5, v83
        v_add_u32 v83, 16, v83
        v_mul_u32_u24 v83, 1152, v83
        v_mul_u32_u24 v84, 1152, v84
        v_add3_u32 v83, v83, v1, s35
        v_add3_u32 v84, v84, v1, s35
        s_add_u32 s69, s33, 4
        s_cmp_ge_u32 s69, 9
        s_cselect_b32 s6, 9, 0
        s_sub_u32 s69, s69, s6
        s_mul_i32 s69, s69, {64*1152}''')
        for p in range(6, 10): a(s.wo_dma(p))
        a(f's_setprio {o.cpr}\n s_branch L_const0\n L_cretA:')
        a('s_waitcnt vmcnt(4)\n s_add_u32 s66, s66, 1')
        s.tsl(3)
        a('s_barrier')
        s.tsl(2)
        if o.wpf:
            a(f's_mul_i32 s6, s39, 144\n v_add_u32 v8, s6, v0\n v_mul_u32_u24 v8, 1152, v8')
            for k in range(3): a(f's_add_u32 s6, s35, {48*1152*k}\n buffer_load_dword v9, v8, s[16:19], s6 offen')
        a(f'''s_lshl_b32 s67, s32, 4
        buffer_load_dword v249, off, s[28:31], s67 sc1
        s_branch L_const1
        L_cretB:
        s_movk_i32 s5, {SPIN}
        L_Bn:
        s_waitcnt vmcnt(0)
        v_cmp_ne_u32 vcc, 6, v249
        s_cbranch_vccz L_Bnd
        buffer_load_dword v249, off, s[28:31], s67 sc1
        s_sub_u32 s5, s5, 1
        s_cbranch_scc0 L_Bn
        s_waitcnt vmcnt(0)
        L_Bnd:''')
        a(f's_setprio {o.hpr}')
        s.ts(3)
        a('s_barrier')
        s.ts(4)
        ops = []; d = list(range(6))
        for k, y in enumerate(s.x_ops()):
            ops.append(y)
            if k >= 5 and (k-5) % o.xint == 0 and d: ops.append(('t', s.wo_dma(d.pop(0))))
        ops += [('t', s.wo_dma(p)) for p in d]
        a(resolve(ops, loop=False, cap=15))
        s.ts(5)
        a('s_mul_i32 s69, s33, %d\n s_branch L_BF' % (64*1152))
    def wo_dma(s, pos):
        step = f's_add_u32 s69, s69, {64*1152}\n s_cmp_eq_u32 s69, s18\n s_cselect_b32 s69, 0, s69\n' if pos != 1 else ''
        return f's_add_u32 m0, s64, {s.wo_off(pos)}\n {step} buffer_load_dwordx4 v{84 if pos == 1 or pos >= 10 else 83}, s[16:19], s69 offen lds'
    def wo_off(s, pos):
        if pos < 6: return 2*SL + pos*BL
        if pos < 10: return TR + (pos-6)*BL
        return (pos-10)*BL if pos < 16 else SL + (pos-16)*BL
    def b_const(s):
        a = s.a
        def cut(k):
            if k == s.o.cutA: a('s_cmp_ge_u32 s3, 4\n s_cbranch_scc1 L_cretA\n L_const1:')
            if k == s.NCH: a('s_cmp_ge_u32 s3, 4\n s_cbranch_scc1 L_cretB')
        a('L_const0:')
        a(f'''v_and_b32 v216, 15, v0
        v_lshrrev_b32 v217, 4, v0
        v_lshlrev_b32 v218, 2, v217
        v_and_b32 v219, 7, v0
        v_sub_u32 v219, v218, v219
        v_lshlrev_b32 v248, 4, v0
        v_lshlrev_b32 v255, 3, v0
        s_mov_b32 s100, 0x00ff00ff
        s_mov_b32 s101, s100
        s_lshr_b32 s6, s3, 1
        s_or_b32 s6, s6, s32
        s_cmp_eq_u32 s6, 0
        s_cselect_b32 exec_lo, s100, 0
        s_mov_b32 exec_hi, 0
        v_mov_b32 v219, 64
        s_mov_b64 exec, -1
        v_mov_b32 v220, {fb(-1e30)}''')
        for i in range(4):
            a(f'''v_add_u32 v221, {i-1}, v219
            v_cmp_le_u32 vcc, 8, v221
            v_cndmask_b32 v{192+i}, 0, v220, vcc''')
        cut(1)
        a(f'''s_lshl_b32 s6, s33, 6
        s_add_u32 s7, s6, 17
        s_mul_i32 s7, s7, 3641
        s_lshr_b32 s7, s7, 16
        s_mul_i32 s7, s7, 18
        s_sub_u32 s6, s7, s6
        s_mov_b32 s7, s6''')
        for t in range(4):
            if t: a(f's_cmp_eq_u32 s6, {18-2*t}\n s_cselect_b32 s4, -16, 2\n s_add_u32 s7, s7, s4')
            a(f's_sub_u32 s4, s7, 2\n v_cmp_gt_i32 s[{40+4*t}:{41+4*t}], s7, v218\n v_cmp_gt_i32 s[{42+4*t}:{43+4*t}], s4, v218')
        cut(2)
        a(f'''s_and_b32 s70, s3, 3
        s_lshr_b32 s71, s3, 2
        s_lshl_b32 s72, s70, 1
        s_add_u32 s72, s72, s71
        s_lshl_b32 s6, s72, 11
        s_add_u32 s7, s6, {QS}
        v_add_u32 v202, s7, v255
        v_add_u32 v201, {KS-QS}, v202
        v_add_u32 v203, {VS-QS}, v202
        s_cmp_ge_u32 s3, 4
        s_cselect_b32 s4, 1, 3
        s_lshl_b32 s4, s4, 11
        s_sub_u32 s6, s6, s4
        s_add_u32 s4, s6, {KS+64}
        s_add_u32 s5, s6, {VS+256}
        s_lshl_b32 s6, s3, 6
        s_add_u32 s6, s6, {HS}
        s_lshl_b32 s7, s3, 8
        s_add_u32 s7, s7, {HS+2048}
        s_cmp_lt_u32 s3, 2
        s_cselect_b32 s4, s6, s4
        s_cselect_b32 s5, s7, s5
        v_add_u32 v204, s4, v255
        v_add_u32 v205, s5, v255
        s_not_b64 exec, s[100:101]
        v_subrev_u32 v204, 64, v201
        s_mov_b32 exec_lo, 0
        s_mov_b32 exec_hi, -1
        v_subrev_u32 v205, 0x100, v203
        s_mov_b32 exec_lo, -1''')
        for r in range(0, 6): a(f'v_mov_b32 v{s.PP+r}, 0')
        cut(3)
        a(f'''s_lshr_b32 s4, s70, 1
        s_and_b32 s6, s70, 1
        s_lshl_b32 s4, s4, 6
        s_add_u32 s4, s4, s6
        s_lshl_b32 s5, s71, 5
        s_add_u32 s4, s4, s5
        s_lshl_b32 s5, s32, 7
        s_add_u32 s4, s4, s5
        s_mul_i32 s4, s4, 2304
        s_lshl_b32 s5, s33, 7
        s_add_u32 s4, s4, s5
        s_add_u32 s73, s4, 1152
        v_lshrrev_b32 v221, 3, v0
        v_and_b32 v222, 0x70, v248
        v_mov_b32 v223, 4608
        v_mad_u32_u24 v254, v221, v223, v222
        s_mul_i32 s4, s70, 2304
        s_mul_i32 s5, s71, {KS-QS}
        s_add_u32 s4, s4, s5
        s_add_u32 s4, s4, {QS}
        v_mul_u32_u24 v253, 144, v221
        v_add3_u32 v253, v253, v222, s4
        v_mul_u32_u24 v252, 144, v216
        v_lshl_add_u32 v252, v217, 3, v252
        v_add_u32 v252, s4, v252
        v_bfe_u32 v221, v0, 3, 2
        v_mul_u32_u24 v221, 1056, v221
        v_bfe_u32 v222, v0, 2, 1
        v_lshl_add_u32 v221, v222, 7, v221
        v_and_b32 v222, 3, v0
        v_lshl_add_u32 v207, v222, 3, v221
        v_lshrrev_b32 v222, 5, v0
        v_lshl_add_u32 v250, v222, 8, v207
        v_add_u32 v251, {2*SL}, v250
        v_lshl_add_u32 v207, v222, 9, v207''')
        cut(4)
        a(f'''s_lshl_b32 s4, s32, 3
        s_add_u32 s4, s4, s72
        s_mul_i32 s4, s4, 18432
        s_add_u32 s4, s4, {WS_O}
        s_lshl_b32 s5, s33, 11
        s_add_u32 s74, s4, s5
        s_add_u32 s5, s4, 18432''')
        for i in range(8):
            a(f's_add_u32 s{s.OS[i]}, s{s.OS[i-1] if i else 74}, 2048\n v_mov_b32 v{s.PP+6+i}, 0\n s_cmp_eq_u32 s{s.OS[i]}, s5\n s_cselect_b32 s{s.OS[i]}, s4, s{s.OS[i]}')
        a(f'''s_mul_i32 s4, s32, 9
        s_add_u32 s4, s4, s33
        s_lshl_b32 s4, s4, 14
        s_lshl_b32 s5, s72, 10
        s_add_u32 s4, s4, s5
        s_add_u32 s76, s4, {WS_XC}
        s_add_u32 s77, s76, 8192
        s_cmp_eq_u32 s33, 0
        s_cselect_b32 s4, 0, 8192
        s_sub_u32 s78, s76, s4
        s_cmp_eq_u32 s33, 8
        s_cselect_b32 s4, 0, 8192
        s_add_u32 s79, s77, s4
        s_mov_b32 s70, {fb(math.log2(math.e)/math.sqrt(18))}''')
        for r in range(14, 20): a(f'v_mov_b32 v{s.PP+r}, 0')
        s.ts(1)
        cut(s.NCH)
    AV, HV, XB, WV_, AQ, AK, HK, WQ, ALT, XB2 = 8, 40, 44, 212, 88, 120, 152, 156, 220, 224
    def frags(s, mode):
        F = []
        for m, acc in ((0, s.AQ), (1, s.AK)):
            for i in range(2):
                F.append([s.WQ + 8*m + 4*i, 4+i, lambda ks, m=m: L_WQK + (2*ks+m)*BL,
                          [(acc + 8*t + 4*i, t) for t in range(4)] + ([(s.HK, 4)] if m == 1 and i == 0 else []), 0])
        if 'v' in mode:
            for i in range(2):
                F.append([s.WV_ + 4*i, 4+i, lambda ks: L_WV + ks*BL, [(s.AV + 8*t + 4*i, t) for t in range(4)] + ([(s.HV, 4)] if i == 0 else []), 1])
        return F
    def rd_w(s, f, ks, reg=None):
        reg = reg or f[0]
        return [('r', f'ds_read_b64_tr_b16 {vr(reg+2*h,2)}, v{f[1]} offset:{f[2](ks)+256*h}', R(reg+2*h, 2)) for h in range(2)]
    def rd_x(s, ks, b=None, ar=2, off=0):
        b = b or s.XB + 20*ks
        return [('r', f'ds_read_b128 {vr(b+4*t,4)}, v{ar if t < 4 else ar+1} offset:{off+((t>>1)*2*BL+512*(t&1) if t < 4 else 0)+64*ks}', R(b+4*t, 4)) for t in range(5)]
    def mm(s, f, ks, reg=None, xb=None):
        r = []; reg = reg or f[0]; xb = xb or s.XB + 20*ks
        for acc, t in f[3]:
            x = xb + 4*t
            A, B = (x, reg) if f[4] else (reg, x)
            r.append(('m', f'{MF} {vr(acc,4)}, {vr(A,4)}, {vr(B,4)}, {vr(acc,4)}', R(x, 4) + R(reg, 4)))
        return r
    def stg(s, b, areg, off):
        return [('t', f'v_cvt_pk_bf16_f32 v{b}, v{b}, v{b+1}'), ('t', f'v_cvt_pk_bf16_f32 v{b+1}, v{b+2}, v{b+3}'), ('r', f'ds_write_b64 v{areg}, {vr(b,2)} offset:{off}', [])]
    def stage(s, mode, extra):
        F = s.frags(mode); ops = []; n = len(F)
        sal = [('t', t) for t in ['s_add_u32 s36, s36, 1', 's_cmp_eq_u32 s36, 3', 's_cselect_b32 s36, 0, s36', f's_cselect_b32 s38, s37, {SL}'] + extra]
        hi = s.rd_x(1); lo = s.rd_w(F[-1], 1, s.ALT)
        def gap():
            if sal: ops.append(sal.pop(0))
            if hi: ops.append(hi.pop(0))
            elif lo: ops.append(lo.pop(0))
        for i, f in enumerate(F):
            for m in s.mm(f, 0): ops.append(m); gap()
            if i < n-1: hi += s.rd_w(f, 1)
        assert not hi and not lo
        hi = [('t', f'v_add_u32 v{r}, s38, v{r}') for r in (4, 2, 3, 5)]
        for i, f in enumerate(F):
            if i == 1:
                assert not hi
                ops.extend([('w0',), ('t', 's_barrier')])
                hi = s.rd_w(F[0], 0) + s.rd_x(0); lo = s.rd_w(F[-1], 0)
            for m in s.mm(f, 1, s.ALT if i == n-1 else None): ops.append(m); gap()
            if 1 <= i < n-1: hi += s.rd_w(f, 0)
        assert not hi and not lo, (hi, lo)
        if s.o.x_nomm: ops = [x for x in ops if x[0] != 'm']
        if s.o.x_nord: ops = [x for x in ops if x[0] != 'r']
        return ops
    def tail(s):
        o = s.o
        F = s.frags('qkv'); q0, q1, k0, k1, v0, v1 = F
        M = []; rd = []; st = []
        def grp(ms):
            M.extend(ms); return len(M) - 1
        XS = [s.XB, s.XB+20, s.XB2]; WS = [s.WV_, s.WQ, s.WQ+8]
        def vrd(j, after):
            sl, ks = (j >> 1) - 1, j & 1
            x = s.rd_x(ks, XS[j % 3], 6, SL*sl) if j >= 2 else []
            w = []
            for i in range(2):
                f = [0, (210 if j >= 2 else 4) + i, (lambda ks: SL*sl + ks*BL) if j >= 2 else v0[2]]
                w.append(s.rd_w(f, ks, WS[j % 3] + 4*i))
            for y in w[0] + x + w[1]: rd.append((after, y))
        for y in s.rd_x(1): rd.append((0, y))
        e = grp(s.mm(q0, 0)); rd += [(e, y) for y in s.rd_w(q0, 1)]
        e = grp(s.mm(q1, 0)); rd += [(e, y) for y in s.rd_w(q1, 1)]
        e = grp(s.mm(k0, 0)); vrd(0, 0); rd += [(e, y) for y in s.rd_w(k0, 1)] + [(0, y) for y in s.rd_w(k1, 1, s.ALT)]
        def staged(f, ms, areg, off):
            for (acc, t), m in zip(f[3], ms):
                M.append(m)
                for y in (s.stg(acc, areg, off + (4*(t >> 1) + (t & 1))*2048) if t < 4 else s.stg(acc, 206, 2048 if f[4] else 0)): st.append((len(M) + 1, y))
        staged(q0, s.mm(q0, 1), 84, 0); staged(q1, s.mm(q1, 1), 85, 0)
        vrd(1, len(M) - 1)
        grp(s.mm(k1, 0))
        staged(k0, s.mm(k0, 1), 84, KS-QS); staged(k1, s.mm(k1, 1, s.ALT), 85, KS-QS)
        nq = len(rd)
        if o.prof: st.append((0, ('t', s.tst(3))))
        st.append((('d', o.bdel, nq), ('w0',))); st.append((0, ('t', 's_barrier')))
        if o.prof: st.append((0, ('t', s.tst(4))))
        xo = s.x_ops()
        for k, y in enumerate(xo): st.append((('d', 4, 0) if k == 6 else 0, y))
        if o.prof: st.append((0, ('t', s.tst(5))))
        e = len(M) - 1
        for j in range(6):
            if j + 2 < 6: vrd(j+2, e)
            if j < 5:
                grp(s.mm(v0, 0, WS[j % 3], XS[j % 3])); e = grp(s.mm(v1, 0, WS[j % 3] + 4, XS[j % 3]))
            else:
                staged(v0, s.mm(v0, 0, WS[j % 3], XS[j % 3]), 86, 0); staged(v1, s.mm(v1, 0, WS[j % 3] + 4, XS[j % 3]), 87, 0)
        dl = []
        for c, y in rd:
            dl.append(min(g for g, m in enumerate(M) if g > c and set(y[2]) & set(m[2])) - o.lead)
        for k in range(len(dl)-2, -1, -1): dl[k] = min(dl[k], dl[k+1] - 1)
        ops = []; nrd = 0; lastg = 0
        def ok(c, g):
            if isinstance(c, tuple): return g >= lastg + c[1] and nrd >= c[2]
            return g >= c
        for g, m in enumerate(M):
            ops.append(m); n = 0
            waitbar = st and st[0][1][0] == 'w0' and nrd >= nq
            if rd and rd[0][0] <= g and dl[nrd] <= g: ops.append(rd.pop(0)[1]); nrd += 1; n += 1
            k = 0
            while st and k < o.nf and ok(st[0][0], g):
                y = st.pop(0)[1]; ops.append(y); lastg = g
                if not (y[0] == 'w0' or y[1].startswith(('s_b', 's_mem')) or not y[1]): k += 1
            if n + k == 0 and rd and rd[0][0] <= g and not waitbar: ops.append(rd.pop(0)[1]); nrd += 1
        assert not rd
        ops += [y for c, y in st]
        s.check_order(ops)
        return ops
    def check_order(s, ops):
        pend = {}
        for y in ops:
            if y[0] == 'r':
                for r in y[2]:
                    assert not pend.get(r), ('overwritten before use', y)
                    pend[r] = True
            elif y[0] == 'm':
                for r in y[2]: pend[r] = False
    def b_compute(s):
        a = s.a; o = s.o
        a('L_Bc:')
        if not o.doB: a('s_endpgm')
        s.prefetch()
        a(f'''v_bfe_u32 v6, v0, 1, 2
        v_and_b32 v7, 1, v0
        v_bfe_u32 v4, v0, 3, 1
        v_lshl_add_u32 v7, v4, 1, v7
        v_and_b32 v4, 0x30, v0
        v_lshl_add_u32 v7, v7, 7, v4
        s_and_b32 s6, s3, 1
        s_mul_i32 s6, s6, {BL}
        v_mul_u32_u24 v2, 1056, v6
        v_add3_u32 v2, v2, v7, s6
        v_mul_u32_u24 v3, 544, v6
        v_add_u32 v3, v3, v7
        v_add_u32 v3, {L_XH}, v3
        v_mov_b32 v6, v2
        v_mov_b32 v7, v3''')
        for r in list(range(8, 44)) + list(range(88, 156)) + [83, 84]: a(f'v_mov_b32 v{r}, 0')
        a('s_waitcnt lgkmcnt(0)')
        s.b_const()
        a(f'''s_lshl_b32 s6, s3, 5
        v_add_u32 v4, s6, v207
        s_xor_b32 s6, s6, 32
        v_add_u32 v5, s6, v207
        v_add_u32 v210, {L_WV}, v4
        v_add_u32 v211, {L_WV}, v5
        s_and_b32 s6, s3, 1
        s_lshl_b32 s7, s6, 12
        s_add_u32 s7, s7, {QS}
        s_lshl_b32 s4, s3, 9
        s_add_u32 s5, s7, s4
        v_add_u32 v84, s5, v255
        s_add_u32 s5, s4, {HS}
        v_add_u32 v206, s5, v255
        s_xor_b32 s4, s4, 512
        s_add_u32 s5, s7, s4
        v_add_u32 v85, s5, v255
        v_add_u32 v86, {VS-QS}, v84
        v_add_u32 v87, {VS-QS}, v85
        s_mov_b32 s36, 0
        s_mov_b32 s37, {-2*SL & 0xffffffff}
        s_mov_b32 s35, 0''')
        a('s_barrier')
        s.ts(2)
        F = s.frags('qkv')
        l1 = s.stage('qkv', ['s_add_u32 s35, s35, 1', 's_cmp_lt_u32 s35, 6'])
        for y in l1[l1.index(('w0',)):]:
            if y[0] == 'r': a(y[1])
        a('.p2align 3\n L_Bl1:')
        a(resolve(l1, cap=15, age=6))
        a('s_cbranch_scc1 L_Bl1')
        a('.p2align 3\n L_Bl2:')
        l2 = s.stage('qk', ['s_add_u32 s35, s35, 1', 's_cmp_lt_u32 s35, 8'])
        a(resolve(l2, cap=15, age=6))
        a('s_cbranch_scc1 L_Bl2\n s_waitcnt vmcnt(0)')
        a(resolve(l2 + [('t', '@@')] + s.tail(), loop=False, cap=15, age=5).split('@@')[1])
        a('s_waitcnt lgkmcnt(0)\n s_barrier')
        s.vreads()
        if o.cinb == 0: a(s.inl())
    QR, KC, KP, QM, LL, TT, PP, MM, IN, VV, OF = 88, 96, 104, 112, 128, 148, 172, 160, 216, 224, 240
    def Lr(s, sl): return {0: 128, 4: 132, 1: 136, 2: 140, 3: 144}[sl]
    def inl(s): return f'buffer_load_dwordx4 {vr(s.IN,4)}, v248, s[24:27], s78 offen sc1\n buffer_load_dwordx4 {vr(s.IN+4,4)}, v248, s[24:27], s79 offen sc1'
    def vreads(s):
        for t in (1, 2, 0, 3):
            s.a(f'ds_read_b64 {vr(s.VV+4*t,2)}, v203 offset:{512*t}\n ds_read_b64 {vr(s.VV+4*t+2,2)}, v205 offset:{512*t}')
    def qmask(s, t, hi):
        r = []
        for h in range(2):
            m = f's[{40+4*t+2*h}:{41+4*t+2*h}]'; q = f'v{s.QR+2*t+h}'
            r.append(('m', f'v_cndmask_b32 v{s.QM+4*t+2*hi+h}, {q}, 0, {m}' if hi else f'v_cndmask_b32 v{s.QM+4*t+h}, 0, {q}, {m}', [s.QR+2*t+h]))
        return r
    def merge(s, L, T, n):
        r = [('t', 's_mov_b64 exec, s[100:101]')]
        if s.o.m64: r += [('t', f'v_mov_b64 {vr(L+2*i,2)}, {vr(T+2*i,2)}') for i in range(n//2)]
        else: r += [('t', f'v_mov_b32 v{L+i}, v{T+i}') for i in range(n)]
        return [('t', '\n'.join(y[1] for y in r + [('t', 's_mov_b64 exec, -1')]))]
    def x_ops(s):
        r = []
        for d, ar in ((s.QR, 202), (s.KC, 201), (s.KP, 204)):
            for j in range(2): r.append(('r', f'ds_read2st64_b64 {vr(d+4*j,4)}, v{ar} offset0:{2*j} offset1:{2*j+1}', R(d+4*j, 4)))
        r += s.qmask(0, 0) + s.qmask(3, 1)
        for j, (sl, k, q) in enumerate(((0, 0, s.QM), (4, 6, s.QM+14))):
            r.append(('m', f'{MF16} {vr(s.Lr(sl),4)}, {vr(s.KC+k,2)}, {vr(q,2)}, v[192:195]', R(s.KC+k, 2)))
        for j, (sl, k, q) in enumerate(((0, 0, s.QM), (4, 6, s.QM+14))):
            r.append(('m', f'{MF16} {vr(s.TT+4*j,4)}, {vr(s.KP+k,2)}, {vr(q,2)}, v[192:195]', R(s.KP+k, 2)))
        r += s.qmask(0, 1) + s.qmask(1, 0) + s.qmask(1, 1)
        r += s.merge(128, s.TT, 8)
        for j in range(2):
            r.append(('t', f'v_min_u32 v{128+4*j}, -2, v{128+4*j}'))
            r.append(('t', f'buffer_store_dwordx4 {vr(128+4*j,4)}, v248, s[24:27], s{76+j} offen {s.o.hsf}'))
        r += s.qmask(2, 0) + s.qmask(2, 1) + s.qmask(3, 0)
        return r
    def bfly(s, n, op, mid):
        a = s.a; b, c, d, t = [f'v{s.MM+i}' for i in range(4)]
        if n == 3:
            a(f'''v_mov_b32 {t}, {d}
            v_permlane32_swap_b32 {b}, {c}
            v_permlane32_swap_b32 {d}, {t}
            {op} {b}, {b}, {c}
            {op} {d}, {d}, {t}
            v_permlane16_swap_b32 {b}, {d}
            {op} {b}, {b}, {d}
            {mid(d, b)}
            {mid(b, b)}
            v_permlane16_swap_b32 {b}, {d}
            v_mov_b32 {c}, {b}
            v_permlane32_swap_b32 {b}, {c}''')
        else:
            a(f'''v_permlane32_swap_b32 {b}, {c}
            {op} {t}, {b}, {c}
            {op} {b}, {b}, {c}
            v_permlane16_swap_b32 {b}, {t}
            {op} {b}, {b}, {t}
            {mid(c, b)}
            {mid(b, b)}
            v_permlane32_swap_b32 {b}, {c}''')
    def softmax(s, slots, mid=''):
        a = s.a; n = len(slots); pk = s.o.pk
        rev = list(enumerate(slots))[::-1]
        for j, sl in enumerate(slots):
            L = s.Lr(sl); a(f'v_max3_f32 v{s.MM+j}, v{L}, v{L+1}, v{L+2}')
        for j, sl in enumerate(slots):
            L = s.Lr(sl); a(f'v_max_f32 v{s.MM+j}, v{s.MM+j}, v{L+3}')
        s.bfly(n, 'v_max_f32', lambda d, x: f'v_mul_f32 {d}, s70, {x}')
        a(mid)
        for j, sl in rev:
            L = s.Lr(sl); mp = vr((s.MM+j) & ~1, 2); b = j & 1
            if pk:
                for i in (0, 2): a(f'v_pk_fma_f32 {vr(L+i,2)}, {vr(L+i,2)}, s[70:71], {mp} op_sel:[0,0,{b}] op_sel_hi:[1,0,{b}] neg_lo:[0,0,1] neg_hi:[0,0,1]')
            else:
                for i in range(4): a(f'v_fma_f32 v{L+i}, v{L+i}, s70, -v{s.MM+j}')
            for i in range(4): a(f'v_exp_f32 v{L+i}, v{L+i}')
        for j, sl in rev:
            L = s.Lr(sl); T = s.TT + 2*j
            a(f'v_pk_add_f32 {vr(T,2)}, {vr(L,2)}, {vr(L+2,2)}' if pk else f'v_add_f32 v{T}, v{L}, v{L+1}\n v_add_f32 v{T+1}, v{L+2}, v{L+3}')
        for j, sl in rev:
            a(f'v_add_f32 v{s.MM+j}, v{s.TT+2*j}, v{s.TT+2*j+1}')
        s.bfly(n, 'v_add_f32', lambda d, x: f'v_rcp_f32 {d}, {x}')
        for j, sl in rev:
            L = s.Lr(sl); mp = vr((s.MM+j) & ~1, 2); b = j & 1
            if pk:
                for i in (0, 2): a(f'v_pk_mul_f32 {vr(L+i,2)}, {vr(L+i,2)}, {mp} op_sel:[0,{b}] op_sel_hi:[1,{b}]')
            else:
                for i in range(4): a(f'v_mul_f32 v{L+i}, v{L+i}, v{s.MM+j}')
        for half in range(2):
            a('s_mov_b64 exec, s[100:101]' if half else 's_not_b64 exec, s[100:101]')
            for j, sl in rev:
                L = s.Lr(sl); P = s.PP + 4*sl + 2*half
                for h in range(2): a(f'v_cvt_pk_bf16_f32 v{P+h}, v{L+2*h}, v{L+2*h+1}')
        a('s_mov_b64 exec, -1')
    def b_attn(s):
        a = s.a; o = s.o
        a('L_BF:')
        s.ts(6)
        for sl in (1, 2, 3):
            a(f'{MF} {vr(s.TT+4*sl-4,4)}, {vr(s.KP+2*sl-2,4)}, {vr(s.QM+4*sl-2,4)}, v[192:195]')
            a(f'{MF} {vr(s.Lr(sl),4)}, {vr(s.KC+2*sl-2,4)}, {vr(s.QM+4*sl-2,4)}, v[192:195]')
        for y in s.merge(136, s.TT, 12): a(y[1])
        s.softmax((1, 2, 3), ('s_cmp_ge_u32 s3, 4\n s_cbranch_scc1 L_Bi\n' + s.inl() + '\n L_Bi:') if o.cinb == 1 else '')
        s.ts(7)
        a('s_cmp_lt_u32 s3, 4\n s_cbranch_scc1 L_Bw')
        a('s_waitcnt vmcnt(0)\n s_barrier')
        s.vreads()
        a(s.inl())
        a('L_Bw:')
        s.ts(8)
        O = 88
        def pv(t, hi): a(f'{MF} {vr(O+8*t+4*hi,4)}, {vr(s.VV+4*t,4)}, {vr(s.PP+4*(t+hi),4)}, 0')
        def ocvt(ts, d):
            for k, t in enumerate(ts):
                for h in range(2): a(f'v_cvt_pk_bf16_f32 v{d+2*k+h}, v{O+8*t+4+2*h}, v{O+8*t+4+2*h+1}')
            for k, t in enumerate(ts):
                for h in range(2): a(f's_mov_b64 exec, s[{40+4*t+2*h}:{41+4*t+2*h}]\n v_cvt_pk_bf16_f32 v{d+2*k+h}, v{O+8*t+2*h}, v{O+8*t+2*h+1}')
            a(f's_mov_b64 exec, -1\n v_min_u32 v{d}, -2, v{d}')
        a('s_waitcnt lgkmcnt(4)')
        for t, hi in ((1, 1), (2, 1), (1, 0), (2, 0)): pv(t, hi)
        a('s_waitcnt lgkmcnt(0)')
        pv(0, 1); pv(3, 0)
        ocvt((1, 2), s.OF)
        a(f'buffer_store_dwordx4 {vr(s.OF,4)}, v248, s[24:27], s74 offen {o.hsf}')
        a('s_cmp_lt_u32 s3, 4\n s_cbranch_scc1 L_Bw2')
        for p in range(10, 18): a(s.wo_dma(p))
        I = s.IN
        a(f'''s_waitcnt vmcnt(9)
        s_branch L_Bw3
        L_Bw2:
        s_waitcnt vmcnt(1)
        L_Bw3:
        s_movk_i32 s5, {SPIN}
        L_By:
        v_max_u32 v{s.TT}, v{I}, v{I+4}
        v_cmp_eq_u32 vcc, -1, v{s.TT}
        s_cbranch_vccz L_Byd
        {s.inl()}
        s_sub_u32 s5, s5, 1
        s_waitcnt vmcnt(0)
        s_cbranch_scc0 L_By
        L_Byd:''')
        s.ts(9)
        if o.pk:
            for i in range(0, 8, 2): a(f'v_pk_add_f32 {vr(128+i,2)}, {vr(128+i,2)}, {vr(I+i,2)}')
        else:
            for i in range(8): a(f'v_add_f32 v{128+i}, v{128+i}, v{I+i}')
        s.softmax((0, 4))
        pv(3, 1); pv(0, 0)
        ocvt((0, 3), s.OF+4)
        a(f'buffer_store_dwordx4 {vr(s.OF+4,4)}, v248, s[24:27], s74 offen offset:1024 {o.hsf}')
    def b2(s):
        a = s.a
        ACC = 72; W = 88
        def rd(pos):
            r = []
            for c in range(4):
                for h in range(2):
                    off = s.wo_off(pos) + 32*c + 512*h
                    d = W + 16*(pos % 9) + 4*c + 2*h
                    r.append(('r', f'ds_read_b64_tr_b16 {vr(d,2)}, v{250 if off < 2*SL else 251} offset:{off % (2*SL)}', R(d, 2)))
            return r
        def mm(pos, pend):
            B = s.OF + 4*pos if pos < 2 else 8 + 4*(pos-2)
            r = []
            for c in range(4):
                A = W + 16*(pos % 9) + 4*c
                r.append(('m', f'{MF} {vr(ACC+4*c,4)}, {vr(A,4)}, {vr(B,4)}, {vr(ACC+4*c,4) if pos else 0}', R(A, 4)))
                for _ in range(2):
                    if pend: r.append(pend.pop(0))
            return r
        def lds(ps): return '\n'.join(f'buffer_load_dwordx4 {vr(8+4*(p-2),4)}, v248, s[24:27], s{s.OS[(p-2) % 8]} offen offset:{1024*(p >= 10)} sc1' for p in ps)
        retry = []
        def chk(ps, n, lab):
            d = [8+4*(p-2) for p in ps]
            t = f's_waitcnt vmcnt({n})\n {lab}:\n v_max3_u32 v232, v{d[0]}, v{d[1]}, v{d[2]}\n'
            for k in range(3, len(d), 2): t += f'v_max3_u32 v232, v232, v{d[k]}, v{d[min(k+1, len(d)-1)]}\n'
            t += f'v_cmp_eq_u32 vcc, -1, v232\n s_cbranch_vccnz {lab}r\n {lab}d:'
            retry.append(f'{lab}r:\n s_sub_u32 s5, s5, 1\n s_cmp_lt_i32 s5, 0\n s_cbranch_scc1 {lab}d\n {lds(ps)}\n s_waitcnt vmcnt(0)\n s_branch {lab}')
            return ('t', t)
        s.ts(10)
        a(lds(range(2, 10)))
        a(f's_movk_i32 s5, {SPIN}\n s_cmp_ge_u32 s3, 4\n s_cbranch_scc1 L_Bb1\n s_barrier\n L_Bb1:')
        s.ts(11)
        ops = []
        for p in range(9): ops += rd(p)
        ops += mm(0, []); ops += mm(1, rd(9))
        ops.append(('t', 's_cbranch_scc0 L_Bb2\n s_waitcnt vmcnt(9)\n s_barrier\n L_Bb2:'))
        ops += rd(10); ops.append(('t', s.tst(12)))
        ops.append(chk(range(2, 10), 0, 'L_Bk0'))
        ops.append(('t', lds(range(10, 18))))
        ops.append(('t', s.tst(13)))
        pend = []
        for p in range(2, 18):
            if p == 10: ops.append(chk(range(10, 14), 4, 'L_Bk1'))
            if p == 14:
                ops.append(chk(range(14, 18), 0, 'L_Bk2'))
                if s.o.clean: ops.append(('t', '\n'.join(f'buffer_store_dwordx4 {vr(s.OF+4*h,4)}, v248, s[24:27], s74 offen offset:{1024*h} sc1\n buffer_store_dwordx4 {vr(s.OF+4*h,4)}, v248, s[24:27], s{78+h} offen sc1' for h in range(2))))
            ops += mm(p, pend)
            if p + 9 < 18: pend = rd(p+9)
        a(resolve(ops, loop=False, cap=8))
        s.ts(14)
        for c in range(4):
            for h in range(2): a(f'v_cvt_pk_bf16_f32 v{ACC+4*c+h}, v{ACC+4*c+2*h}, v{ACC+4*c+2*h+1}')
            a(f'ds_write_b64 v252, {vr(ACC+4*c,2)} offset:{32*c}')
        a(f'''s_waitcnt lgkmcnt(0)
        ds_read_b128 v[8:11], v253
        ds_read_b128 v[12:15], v253 offset:{8*144}
        s_add_u32 s4, s73, {16*2304}
        s_waitcnt lgkmcnt(1)
        buffer_store_dwordx4 v[8:11], v254, s[20:23], s73 offen {s.o.osf}
        s_waitcnt lgkmcnt(0)
        buffer_store_dwordx4 v[12:15], v254, s[20:23], s4 offen {s.o.osf}''')
        s.ts_dump(16)
        a('s_endpgm')
        for t in retry: a(t)
    def a_part(s):
        a = s.a; o = s.o
        a('L_A:')
        if not o.doA: a('s_endpgm'); return
        import genA
        genA.a_part(s)
    def build(s):
        s.entry(); s.b_loader(); s.b_compute(); s.b_attn(); s.b2(); s.a_part()
        s.a('L_end:\n L_last:\n s_endpgm')
        return single_file(haz.fix(s.a.text()), NWG, 512, LDS_BYTES)
def gen(**kw):
    o = Opt()
    for k, v in kw.items(): setattr(o, k, v)
    return G(o).build()
if __name__ == '__main__':
    kw = {}
    for x in sys.argv[2:]:
        k, v = x.split('='); kw[k] = eval(v)
    open(sys.argv[1], 'w').write(gen(**kw))
```

```python
from gen import *
AST = 4*BL
def a_part(s):
    a = s.a; o = s.o
    a(f'''s_sub_u32 s33, s33, 18
    s_mul_i32 s40, s32, 6
    s_add_u32 s40, s40, s33
    s_cmp_ge_u32 s33, 6
    s_cselect_b32 s6, 6, 0
    s_addc_u32 s32, s32, 0
    s_sub_u32 s33, s33, s6
    s_mul_i32 s34, s33, 3
    s_lshr_b32 s34, s34, 1
    s_mul_i32 s34, s34, {o.rota}
    s_cmp_lt_u32 s3, 4
    s_cbranch_scc1 L_Ac''')
    a(f'''s_sub_u32 s39, s3, 4
    v_and_b32 v1, 7, v0
    v_lshlrev_b32 v1, 4, v1
    v_bfe_u32 v2, v0, 3, 1
    v_bfe_u32 v3, v0, 4, 1
    v_lshrrev_b32 v4, 5, v0
    v_lshl_add_u32 v2, v3, 4, v2
    v_lshl_add_u32 v2, v4, 2, v2
    s_and_b32 s6, s39, 1
    s_lshl_b32 s6, s6, 1
    s_lshr_b32 s7, s39, 1
    s_lshl_b32 s7, s7, 3
    s_add_u32 s6, s6, s7
    v_add_u32 v2, s6, v2
    v_mul_u32_u24 v2, {32*1152}, v2
    v_add_u32 v2, v2, v1
    s_mul_i32 s63, s32, 2304
    s_mul_i32 s64, s39, 1056
    s_mov_b32 s66, 0
    s_waitcnt lgkmcnt(0)
    s_mov_b32 s8, s4
    s_mov_b32 s9, s5''')
    if o.adel: a('s_barrier')
    a('L_Ald:')
    def stage(lab, n):
        a('s_lshl_b32 s68, s34, 7\n s_add_u32 s68, s68, s63')
        for b in range(4):
            s.dma('s64', b*BL, 's68', (1024*(b & 1) + (b >> 1))*1152, 'v2', 's[8:11]')
        a(f'''s_add_u32 s34, s34, 1
        s_cmp_eq_u32 s34, 9
        s_cselect_b32 s34, 0, s34
        s_add_u32 s64, s64, {AST}
        s_add_u32 s66, s66, 1
        s_cmp_lt_u32 s66, {n}
        s_cbranch_scc1 {lab}''')
    ap = o.apos
    stage('L_Ald', ap)
    a(f'''v_lshlrev_b32 v5, 4, v0
    v_mov_b32 v8, -1
    v_mov_b32 v9, -1
    v_mov_b32 v10, -1
    v_mov_b32 v11, -1
    s_mul_i32 s6, s40, 24576
    s_mul_i32 s7, s39, 6144
    s_add_u32 s6, s6, s7
    v_lshrrev_b32 v6, 4, v0
    v_mul_u32_u24 v6, 147456, v6
    v_and_b32 v7, 0xf0, v5
    v_add_u32 v6, v6, v7''')
    a(f's_mul_i32 s50, s40, 768\n s_mul_i32 s7, s39, {8*73728}\n s_add_u32 s50, s50, s7')
    P = []
    for base in (WS_XC, WS_O):
        for h in range(2):
            for k in range(3): P.append(f's_add_u32 s7, s6, {base + 3072*h}\n buffer_store_dwordx4 v[8:11], v5, s[24:27], s7 offen offset:{1024*k} {o.psf}')
    for cl in range(2):
        for k in range(3): P.append(f's_add_u32 s7, s50, {WS_U + 73728*cl}\n buffer_store_dwordx4 v[8:11], v6, s[24:27], s7 offen offset:{256*k} sc1')
    n = 0; b = 0
    if o.nopois: P = ['']*18
    while n < 18:
        a(f's_waitcnt vmcnt({32-4*b+(0 if o.nopois else n)})\n s_barrier')
        for y in P[n:n+o.aper]: a(y)
        n = min(18, n + o.aper); b += 1
    while b < o.aend:
        a(f's_waitcnt vmcnt({32-4*b+(0 if o.nopois else n)})\n s_barrier'); b += 1
    a('s_waitcnt vmcnt(0)\n s_barrier'); b += 1
    assert b <= 9
    a('s_cmp_lg_u32 s3, 4\n s_cbranch_scc1 L_Ald3\n v_mov_b32 v8, 1\n s_lshl_b32 s6, s32, 4\n s_mov_b64 exec, 1\n buffer_atomic_add v8, off, s[28:31], s6 sc1\n L_Ald3:')
    a('s_endpgm')
    ACC, HID, XB, FF = 8, 72, 144, 208
    a('L_Ac:')
    s.prefetch(250)
    if not o.apf: a('s_cmp_eq_u32 s3, 3\n s_cbranch_scc1 L_end')
    else:
        a(f'''s_cmp_lg_u32 s3, 3
        s_cbranch_scc1 L_Ac0
        s_lshr_b32 s6, s2, 3
        s_sub_u32 s6, s6, 18
        s_mul_i32 s6, s6, {432*128}
        v_lshlrev_b32 v1, 7, v0
        s_waitcnt lgkmcnt(0)''')
        for k in range(o.apf - 1): a('s_barrier')
        a('s_lshl_b32 s7, s40, 13\n buffer_load_dword v2, v1, s[16:19], s7 offen')
        for k in range(o.apf2): a('s_barrier')
        for k in range(7 if o.apf2 else 0):
            a('buffer_load_dword v2, v1, s[16:19], s6 offen\n s_add_u32 s6, s6, 8192')
        a('s_endpgm\n L_Ac0:')
    a(f'''v_and_b32 v240, 15, v0
    v_lshrrev_b32 v241, 4, v0
    s_mul_i32 s41, s33, 3
    s_add_u32 s41, s41, s3
    s_lshl_b32 s6, s41, 4
    v_add_u32 v242, s6, v240
    v_mul_u32_u24 v243, 911, v242
    v_lshrrev_b32 v243, 16, v243
    v_mul_u32_u24 v244, 287, v243
    v_lshlrev_b32 v245, 2, v242
    v_sub_u32 v244, v245, v244
    v_cvt_f32_u32 v245, v244
    v_mul_f32 v245, {fb(1/576)}, v245
    v_and_b32 v246, 1, v244
    v_mul_u32_u24 v246, 0x8000, v246
    v_lshl_or_b32 v246, v246, 16, v246
    s_lshl_b32 s6, s34, 6
    v_lshl_add_u32 v247, v241, 3, s6
    v_cvt_f32_u32 v247, v247''')
    T = XB
    for i in range(9):
        if o.adel == i + 1: a('s_barrier')
        a(f'v_mul_f32 v{T}, v247, v245\n v_add_f32 v247, {fb(32.0)}, v247\n v_fract_f32 v{T}, v{T}')
        for j in range(1, 8): a(f'v_add_f32 v{T+j}, v{T+j-1}, v245')
        for j in range(8): a(f'v_cos_f32 v{T+8+j}, v{T+j}')
        for j in range(8): a(f'v_sin_f32 v{T+j}, -v{T+j}')
        for h in range(4): a(f'v_cvt_pk_bf16_f32 v{HID+8*i+h}, v{T+8+2*h}, v{T+9+2*h}')
        for h in range(4): a(f'v_cvt_pk_bf16_f32 v{HID+8*i+4+h}, v{T+2*h}, v{T+1+2*h}')
    a('s_cmp_lg_u32 s41, 0\n s_cbranch_scc1 L_Ac1\n s_mov_b32 exec_lo, 0x10001\n s_mov_b32 exec_hi, 0x10001\n s_mov_b32 s6, 0xbf803f80')
    for i in range(9):
        for h in range(4): a(f'v_mov_b32 v{HID+8*i+4+h}, s6')
    a('s_mov_b64 exec, -1\n L_Ac1:')
    a(f'''v_lshrrev_b32 v1, 1, v240
    v_cvt_f32_u32 v1, v1
    v_mul_f32 v1, {fb(1/64)}, v1
    v_and_b32 v2, 1, v240
    v_cvt_f32_u32 v2, v2
    v_mul_f32 v2, {fb(0.25)}, v2
    v_lshlrev_b32 v3, 3, v241
    v_cvt_f32_u32 v3, v3
    v_add_f32 v4, {fb(32.0)}, v3
    v_cmp_eq_u32 vcc, 1, v240
    v_cndmask_b32 v5, v1, 0.5, vcc
    v_cndmask_b32 v6, v2, 0, vcc''')
    for m in range(4):
        w, ph = ('v5', 'v6') if m == 0 else ('v1', 'v2')
        if m: a(f'v_add_f32 v1, {fb(0.125)}, v1')
        for q in range(2):
            a(f'v_fma_f32 v{T}, v{3+q}, {w}, {ph}')
            for j in range(1, 8): a(f'v_add_f32 v{T+j}, v{T+j-1}, {w}')
            for j in range(8): a(f'v_cos_f32 v{T+j}, v{T+j}')
            for h in range(4): a(f'v_cvt_pk_bf16_f32 v{FF+8*m+4*q+h}, v{T+2*h}, v{T+1+2*h}')
    a(f'''v_bfe_u32 v6, v0, 1, 2
    v_and_b32 v7, 1, v0
    v_bfe_u32 v4, v0, 3, 1
    v_lshl_add_u32 v7, v4, 1, v7
    v_and_b32 v4, 0x30, v0
    v_lshl_add_u32 v7, v7, 7, v4
    v_mul_u32_u24 v2, 1056, v6
    v_add_u32 v2, v2, v7
    v_add_u32 v3, {3*AST}, v2
    v_add_u32 v4, {6*AST}, v2
    s_waitcnt lgkmcnt(0)''')
    s.ts(1)
    a('s_barrier')
    s.ts(2)
    def rdx(ks):
        st = ks >> 1
        return [('r', f'ds_read_b128 {vr(XB+32*(ks&1)+4*t,4)}, v{2+st//3} offset:{(st%3)*AST+(t>>1)*BL+(t&1)*512+(ks&1)*64}', R(XB+32*(ks&1)+4*t, 4)) for t in range(8)]
    ops = rdx(0)
    for ks in range(18):
        pend = []
        if ks < 17:
            if ks & 1: ops.append(('t', 's_barrier'))
            pend += rdx(ks+1)
        if 1 <= ks <= 9: pend += [('t', f'v_xor_b32 v{HID+8*(ks-1)+h}, v246, v{HID+8*(ks-1)+h}') for h in range(8)]
        for t in range(8):
            for ab in range(2):
                x = XB+32*(ks&1)+4*t; acc = ACC + 32*ab + 4*t
                ops.append(('m', f'{MF} {vr(acc,4)}, {vr(x,4)}, {vr(HID+8*(ks%9)+4*ab,4)}, {vr(acc,4) if ks else 0}', R(x, 4)))
                if pend: ops.append(pend.pop(0))
        ops += pend
    a(resolve(ops, loop=False, cap=4))
    s.ts(3)
    Z, U = XB, HID
    a(f'''s_mul_i32 s6, s32, 4608
    v_mul_u32_u24 v5, 147456, v241
    v_lshl_add_u32 v5, v242, 4, v5
    v_add_u32 v5, s6, v5''')
    for k in range(8):
        for h in range(4): a(f'v_cvt_pk_bf16_f32 v{Z+4*k+h}, v{ACC+8*k+2*h}, v{ACC+8*k+2*h+1}')
    for m in range(4):
        for q in range(2):
            for ab in range(2):
                for s2 in range(2):
                    u = U + 16*m + 8*ab + 4*s2
                    a(f'{MF} {vr(u,4)}, {vr(FF+8*m+4*q,4)}, {vr(Z+16*ab+8*s2+4*q,4)}, {vr(u,4) if q else 0}')
        for mm in ([m-1] if m else []) + ([3] if m == 3 else []):
            for cl in range(2):
                g = ACC + 8*mm + 4*cl
                for ab in range(2):
                    for ri in range(2):
                        u = U + 16*mm + 8*ab + 2*cl + ri
                        a(f'v_cvt_pk_bf16_f32 v{g+2*ab+ri}, v{u}, v{u+4}')
                a(f'v_min_u32 v{g}, -2, v{g}\n s_mov_b32 s6, {WS_U + (8*mm+cl)*73728}\n buffer_store_dwordx4 {vr(g,4)}, v5, s[24:27], s6 offen sc1')
    a('v_lshlrev_b32 v248, 4, v240\n buffer_load_dword v249, v248, s[28:31], 0 offen sc1')
    s.ts(4)
    CF, UD, AC2, AD = 72, 136, 8, 216
    CS = 200
    a(f'''s_mul_i32 s42, s40, 43
    s_lshr_b32 s42, s42, 7
    s_mul_i32 s6, s42, 3
    s_sub_u32 s43, s40, s6
    s_mul_i32 s43, s43, 3
    s_add_u32 s43, s43, s3
    v_lshlrev_b32 v3, 3, v241
    v_cvt_f32_u32 v3, v3
    s_mov_b32 s44, 0x80008000''')
    def trig(cl):
        a(f'v_lshl_add_u32 v1, v240, 6, {cl}\n v_cvt_f32_u32 v1, v1\n v_mul_f32 v1, {fb(1/2048)}, v1')
        for tt in range(2):
            if tt: a('v_add_f32 v1, 0.5, v1')
            a(f'v_mul_f32 v{UD}, v3, v1')
            for j in range(1, 8): a(f'v_add_f32 v{UD+j}, v{UD+j-1}, v1')
            for j in range(8): a(f'v_cos_f32 v{UD+8+j}, v{UD+j}')
            for j in range(8): a(f'v_sin_f32 v{UD+j}, v{UD+j}')
            for q in range(4): a(f'v_cvt_pk_bf16_f32 v{CS+8*tt+q}, v{UD+8+2*q}, v{UD+9+2*q}')
            for q in range(4): a(f'v_cvt_pk_bf16_f32 v{CS+8*tt+4+q}, v{UD+2*q}, v{UD+1+2*q}')
    trig('s42')
    for tt in range(2):
        for q in range(4):
            c = CS+8*tt+q; sn = c+4; M = CF + 16*tt + 4*q; N = M + 32
            a(f'''v_mov_b32 v{M}, v{c}
            v_mov_b32 v{M+1}, v{sn}
            v_mov_b32 v{M+2}, v{sn}
            v_xor_b32 v{M+3}, s44, v{c}
            v_mov_b32 v{N}, v{c}
            v_mov_b32 v{N+1}, v{sn}
            v_xor_b32 v{N+2}, s44, v{sn}
            v_mov_b32 v{N+3}, v{c}''')
    a('s_mov_b32 s45, s42\n s_cmp_lg_u32 s42, 0\n s_cbranch_scc1 L_Ac2\n s_mov_b32 s45, 32')
    trig('32')
    for tt in range(2):
        for q in range(4):
            c = CS+8*tt+q; sn = c+4; M = CF + 16*tt + 4*q; N = M + 32
            a(f'''v_mov_b32 v{M+1}, 0
            v_mov_b32 v{M+3}, 0
            v_mov_b32 v{N}, 0
            v_mov_b32 v{N+1}, v{c}
            v_mov_b32 v{N+2}, 0
            v_xor_b32 v{N+3}, s44, v{sn}''')
    a('L_Ac2:')
    a(f'''s_lshl_b32 s6, s43, 6
    v_lshl_add_u32 v1, v240, 2, s6
    v_mul_u32_u24 v2, 18432, v241
    s_movk_i32 s7, 288
    v_cmp_gt_u32 s[46:47], s7, v1
    v_cmp_eq_u32 s[48:49], s7, v1
    v_cmp_eq_u32 s[50:51], 0, v1''')
    for j in range(4):
        a(f'''v_add_u32 v3, {j}, v1
        v_sub_u32 v4, 576, v3
        v_cndmask_b32 v3, v4, v3, s[46:47]''')
        if j == 0: a('v_cndmask_b32 v3, v3, 0, s[48:49]')
        a(f'''v_and_b32 v4, 3, v3
        v_lshrrev_b32 v3, 2, v3
        v_mul_u32_u24 v4, 72, v4
        v_add_u32 v3, v3, v4
        v_lshl_add_u32 v{232+j}, v3, 4, v2''')
    a(f'''s_or_b64 s[50:51], s[50:51], s[48:49]
    v_lshlrev_b32 v1, 1, v1
    v_lshlrev_b32 v2, 8, v241
    v_add_u32 v3, s42, v2
    v_sub_u32 v4, 2048, v3
    v_cndmask_b32 v3, v4, v3, s[46:47]
    v_add_u32 v5, s45, v2
    v_sub_u32 v4, 2048, v5
    v_cndmask_b32 v5, v5, v4, s[46:47]
    v_mov_b32 v6, {64*2304}
    v_mov_b32 v7, {-64*2304 & 0xffffffff}
    v_cndmask_b32 v6, v7, v6, s[46:47]
    v_lshlrev_b32 v7, 4, v6
    s_movk_i32 s6, 2304
    v_mad_u32_u24 v{AD}, v3, s6, v1
    v_mad_u32_u24 v{AD+8}, v5, s6, v1''')
    for i in range(1, 4): a(f'v_add_u32 v{AD+i}, v{AD+i-1}, v6\n v_sub_u32 v{AD+8+i}, v{AD+8+i-1}, v6')
    for i in range(4): a(f'v_add_u32 v{AD+4+i}, v{AD+i}, v7\n v_sub_u32 v{AD+12+i}, v{AD+8+i}, v7')
    a(f'''v_and_b32 v3, 2047, v3
    v_mad_u32_u24 v{AD}, v3, s6, v1
    s_mul_i32 s52, s42, 73728
    s_movk_i32 s5, {SPIN//8}''')
    for q in range(4): a(f's_add_u32 s{56+q}, s52, {WS_U + q*4608}')
    s.ts(5)
    a(f'''s_waitcnt vmcnt(0)
    L_An:
    v_cmp_gt_u32 vcc, 6, v249
    s_cbranch_vccz L_And
    s_sleep {o.slp}
    buffer_load_dword v249, v248, s[28:31], 0 offen sc1
    s_sub_u32 s5, s5, 1
    s_waitcnt vmcnt(0)
    s_cbranch_scc0 L_An
    L_And:
    s_movk_i32 s5, {SPIN}''')
    s.ts(6)
    order = [1, 2, 3, 0]
    ld = lambda q: '\n'.join(f'buffer_load_dwordx4 {vr(UD+16*q+4*j,4)}, v{232+j}, s[24:27], s{56+q} offen sc1' for j in range(4))
    for q in range(4): a(ld(q))
    retry = []
    for q in range(4):
        u = UD + 16*q
        a(f's_waitcnt vmcnt({12-4*q})\n L_Ak{q}:\n v_max3_u32 v1, v{u}, v{u+4}, v{u+8}\n v_max_u32 v1, v1, v{u+12}\n v_cmp_eq_u32 vcc, -1, v1\n s_cbranch_vccnz L_Ak{q}r\n L_Ak{q}d:')
        retry.append(f'L_Ak{q}r:\n s_sub_u32 s5, s5, 1\n s_cmp_lt_i32 s5, 0\n s_cbranch_scc1 L_Ak{q}d\n' + '\n'.join(ld(k) for k in range(q, 4)) + f'\n s_waitcnt vmcnt({12-4*q})\n s_branch L_Ak{q}')
        if q == 0: s.ts(9)
        u = UD + 16*q
        a(f'''v_cndmask_b32 v{u}, v{u}, v{u+2}, s[48:49]
        v_cndmask_b32 v{u+1}, v{u+1}, v{u+3}, s[48:49]
        v_cndmask_b32 v{u+2}, v{u+2}, 0, s[50:51]
        v_cndmask_b32 v{u+3}, v{u+3}, 0, s[50:51]''')
        for st in range(4):
            for j in order:
                acc = AC2 + 16*st + 4*j
                a(f'{MF} {vr(acc,4)}, {vr(CF+16*st+4*q,4)}, {vr(u+4*j,4)}, {vr(acc,4) if q else 0}')
    s.ts(7)
    for st in range(4):
        for i in range(4):
            b = AC2 + 16*st + i; d = UD + 8*st + 2*i
            a(f'v_cvt_pk_bf16_f32 v{d}, v{b}, v{b+4}\n v_cvt_pk_bf16_f32 v{d+1}, v{b+8}, v{b+12}')
            a(f'buffer_store_dwordx2 {vr(d,2)}, v{AD+4*st+i}, s[20:23], 0 offen {o.osf}')
    s.ts(8)
    s.ts_dump(16, 'a')
    a('s_endpgm')
    for r in retry: a(r)
```

```python
import sys, struct, math
sys.path.insert(0, 'exp')
from asmlib import *
import haz
def fb(x): return hex(struct.unpack('<I', struct.pack('<f', x))[0])
import os
WSB = int(os.environ.get('WSB', '0'), 0)
WS_U, WS_O, WS_XC, WS_TS = WSB, WSB+0x400000, WSB+0x800000, 0xD00000
SL = 44416; L_X = 0; L_WV = 16896; L_XH = 25344; L_WQK = 27520; BL = 4224
QS = L_WQK; KS = SL + L_WQK; VS = 2*SL + L_WQK
HS = 3*SL; TR = HS + 4096; LDS_BYTES = TR + 4*BL
NWG = 240
SPIN = 30000
class Opt:
    meas = None; aend = 7; slp = 8; adel = 0; nopois = 0; apf2 = 0; apf = 1; rotc = 1; rotg = 1; bmap = 1; tsel = None
    prof = False; clk = 's_memrealtime'; doA = True; doB = True; pre = True; hold = 2; osf = 'sc0 sc1'
    x_early = 0; x_nold = False; x_nomm = False; x_nord = False; rota = 1
    tsel = None; pk = 0; m64 = 1; lprio = 1; cinb = 1; wpf = 0; hsf = 'sc1'; psf = 'sc1'; clean = 0; cutA = 1; cpr = 0; xint = 5; nf = 3; lead = 7; bdel = 3; hpr = 1; apos = 9; aper = 3
MF = 'v_mfma_f32_16x16x32_bf16'
MF16 = 'v_mfma_f32_16x16x16_bf16'

def resolve(ops, loop=True, cap=5, age=None):
    out = []
    seq = 0; last = {}; done = -1; nm = 0; at = []
    for it in range(2 if loop else 1):
        out = []
        for o in ops:
            if o[0] == 'r':
                for r in o[2]: last[r] = seq
                seq += 1; out.append(o[1]); at.append(nm)
            elif o[0] == 'm':
                nd = max([last.get(r, -1) for r in o[2]])
                if nd > done:
                    n = min(seq - 1 - nd, cap)
                    if age: n = min(n, sum(1 for x in at if x > nm - age))
                    out.append(f's_waitcnt lgkmcnt({n})'); done = seq - 1 - n
                out.append(o[1])
                if 'mfma' in o[1]: nm += 1
            elif o[0] == 'w0':
                out.append('s_waitcnt lgkmcnt(0)'); done = seq - 1
            else: out.append(o[1])
    return '\n'.join(out)
def R(b, n): return list(range(b, b+n))

class G:
    def __init__(s, o):
        s.o = o; s.a = Asm(); s.nts = 0
    def ts(s, i):
        if s.o.prof: s.a(s.tst(i))
    def tsl(s, lvl):
        if s.o.prof and s.o.x_early == lvl:
            s.a(f'{s.o.clk} s[98:99]\n s_add_u32 m0, s66, 3\n s_waitcnt lgkmcnt(0)\n s_movreld_b32 s80, s98')
    def tse(s, i, cond=None):
        if s.o.prof and s.o.x_early == 1:
            s.nts += 1
            if cond is not None: s.a(f's_cmp_lg_u32 s66, {cond}\n s_cbranch_scc1 L_tse{s.nts}')
            s.a(f'{s.o.clk} s[98:99]\n s_waitcnt lgkmcnt(0)\n s_mov_b32 s{80+i}, s98\n L_tse{s.nts}:')
    def tst(s, i):
        if s.o.prof and s.o.tsel:
            if i not in s.o.tsel: return ''
            k = 80 + 2*s.o.tsel.index(i)
            return f'{s.o.clk} s[{k}:{k+1}]'
        if s.o.x_early and (9 if s.o.x_early == 1 else 5) <= i <= 14: return ''
        return f'{s.o.clk} s[98:99]\n s_waitcnt lgkmcnt(0)\n s_mov_b32 s{80+i}, s98' if s.o.prof else ''
    def ts_dump(s, n, part='b'):
        if not s.o.prof: return
        a = s.a
        a('s_waitcnt vmcnt(0)')
        s.ts(n-1)
        if s.o.meas:
            S, who = s.o.meas
            if (who == 'a') != (part == 'a'): return
            s.nts += 1; L = f'L_ms{s.nts}'
            if who == 'c': a('s_cmp_ge_u32 s3, 4\n s_cbranch_scc1 L_end')
            if who == 'h': a('s_cmp_lt_u32 s3, 4\n s_cbranch_scc1 L_end')
            a(f'''s_movk_i32 s36, 20000
            {L}:
            s_memrealtime s[6:7]
            s_waitcnt lgkmcnt(0)
            s_sub_u32 s6, s6, s{80 + 2*s.o.tsel.index(S)}
            s_cmp_ge_u32 s6, 2000
            s_cbranch_scc1 L_end
            s_sub_u32 s36, s36, 1
            s_cbranch_scc0 {L}''')
            return
        a(f's_lshl_b32 s4, s2, 3\n s_add_u32 s4, s4, s3\n s_lshl_b32 s4, s4, 6\n s_add_u32 s4, s4, {WS_TS}\n s_mov_b64 exec, 1\n v_mov_b32 v1, 0')
        a('s_waitcnt lgkmcnt(0)')
        for i in range(n):
            k = 80 + i if not s.o.tsel else (80 + 2*s.o.tsel.index(i) if i in s.o.tsel else 80)
            a(f'v_mov_b32 v2, s{k}\n buffer_store_dword v2, v1, s[24:27], s4 offen offset:{4*i}')
    def dma(s, ldsreg, ldsoff, kreg, koff, voff, srd):
        s.a(f's_add_u32 m0, {ldsreg}, {ldsoff}\n s_add_u32 s7, {kreg}, {koff}')
        if not s.o.x_nold: s.a(f'buffer_load_dwordx4 {voff}, {srd}, s7 offen lds')
    def srds(s):
        s.a('''s_mov_b32 s14, 1990656
        s_mov_b32 s15, s11
        s_mov_b32 s18, 663552
        s_mov_b32 s19, s11
        s_mov_b32 s22, 4718592
        s_mov_b32 s23, s11
        s_mov_b32 s26, 0x10000000
        s_mov_b32 s27, s11
        s_movk_i32 s30, 256
        s_mov_b32 s31, s11''')
    def prefetch(s, r=232):
        if not s.o.pre: return
        s.nts += 1; L = f'L_pc{s.nts}'
        s.a(f'''s_getpc_b64 s[36:37]
        {L}:
        s_sub_u32 s36, s36, {L}-L_top
        s_subb_u32 s37, s37, 0
        s_lshl_b32 s38, s3, 13
        v_lshl_add_u32 v{r}, v0, 7, s38
        v_min_u32 v{r}, L_last-L_top, v{r}
        global_load_dword v{r+1}, v{r}, s[36:37]''')
    def entry(s):
        a = s.a
        a(f'''L_top:
        s_cmpk_ge_u32 s2, {NWG}
        s_cbranch_scc1 L_end
        s_load_dwordx2 s[8:9], s[0:1], 40
        s_load_dwordx2 s[12:13], s[0:1], 48
        s_load_dwordx2 s[4:5], s[0:1], 0
        s_load_dwordx2 s[16:17], s[0:1], 56
        s_load_dwordx2 s[20:21], s[0:1], 64
        s_load_dwordx2 s[28:29], s[0:1], 72
        s_load_dwordx2 s[24:25], s[0:1], 80''')
        if s.o.prof: a(f'{s.o.clk} s[80:81]')
        a(f'''v_lshrrev_b32 v1, 6, v0
        v_and_b32 v0, 63, v0
        v_readfirstlane_b32 s3, v1
        s_mov_b32 s10, 2359296
        s_mov_b32 s11, 0x20000''')
        s.srds()
        a(f'''s_and_b32 s32, s2, 7
        s_lshl_b32 s32, s32, 1
        s_lshr_b32 s33, s2, 3
        s_cmp_ge_u32 s33, 18
        s_cbranch_scc1 L_A
        s_cmp_ge_u32 s33, 9
        s_cselect_b32 s6, 9, 0
        s_addc_u32 s32, s32, 0
        s_sub_u32 s33, s33, s6''')
        if s.o.bmap > 1:
            m = s.o.bmap; lg = m.bit_length() - 1
            a(f'''s_and_b32 s6, s2, {m-1}
            s_mul_i32 s6, s6, 18
            s_lshr_b32 s7, s2, 3
            s_add_u32 s6, s6, s7
            s_lshr_b32 s33, s6, {lg+1}
            s_and_b32 s6, s6, {2*m-1}
            s_and_b32 s7, s2, {7 & ~(m-1)}
            s_lshl_b32 s7, s7, 1
            s_add_u32 s32, s7, s6''')
        a(f'''s_cmp_lt_u32 s3, 4
        s_cbranch_scc1 L_Bc''')
        if not s.o.doB: a('s_endpgm')
    OS = [56, 57, 58, 59, 60, 61, 62, 75]
    NCH = 5
    def b_loader(s):
        a = s.a; o = s.o
        if o.lprio: a('s_setprio 3')
        a(f'''s_sub_u32 s39, s3, 4
        v_and_b32 v1, 7, v0
        v_lshlrev_b32 v1, 4, v1
        v_bfe_u32 v2, v0, 3, 1
        v_bfe_u32 v3, v0, 4, 1
        v_lshrrev_b32 v4, 5, v0
        s_lshl_b32 s6, s39, 1
        v_lshl_add_u32 v5, v3, 3, v2
        v_add_u32 v5, s6, v5
        v_lshl_add_u32 v83, v4, 4, v5
        v_mul_u32_u24 v80, 2304, v83
        v_add_u32 v80, v80, v1
        v_lshl_add_u32 v6, v3, 2, v2
        v_lshl_add_u32 v6, v4, 4, v6
        s_and_b32 s34, s39, 1
        s_lshl_b32 s34, s34, 1
        s_lshr_b32 s35, s39, 1
        s_lshl_b32 s35, s35, 3
        s_add_u32 s34, s34, s35
        v_add_u32 v6, s34, v6
        v_mul_u32_u24 v82, 3456, v6
        s_lshl_b32 s35, s33, 7
        v_add3_u32 v82, v82, v1, s35
        v_add_u32 v6, s6, v2
        v_lshl_add_u32 v6, v6, 1, v3
        s_lshl_b32 s34, s32, 7
        s_sub_u32 s34, s34, 16
        s_max_i32 s34, s34, 0
        v_add_u32 v6, s34, v6
        v_mul_u32_u24 v81, 1152, v6
        v_add_u32 v81, v81, v1
        s_mul_i32 s63, s32, {128*1152}
        s_mul_i32 s34, s32, {o.rotc}
        s_mul_i32 s6, s33, {o.rotg}
        s_add_u32 s34, s34, s6
        s_mul_i32 s6, s34, 57
        s_lshr_b32 s6, s6, 9
        s_mul_i32 s6, s6, 9
        s_sub_u32 s34, s34, s6
        s_lshl_b32 s67, s34, 7
        s_add_u32 s68, s63, s67
        s_mul_i32 s69, s67, 1728
        s_mul_i32 s64, s39, 1056
        s_mul_i32 s65, s39, 544
        s_mov_b32 s66, 0
        s_waitcnt lgkmcnt(0)''')
        s.tse(9)
        a('L_ld:')
        for cw in range(4):
            s.dma('s64', L_X + cw*BL, 's68', (64*(cw >> 1) + (cw & 1))*1152, 'v80', 's[8:11]')
        a(f's_add_u32 m0, s65, {L_XH}\n s_mov_b32 exec_hi, 0')
        a(f'buffer_load_dwordx4 v81, s[8:11], s67 offen lds\n s_mov_b32 exec_hi, -1')
        for ks in range(2):
            for m in range(2):
                s.dma('s64', L_WQK + (2*ks+m)*BL, 's69', ks*32*3456 + m*1152, 'v82', 's[12:15]')
            s.dma('s64', L_WV + ks*BL, 's69', ks*32*3456 + 2304, 'v82', 's[12:15]')
        s.tse(11, 0); s.tse(12, 1)
        a(f'''s_add_u32 s67, s67, 128
        s_cmp_eq_u32 s67, 1152
        s_cselect_b32 s67, 0, s67
        s_add_u32 s68, s63, s67
        s_mul_i32 s69, s67, 1728
        s_add_u32 s64, s64, {SL}
        s_add_u32 s65, s65, {SL}
        s_cmp_ge_u32 s64, {3*SL}
        s_cselect_b32 s6, {3*SL}, 0
        s_sub_u32 s64, s64, s6
        s_sub_u32 s65, s65, s6
        s_add_u32 s66, s66, 1
        s_cmp_lt_u32 s66, 2
        s_cbranch_scc1 L_ld''')
        s.tsl(4)
        a('s_waitcnt vmcnt(11)')
        s.tsl(3)
        a('s_barrier')
        s.tsl(2)
        a('s_cmp_lt_u32 s66, 9\n s_cbranch_scc1 L_ld')
        a(f'''v_lshl_add_u32 v84, v4, 5, v83
        v_add_u32 v83, 16, v83
        v_mul_u32_u24 v83, 1152, v83
        v_mul_u32_u24 v84, 1152, v84
        v_add3_u32 v83, v83, v1, s35
        v_add3_u32 v84, v84, v1, s35
        s_add_u32 s69, s33, 4
        s_cmp_ge_u32 s69, 9
        s_cselect_b32 s6, 9, 0
        s_sub_u32 s69, s69, s6
        s_mul_i32 s69, s69, {64*1152}''')
        for p in range(6, 10): a(s.wo_dma(p))
        a(f's_setprio {o.cpr}\n s_branch L_const0\n L_cretA:')
        a('s_waitcnt vmcnt(4)\n s_add_u32 s66, s66, 1')
        s.tsl(3)
        a('s_barrier')
        s.tsl(2)
        if o.wpf:
            a(f's_mul_i32 s6, s39, 144\n v_add_u32 v8, s6, v0\n v_mul_u32_u24 v8, 1152, v8')
            for k in range(3): a(f's_add_u32 s6, s35, {48*1152*k}\n buffer_load_dword v9, v8, s[16:19], s6 offen')
        a(f'''s_lshl_b32 s67, s32, 4
        s_cmp_lg_u32 s3, 4
        s_cbranch_scc1 L_const1
        buffer_load_dword v249, off, s[28:31], s67 sc1
        s_branch L_const1
        L_cretB:
        s_movk_i32 s5, {SPIN//8}
        s_waitcnt vmcnt(0)
        s_cmp_lg_u32 s3, 4
        s_cbranch_scc1 L_Bnd
        L_Bn:
        v_cmp_ne_u32 vcc, 6, v249
        s_cbranch_vccz L_Bnd
        s_sleep {o.slp}
        buffer_load_dword v249, off, s[28:31], s67 sc1
        s_sub_u32 s5, s5, 1
        s_waitcnt vmcnt(0)
        s_cbranch_scc0 L_Bn
        L_Bnd:''')
        a(f's_setprio {o.hpr}')
        s.ts(3)
        a('s_barrier')
        s.ts(4)
        ops = []; d = list(range(6))
        for k, y in enumerate(s.x_ops()):
            ops.append(y)
            if k >= 5 and (k-5) % o.xint == 0 and d: ops.append(('t', s.wo_dma(d.pop(0))))
        ops += [('t', s.wo_dma(p)) for p in d]
        a(resolve(ops, loop=False, cap=15))
        s.ts(5)
        a('s_mul_i32 s69, s33, %d\n s_branch L_BF' % (64*1152))
    def wo_dma(s, pos):
        step = f's_add_u32 s69, s69, {64*1152}\n s_cmp_eq_u32 s69, s18\n s_cselect_b32 s69, 0, s69\n' if pos != 1 else ''
        return f's_add_u32 m0, s64, {s.wo_off(pos)}\n {step} buffer_load_dwordx4 v{84 if pos == 1 or pos >= 10 else 83}, s[16:19], s69 offen lds'
    def wo_off(s, pos):
        if pos < 6: return 2*SL + pos*BL
        if pos < 10: return TR + (pos-6)*BL
        return (pos-10)*BL if pos < 16 else SL + (pos-16)*BL
    def b_const(s):
        a = s.a
        def cut(k):
            if k == s.o.cutA: a('s_cmp_ge_u32 s3, 4\n s_cbranch_scc1 L_cretA\n L_const1:')
            if k == s.NCH: a('s_cmp_ge_u32 s3, 4\n s_cbranch_scc1 L_cretB')
        a('L_const0:')
        a(f'''v_and_b32 v216, 15, v0
        v_lshrrev_b32 v217, 4, v0
        v_lshlrev_b32 v218, 2, v217
        v_and_b32 v219, 7, v0
        v_sub_u32 v219, v218, v219
        v_lshlrev_b32 v248, 4, v0
        v_lshlrev_b32 v255, 3, v0
        s_mov_b32 s100, 0x00ff00ff
        s_mov_b32 s101, s100
        s_lshr_b32 s6, s3, 1
        s_or_b32 s6, s6, s32
        s_cmp_eq_u32 s6, 0
        s_cselect_b32 exec_lo, s100, 0
        s_mov_b32 exec_hi, 0
        v_mov_b32 v219, 64
        s_mov_b64 exec, -1
        v_mov_b32 v220, {fb(-1e30)}''')
        for i in range(4):
            a(f'''v_add_u32 v221, {i-1}, v219
            v_cmp_le_u32 vcc, 8, v221
            v_cndmask_b32 v{192+i}, 0, v220, vcc''')
        cut(1)
        a(f'''s_lshl_b32 s6, s33, 6
        s_add_u32 s7, s6, 17
        s_mul_i32 s7, s7, 3641
        s_lshr_b32 s7, s7, 16
        s_mul_i32 s7, s7, 18
        s_sub_u32 s6, s7, s6
        s_mov_b32 s7, s6''')
        for t in range(4):
            if t: a(f's_cmp_eq_u32 s6, {18-2*t}\n s_cselect_b32 s4, -16, 2\n s_add_u32 s7, s7, s4')
            a(f's_sub_u32 s4, s7, 2\n v_cmp_gt_i32 s[{40+4*t}:{41+4*t}], s7, v218\n v_cmp_gt_i32 s[{42+4*t}:{43+4*t}], s4, v218')
        cut(2)
        a(f'''s_and_b32 s70, s3, 3
        s_lshr_b32 s71, s3, 2
        s_lshl_b32 s72, s70, 1
        s_add_u32 s72, s72, s71
        s_lshl_b32 s6, s72, 11
        s_add_u32 s7, s6, {QS}
        v_add_u32 v202, s7, v255
        v_add_u32 v201, {KS-QS}, v202
        v_add_u32 v203, {VS-QS}, v202
        s_cmp_ge_u32 s3, 4
        s_cselect_b32 s4, 1, 3
        s_lshl_b32 s4, s4, 11
        s_sub_u32 s6, s6, s4
        s_add_u32 s4, s6, {KS+64}
        s_add_u32 s5, s6, {VS+256}
        s_lshl_b32 s6, s3, 6
        s_add_u32 s6, s6, {HS}
        s_lshl_b32 s7, s3, 8
        s_add_u32 s7, s7, {HS+2048}
        s_cmp_lt_u32 s3, 2
        s_cselect_b32 s4, s6, s4
        s_cselect_b32 s5, s7, s5
        v_add_u32 v204, s4, v255
        v_add_u32 v205, s5, v255
        s_not_b64 exec, s[100:101]
        v_subrev_u32 v204, 64, v201
        s_mov_b32 exec_lo, 0
        s_mov_b32 exec_hi, -1
        v_subrev_u32 v205, 0x100, v203
        s_mov_b32 exec_lo, -1''')
        for r in range(0, 6): a(f'v_mov_b32 v{s.PP+r}, 0')
        cut(3)
        a(f'''s_lshr_b32 s4, s70, 1
        s_and_b32 s6, s70, 1
        s_lshl_b32 s4, s4, 6
        s_add_u32 s4, s4, s6
        s_lshl_b32 s5, s71, 5
        s_add_u32 s4, s4, s5
        s_lshl_b32 s5, s32, 7
        s_add_u32 s4, s4, s5
        s_mul_i32 s4, s4, 2304
        s_lshl_b32 s5, s33, 7
        s_add_u32 s4, s4, s5
        s_add_u32 s73, s4, 1152
        v_lshrrev_b32 v221, 3, v0
        v_and_b32 v222, 0x70, v248
        v_mov_b32 v223, 4608
        v_mad_u32_u24 v254, v221, v223, v222
        s_mul_i32 s4, s70, 2304
        s_mul_i32 s5, s71, {KS-QS}
        s_add_u32 s4, s4, s5
        s_add_u32 s4, s4, {QS}
        v_mul_u32_u24 v253, 144, v221
        v_add3_u32 v253, v253, v222, s4
        v_mul_u32_u24 v252, 144, v216
        v_lshl_add_u32 v252, v217, 3, v252
        v_add_u32 v252, s4, v252
        v_bfe_u32 v221, v0, 3, 2
        v_mul_u32_u24 v221, 1056, v221
        v_bfe_u32 v222, v0, 2, 1
        v_lshl_add_u32 v221, v222, 7, v221
        v_and_b32 v222, 3, v0
        v_lshl_add_u32 v207, v222, 3, v221
        v_lshrrev_b32 v222, 5, v0
        v_lshl_add_u32 v250, v222, 8, v207
        v_add_u32 v251, {2*SL}, v250
        v_lshl_add_u32 v207, v222, 9, v207''')
        cut(4)
        a(f'''s_lshl_b32 s4, s32, 3
        s_add_u32 s4, s4, s72
        s_mul_i32 s4, s4, 18432
        s_add_u32 s4, s4, {WS_O}
        s_lshl_b32 s5, s33, 11
        s_add_u32 s74, s4, s5
        s_add_u32 s5, s4, 18432''')
        for i in range(8):
            a(f's_add_u32 s{s.OS[i]}, s{s.OS[i-1] if i else 74}, 2048\n v_mov_b32 v{s.PP+6+i}, 0\n s_cmp_eq_u32 s{s.OS[i]}, s5\n s_cselect_b32 s{s.OS[i]}, s4, s{s.OS[i]}')
        a(f'''s_mul_i32 s4, s32, 9
        s_add_u32 s4, s4, s33
        s_lshl_b32 s4, s4, 14
        s_lshl_b32 s5, s72, 10
        s_add_u32 s4, s4, s5
        s_add_u32 s76, s4, {WS_XC}
        s_add_u32 s77, s76, 8192
        s_cmp_eq_u32 s33, 0
        s_cselect_b32 s4, 0, 8192
        s_sub_u32 s78, s76, s4
        s_cmp_eq_u32 s33, 8
        s_cselect_b32 s4, 0, 8192
        s_add_u32 s79, s77, s4
        s_mov_b32 s70, {fb(math.log2(math.e)/math.sqrt(18))}''')
        for r in range(14, 20): a(f'v_mov_b32 v{s.PP+r}, 0')
        s.ts(1)
        cut(s.NCH)
    AV, HV, XB, WV_, AQ, AK, HK, WQ, ALT, XB2 = 8, 40, 44, 212, 88, 120, 152, 156, 220, 224
    def frags(s, mode):
        F = []
        for m, acc in ((0, s.AQ), (1, s.AK)):
            for i in range(2):
                F.append([s.WQ + 8*m + 4*i, 4+i, lambda ks, m=m: L_WQK + (2*ks+m)*BL,
                          [(acc + 8*t + 4*i, t) for t in range(4)] + ([(s.HK, 4)] if m == 1 and i == 0 else []), 0])
        if 'v' in mode:
            for i in range(2):
                F.append([s.WV_ + 4*i, 4+i, lambda ks: L_WV + ks*BL, [(s.AV + 8*t + 4*i, t) for t in range(4)] + ([(s.HV, 4)] if i == 0 else []), 1])
        return F
    def rd_w(s, f, ks, reg=None):
        reg = reg or f[0]
        return [('r', f'ds_read_b64_tr_b16 {vr(reg+2*h,2)}, v{f[1]} offset:{f[2](ks)+256*h}', R(reg+2*h, 2)) for h in range(2)]
    def rd_x(s, ks, b=None, ar=2, off=0):
        b = b or s.XB + 20*ks
        return [('r', f'ds_read_b128 {vr(b+4*t,4)}, v{ar if t < 4 else ar+1} offset:{off+((t>>1)*2*BL+512*(t&1) if t < 4 else 0)+64*ks}', R(b+4*t, 4)) for t in range(5)]
    def mm(s, f, ks, reg=None, xb=None):
        r = []; reg = reg or f[0]; xb = xb or s.XB + 20*ks
        for acc, t in f[3]:
            x = xb + 4*t
            A, B = (x, reg) if f[4] else (reg, x)
            r.append(('m', f'{MF} {vr(acc,4)}, {vr(A,4)}, {vr(B,4)}, {vr(acc,4)}', R(x, 4) + R(reg, 4)))
        return r
    def stg(s, b, areg, off):
        return [('t', f'v_cvt_pk_bf16_f32 v{b}, v{b}, v{b+1}'), ('t', f'v_cvt_pk_bf16_f32 v{b+1}, v{b+2}, v{b+3}'), ('r', f'ds_write_b64 v{areg}, {vr(b,2)} offset:{off}', [])]
    def stage(s, mode, extra):
        F = s.frags(mode); ops = []; n = len(F)
        sal = [('t', t) for t in ['s_add_u32 s36, s36, 1', 's_cmp_eq_u32 s36, 3', 's_cselect_b32 s36, 0, s36', f's_cselect_b32 s38, s37, {SL}'] + extra]
        hi = s.rd_x(1); lo = s.rd_w(F[-1], 1, s.ALT)
        def gap():
            if sal: ops.append(sal.pop(0))
            if hi: ops.append(hi.pop(0))
            elif lo: ops.append(lo.pop(0))
        for i, f in enumerate(F):
            for m in s.mm(f, 0): ops.append(m); gap()
            if i < n-1: hi += s.rd_w(f, 1)
        assert not hi and not lo
        hi = [('t', f'v_add_u32 v{r}, s38, v{r}') for r in (4, 2, 3, 5)]
        for i, f in enumerate(F):
            if i == 1:
                assert not hi
                ops.extend([('w0',), ('t', 's_barrier')])
                hi = s.rd_w(F[0], 0) + s.rd_x(0); lo = s.rd_w(F[-1], 0)
            for m in s.mm(f, 1, s.ALT if i == n-1 else None): ops.append(m); gap()
            if 1 <= i < n-1: hi += s.rd_w(f, 0)
        assert not hi and not lo, (hi, lo)
        if s.o.x_nomm: ops = [x for x in ops if x[0] != 'm']
        if s.o.x_nord: ops = [x for x in ops if x[0] != 'r']
        return ops
    def tail(s):
        o = s.o
        F = s.frags('qkv'); q0, q1, k0, k1, v0, v1 = F
        M = []; rd = []; st = []
        def grp(ms):
            M.extend(ms); return len(M) - 1
        XS = [s.XB, s.XB+20, s.XB2]; WS = [s.WV_, s.WQ, s.WQ+8]
        def vrd(j, after):
            sl, ks = (j >> 1) - 1, j & 1
            x = s.rd_x(ks, XS[j % 3], 6, SL*sl) if j >= 2 else []
            w = []
            for i in range(2):
                f = [0, (210 if j >= 2 else 4) + i, (lambda ks: SL*sl + ks*BL) if j >= 2 else v0[2]]
                w.append(s.rd_w(f, ks, WS[j % 3] + 4*i))
            for y in w[0] + x + w[1]: rd.append((after, y))
        for y in s.rd_x(1): rd.append((0, y))
        e = grp(s.mm(q0, 0)); rd += [(e, y) for y in s.rd_w(q0, 1)]
        e = grp(s.mm(q1, 0)); rd += [(e, y) for y in s.rd_w(q1, 1)]
        e = grp(s.mm(k0, 0)); vrd(0, 0); rd += [(e, y) for y in s.rd_w(k0, 1)] + [(0, y) for y in s.rd_w(k1, 1, s.ALT)]
        def staged(f, ms, areg, off):
            for (acc, t), m in zip(f[3], ms):
                M.append(m)
                for y in (s.stg(acc, areg, off + (4*(t >> 1) + (t & 1))*2048) if t < 4 else s.stg(acc, 206, 2048 if f[4] else 0)): st.append((len(M) + 1, y))
        staged(q0, s.mm(q0, 1), 84, 0); staged(q1, s.mm(q1, 1), 85, 0)
        vrd(1, len(M) - 1)
        grp(s.mm(k1, 0))
        staged(k0, s.mm(k0, 1), 84, KS-QS); staged(k1, s.mm(k1, 1, s.ALT), 85, KS-QS)
        nq = len(rd)
        if o.prof: st.append((0, ('t', s.tst(3))))
        st.append((('d', o.bdel, nq), ('w0',))); st.append((0, ('t', 's_barrier')))
        if o.prof: st.append((0, ('t', s.tst(4))))
        xo = s.x_ops()
        for k, y in enumerate(xo): st.append((('d', 4, 0) if k == 6 else 0, y))
        if o.prof: st.append((0, ('t', s.tst(5))))
        e = len(M) - 1
        for j in range(6):
            if j + 2 < 6: vrd(j+2, e)
            if j < 5:
                grp(s.mm(v0, 0, WS[j % 3], XS[j % 3])); e = grp(s.mm(v1, 0, WS[j % 3] + 4, XS[j % 3]))
            else:
                staged(v0, s.mm(v0, 0, WS[j % 3], XS[j % 3]), 86, 0); staged(v1, s.mm(v1, 0, WS[j % 3] + 4, XS[j % 3]), 87, 0)
        dl = []
        for c, y in rd:
            dl.append(min(g for g, m in enumerate(M) if g > c and set(y[2]) & set(m[2])) - o.lead)
        for k in range(len(dl)-2, -1, -1): dl[k] = min(dl[k], dl[k+1] - 1)
        ops = []; nrd = 0; lastg = 0
        def ok(c, g):
            if isinstance(c, tuple): return g >= lastg + c[1] and nrd >= c[2]
            return g >= c
        for g, m in enumerate(M):
            ops.append(m); n = 0
            waitbar = st and st[0][1][0] == 'w0' and nrd >= nq
            if rd and rd[0][0] <= g and dl[nrd] <= g: ops.append(rd.pop(0)[1]); nrd += 1; n += 1
            k = 0
            while st and k < o.nf and ok(st[0][0], g):
                y = st.pop(0)[1]; ops.append(y); lastg = g
                if not (y[0] == 'w0' or y[1].startswith(('s_b', 's_mem')) or not y[1]): k += 1
            if n + k == 0 and rd and rd[0][0] <= g and not waitbar: ops.append(rd.pop(0)[1]); nrd += 1
        assert not rd
        ops += [y for c, y in st]
        s.check_order(ops)
        return ops
    def check_order(s, ops):
        pend = {}
        for y in ops:
            if y[0] == 'r':
                for r in y[2]:
                    assert not pend.get(r), ('overwritten before use', y)
                    pend[r] = True
            elif y[0] == 'm':
                for r in y[2]: pend[r] = False
    def b_compute(s):
        a = s.a; o = s.o
        a('L_Bc:')
        if not o.doB: a('s_endpgm')
        s.prefetch()
        a(f'''v_bfe_u32 v6, v0, 1, 2
        v_and_b32 v7, 1, v0
        v_bfe_u32 v4, v0, 3, 1
        v_lshl_add_u32 v7, v4, 1, v7
        v_and_b32 v4, 0x30, v0
        v_lshl_add_u32 v7, v7, 7, v4
        s_and_b32 s6, s3, 1
        s_mul_i32 s6, s6, {BL}
        v_mul_u32_u24 v2, 1056, v6
        v_add3_u32 v2, v2, v7, s6
        v_mul_u32_u24 v3, 544, v6
        v_add_u32 v3, v3, v7
        v_add_u32 v3, {L_XH}, v3
        v_mov_b32 v6, v2
        v_mov_b32 v7, v3''')
        for r in list(range(8, 44)) + list(range(88, 156)) + [83, 84]: a(f'v_mov_b32 v{r}, 0')
        a('s_waitcnt lgkmcnt(0)')
        s.b_const()
        a(f'''s_lshl_b32 s6, s3, 5
        v_add_u32 v4, s6, v207
        s_xor_b32 s6, s6, 32
        v_add_u32 v5, s6, v207
        v_add_u32 v210, {L_WV}, v4
        v_add_u32 v211, {L_WV}, v5
        s_and_b32 s6, s3, 1
        s_lshl_b32 s7, s6, 12
        s_add_u32 s7, s7, {QS}
        s_lshl_b32 s4, s3, 9
        s_add_u32 s5, s7, s4
        v_add_u32 v84, s5, v255
        s_add_u32 s5, s4, {HS}
        v_add_u32 v206, s5, v255
        s_xor_b32 s4, s4, 512
        s_add_u32 s5, s7, s4
        v_add_u32 v85, s5, v255
        v_add_u32 v86, {VS-QS}, v84
        v_add_u32 v87, {VS-QS}, v85
        s_mov_b32 s36, 0
        s_mov_b32 s37, {-2*SL & 0xffffffff}
        s_mov_b32 s35, 0''')
        a('s_barrier')
        s.ts(2)
        F = s.frags('qkv')
        l1 = s.stage('qkv', ['s_add_u32 s35, s35, 1', 's_cmp_lt_u32 s35, 6'])
        for y in l1[l1.index(('w0',)):]:
            if y[0] == 'r': a(y[1])
        a('.p2align 3\n L_Bl1:')
        a(resolve(l1, cap=15, age=6))
        a('s_cbranch_scc1 L_Bl1')
        a('.p2align 3\n L_Bl2:')
        l2 = s.stage('qk', ['s_add_u32 s35, s35, 1', 's_cmp_lt_u32 s35, 8'])
        a(resolve(l2, cap=15, age=6))
        a('s_cbranch_scc1 L_Bl2\n s_waitcnt vmcnt(0)')
        a(resolve(l2 + [('t', '@@')] + s.tail(), loop=False, cap=15, age=5).split('@@')[1])
        a('s_waitcnt lgkmcnt(0)\n s_barrier')
        s.vreads()
        if o.cinb == 0: a(s.inl())
    QR, KC, KP, QM, LL, TT, PP, MM, IN, VV, OF = 88, 96, 104, 112, 128, 148, 172, 160, 216, 224, 240
    def Lr(s, sl): return {0: 128, 4: 132, 1: 136, 2: 140, 3: 144}[sl]
    def inl(s): return f'buffer_load_dwordx4 {vr(s.IN,4)}, v248, s[24:27], s78 offen sc1\n buffer_load_dwordx4 {vr(s.IN+4,4)}, v248, s[24:27], s79 offen sc1'
    def vreads(s):
        for t in (1, 2, 0, 3):
            s.a(f'ds_read_b64 {vr(s.VV+4*t,2)}, v203 offset:{512*t}\n ds_read_b64 {vr(s.VV+4*t+2,2)}, v205 offset:{512*t}')
    def qmask(s, t, hi):
        r = []
        for h in range(2):
            m = f's[{40+4*t+2*h}:{41+4*t+2*h}]'; q = f'v{s.QR+2*t+h}'
            r.append(('m', f'v_cndmask_b32 v{s.QM+4*t+2*hi+h}, {q}, 0, {m}' if hi else f'v_cndmask_b32 v{s.QM+4*t+h}, 0, {q}, {m}', [s.QR+2*t+h]))
        return r
    def merge(s, L, T, n):
        r = [('t', 's_mov_b64 exec, s[100:101]')]
        if s.o.m64: r += [('t', f'v_mov_b64 {vr(L+2*i,2)}, {vr(T+2*i,2)}') for i in range(n//2)]
        else: r += [('t', f'v_mov_b32 v{L+i}, v{T+i}') for i in range(n)]
        return [('t', '\n'.join(y[1] for y in r + [('t', 's_mov_b64 exec, -1')]))]
    def x_ops(s):
        r = []
        for d, ar in ((s.QR, 202), (s.KC, 201), (s.KP, 204)):
            for j in range(2): r.append(('r', f'ds_read2st64_b64 {vr(d+4*j,4)}, v{ar} offset0:{2*j} offset1:{2*j+1}', R(d+4*j, 4)))
        r += s.qmask(0, 0) + s.qmask(3, 1)
        for j, (sl, k, q) in enumerate(((0, 0, s.QM), (4, 6, s.QM+14))):
            r.append(('m', f'{MF16} {vr(s.Lr(sl),4)}, {vr(s.KC+k,2)}, {vr(q,2)}, v[192:195]', R(s.KC+k, 2)))
        for j, (sl, k, q) in enumerate(((0, 0, s.QM), (4, 6, s.QM+14))):
            r.append(('m', f'{MF16} {vr(s.TT+4*j,4)}, {vr(s.KP+k,2)}, {vr(q,2)}, v[192:195]', R(s.KP+k, 2)))
        r += s.qmask(0, 1) + s.qmask(1, 0) + s.qmask(1, 1)
        r += s.merge(128, s.TT, 8)
        for j in range(2):
            r.append(('t', f'v_min_u32 v{128+4*j}, -2, v{128+4*j}'))
            r.append(('t', f'buffer_store_dwordx4 {vr(128+4*j,4)}, v248, s[24:27], s{76+j} offen {s.o.hsf}'))
        r += s.qmask(2, 0) + s.qmask(2, 1) + s.qmask(3, 0)
        return r
    def bfly(s, n, op, mid):
        a = s.a; b, c, d, t = [f'v{s.MM+i}' for i in range(4)]
        if n == 3:
            a(f'''v_mov_b32 {t}, {d}
            v_permlane32_swap_b32 {b}, {c}
            v_permlane32_swap_b32 {d}, {t}
            {op} {b}, {b}, {c}
            {op} {d}, {d}, {t}
            v_permlane16_swap_b32 {b}, {d}
            {op} {b}, {b}, {d}
            {mid(d, b)}
            {mid(b, b)}
            v_permlane16_swap_b32 {b}, {d}
            v_mov_b32 {c}, {b}
            v_permlane32_swap_b32 {b}, {c}''')
        else:
            a(f'''v_permlane32_swap_b32 {b}, {c}
            {op} {t}, {b}, {c}
            {op} {b}, {b}, {c}
            v_permlane16_swap_b32 {b}, {t}
            {op} {b}, {b}, {t}
            {mid(c, b)}
            {mid(b, b)}
            v_permlane32_swap_b32 {b}, {c}''')
    def softmax(s, slots, mid=''):
        a = s.a; n = len(slots); pk = s.o.pk
        rev = list(enumerate(slots))[::-1]
        for j, sl in enumerate(slots):
            L = s.Lr(sl); a(f'v_max3_f32 v{s.MM+j}, v{L}, v{L+1}, v{L+2}')
        for j, sl in enumerate(slots):
            L = s.Lr(sl); a(f'v_max_f32 v{s.MM+j}, v{s.MM+j}, v{L+3}')
        s.bfly(n, 'v_max_f32', lambda d, x: f'v_mul_f32 {d}, s70, {x}')
        a(mid)
        for j, sl in rev:
            L = s.Lr(sl); mp = vr((s.MM+j) & ~1, 2); b = j & 1
            if pk:
                for i in (0, 2): a(f'v_pk_fma_f32 {vr(L+i,2)}, {vr(L+i,2)}, s[70:71], {mp} op_sel:[0,0,{b}] op_sel_hi:[1,0,{b}] neg_lo:[0,0,1] neg_hi:[0,0,1]')
            else:
                for i in range(4): a(f'v_fma_f32 v{L+i}, v{L+i}, s70, -v{s.MM+j}')
            for i in range(4): a(f'v_exp_f32 v{L+i}, v{L+i}')
        for j, sl in rev:
            L = s.Lr(sl); T = s.TT + 2*j
            a(f'v_pk_add_f32 {vr(T,2)}, {vr(L,2)}, {vr(L+2,2)}' if pk else f'v_add_f32 v{T}, v{L}, v{L+1}\n v_add_f32 v{T+1}, v{L+2}, v{L+3}')
        for j, sl in rev:
            a(f'v_add_f32 v{s.MM+j}, v{s.TT+2*j}, v{s.TT+2*j+1}')
        s.bfly(n, 'v_add_f32', lambda d, x: f'v_rcp_f32 {d}, {x}')
        for j, sl in rev:
            L = s.Lr(sl); mp = vr((s.MM+j) & ~1, 2); b = j & 1
            if pk:
                for i in (0, 2): a(f'v_pk_mul_f32 {vr(L+i,2)}, {vr(L+i,2)}, {mp} op_sel:[0,{b}] op_sel_hi:[1,{b}]')
            else:
                for i in range(4): a(f'v_mul_f32 v{L+i}, v{L+i}, v{s.MM+j}')
        for half in range(2):
            a('s_mov_b64 exec, s[100:101]' if half else 's_not_b64 exec, s[100:101]')
            for j, sl in rev:
                L = s.Lr(sl); P = s.PP + 4*sl + 2*half
                for h in range(2): a(f'v_cvt_pk_bf16_f32 v{P+h}, v{L+2*h}, v{L+2*h+1}')
        a('s_mov_b64 exec, -1')
    def b_attn(s):
        a = s.a; o = s.o
        a('L_BF:')
        s.ts(6)
        for sl in (1, 2, 3):
            a(f'{MF} {vr(s.TT+4*sl-4,4)}, {vr(s.KP+2*sl-2,4)}, {vr(s.QM+4*sl-2,4)}, v[192:195]')
            a(f'{MF} {vr(s.Lr(sl),4)}, {vr(s.KC+2*sl-2,4)}, {vr(s.QM+4*sl-2,4)}, v[192:195]')
        for y in s.merge(136, s.TT, 12): a(y[1])
        s.softmax((1, 2, 3), ('s_cmp_ge_u32 s3, 4\n s_cbranch_scc1 L_Bi\n' + s.inl() + '\n L_Bi:') if o.cinb == 1 else '')
        s.ts(7)
        a('s_cmp_lt_u32 s3, 4\n s_cbranch_scc1 L_Bw')
        a('s_waitcnt vmcnt(0)\n s_barrier')
        s.vreads()
        a(s.inl())
        a('L_Bw:')
        s.ts(8)
        O = 88
        def pv(t, hi): a(f'{MF} {vr(O+8*t+4*hi,4)}, {vr(s.VV+4*t,4)}, {vr(s.PP+4*(t+hi),4)}, 0')
        def ocvt(ts, d):
            for k, t in enumerate(ts):
                for h in range(2): a(f'v_cvt_pk_bf16_f32 v{d+2*k+h}, v{O+8*t+4+2*h}, v{O+8*t+4+2*h+1}')
            for k, t in enumerate(ts):
                for h in range(2): a(f's_mov_b64 exec, s[{40+4*t+2*h}:{41+4*t+2*h}]\n v_cvt_pk_bf16_f32 v{d+2*k+h}, v{O+8*t+2*h}, v{O+8*t+2*h+1}')
            a(f's_mov_b64 exec, -1\n v_min_u32 v{d}, -2, v{d}')
        a('s_waitcnt lgkmcnt(4)')
        for t, hi in ((1, 1), (2, 1), (1, 0), (2, 0)): pv(t, hi)
        a('s_waitcnt lgkmcnt(0)')
        pv(0, 1); pv(3, 0)
        ocvt((1, 2), s.OF)
        a(f'buffer_store_dwordx4 {vr(s.OF,4)}, v248, s[24:27], s74 offen {o.hsf}')
        a('s_cmp_lt_u32 s3, 4\n s_cbranch_scc1 L_Bw2')
        for p in range(10, 18): a(s.wo_dma(p))
        I = s.IN
        a(f'''s_waitcnt vmcnt(9)
        s_branch L_Bw3
        L_Bw2:
        s_waitcnt vmcnt(1)
        L_Bw3:
        s_movk_i32 s5, {SPIN}
        L_By:
        v_max_u32 v{s.TT}, v{I}, v{I+4}
        v_cmp_eq_u32 vcc, -1, v{s.TT}
        s_cbranch_vccz L_Byd
        {s.inl()}
        s_sub_u32 s5, s5, 1
        s_waitcnt vmcnt(0)
        s_cbranch_scc0 L_By
        L_Byd:''')
        s.ts(9)
        if o.pk:
            for i in range(0, 8, 2): a(f'v_pk_add_f32 {vr(128+i,2)}, {vr(128+i,2)}, {vr(I+i,2)}')
        else:
            for i in range(8): a(f'v_add_f32 v{128+i}, v{128+i}, v{I+i}')
        s.softmax((0, 4))
        pv(3, 1); pv(0, 0)
        ocvt((0, 3), s.OF+4)
        a(f'buffer_store_dwordx4 {vr(s.OF+4,4)}, v248, s[24:27], s74 offen offset:1024 {o.hsf}')
    def b2(s):
        a = s.a
        ACC = 72; W = 88
        def rd(pos):
            r = []
            for c in range(4):
                for h in range(2):
                    off = s.wo_off(pos) + 32*c + 512*h
                    d = W + 16*(pos % 9) + 4*c + 2*h
                    r.append(('r', f'ds_read_b64_tr_b16 {vr(d,2)}, v{250 if off < 2*SL else 251} offset:{off % (2*SL)}', R(d, 2)))
            return r
        def mm(pos, pend):
            B = s.OF + 4*pos if pos < 2 else 8 + 4*(pos-2)
            r = []
            for c in range(4):
                A = W + 16*(pos % 9) + 4*c
                r.append(('m', f'{MF} {vr(ACC+4*c,4)}, {vr(A,4)}, {vr(B,4)}, {vr(ACC+4*c,4) if pos else 0}', R(A, 4)))
                for _ in range(2):
                    if pend: r.append(pend.pop(0))
            return r
        def lds(ps): return '\n'.join(f'buffer_load_dwordx4 {vr(8+4*(p-2),4)}, v248, s[24:27], s{s.OS[(p-2) % 8]} offen offset:{1024*(p >= 10)} sc1' for p in ps)
        retry = []
        def chk(ps, n, lab):
            d = [8+4*(p-2) for p in ps]
            t = f's_waitcnt vmcnt({n})\n {lab}:\n v_max3_u32 v232, v{d[0]}, v{d[1]}, v{d[2]}\n'
            for k in range(3, len(d), 2): t += f'v_max3_u32 v232, v232, v{d[k]}, v{d[min(k+1, len(d)-1)]}\n'
            t += f'v_cmp_eq_u32 vcc, -1, v232\n s_cbranch_vccnz {lab}r\n {lab}d:'
            retry.append(f'{lab}r:\n s_sub_u32 s5, s5, 1\n s_cmp_lt_i32 s5, 0\n s_cbranch_scc1 {lab}d\n {lds(ps)}\n s_waitcnt vmcnt(0)\n s_branch {lab}')
            return ('t', t)
        s.ts(10)
        a(lds(range(2, 10)))
        a(f's_movk_i32 s5, {SPIN}\n s_cmp_ge_u32 s3, 4\n s_cbranch_scc1 L_Bb1\n s_barrier\n L_Bb1:')
        s.ts(11)
        ops = []
        for p in range(9): ops += rd(p)
        ops += mm(0, []); ops += mm(1, rd(9))
        ops.append(('t', 's_cbranch_scc0 L_Bb2\n s_waitcnt vmcnt(9)\n s_barrier\n L_Bb2:'))
        ops += rd(10); ops.append(('t', s.tst(12)))
        ops.append(chk(range(2, 10), 0, 'L_Bk0'))
        ops.append(('t', lds(range(10, 18))))
        ops.append(('t', s.tst(13)))
        pend = []
        for p in range(2, 18):
            if p == 10: ops.append(chk(range(10, 14), 4, 'L_Bk1'))
            if p == 14:
                ops.append(chk(range(14, 18), 0, 'L_Bk2'))
                if s.o.clean: ops.append(('t', '\n'.join(f'buffer_store_dwordx4 {vr(s.OF+4*h,4)}, v248, s[24:27], s74 offen offset:{1024*h} sc1\n buffer_store_dwordx4 {vr(s.OF+4*h,4)}, v248, s[24:27], s{78+h} offen sc1' for h in range(2))))
            ops += mm(p, pend)
            if p + 9 < 18: pend = rd(p+9)
        a(resolve(ops, loop=False, cap=8))
        s.ts(14)
        for c in range(4):
            for h in range(2): a(f'v_cvt_pk_bf16_f32 v{ACC+4*c+h}, v{ACC+4*c+2*h}, v{ACC+4*c+2*h+1}')
            a(f'ds_write_b64 v252, {vr(ACC+4*c,2)} offset:{32*c}')
        a(f'''s_waitcnt lgkmcnt(0)
        ds_read_b128 v[8:11], v253
        ds_read_b128 v[12:15], v253 offset:{8*144}
        s_add_u32 s4, s73, {16*2304}
        s_waitcnt lgkmcnt(1)
        buffer_store_dwordx4 v[8:11], v254, s[20:23], s73 offen {s.o.osf}
        s_waitcnt lgkmcnt(0)
        buffer_store_dwordx4 v[12:15], v254, s[20:23], s4 offen {s.o.osf}''')
        s.ts_dump(16)
        a('s_endpgm')
        for t in retry: a(t)
    def a_part(s):
        a = s.a; o = s.o
        a('L_A:')
        if not o.doA: a('s_endpgm'); return
        import genA
        genA.a_part(s)
    def build(s):
        s.entry(); s.b_loader(); s.b_compute(); s.b_attn(); s.b2(); s.a_part()
        s.a('L_end:\n L_last:\n s_endpgm')
        return single_file(haz.fix(s.a.text()), NWG, 512, LDS_BYTES)
def gen(**kw):
    o = Opt()
    for k, v in kw.items(): setattr(o, k, v)
    return G(o).build()
if __name__ == '__main__':
    kw = {}
    for x in sys.argv[2:]:
        k, v = x.split('='); kw[k] = eval(v)
    open(sys.argv[1], 'w').write(gen(**kw))
```

```python
import sys, struct, math
sys.path.insert(0, 'exp')
from asmlib import *
import haz
def fb(x): return hex(struct.unpack('<I', struct.pack('<f', x))[0])
import os
WSB = int(os.environ.get('WSB', '0'), 0)
WS_U, WS_O, WS_XC, WS_TS = WSB, WSB+0x400000, WSB+0x800000, 0xD00000
SL = 44416; L_X = 0; L_WV = 16896; L_XH = 25344; L_WQK = 27520; BL = 4224
QS = L_WQK; KS = SL + L_WQK; VS = 2*SL + L_WQK
HS = 3*SL; TR = HS + 4096; LDS_BYTES = TR + 4*BL
NWG = 240
SPIN = 30000
class Opt:
    meas = None; wlate = 0; xsf = "sc1"; hinb = 0; plds = 2; wsp = (3, 5, 7, 9); ore = 0; wreg = 1; bw = 1; hp2 = None; b2at = 2; aend = 6; slp = 8; adel = 0; nopois = 0; apf2 = 0; apf = 1; rotc = 1; rotg = 1; bmap = 1; tsel = None
    prof = False; clk = 's_memrealtime'; doA = True; doB = True; pre = True; hold = 2; osf = 'sc0 sc1'
    x_early = 0; x_nold = False; x_nomm = False; x_nord = False; rota = 1
    tsel = None; pk = 0; m64 = 1; lprio = 1; cinb = 1; wpf = 0; hsf = 'sc1'; psf = 'sc1'; clean = 0; cutA = 1; cpr = 0; xint = 5; nf = 3; lead = 7; bdel = 3; hpr = 1; apos = 9; aper = 6
MF = 'v_mfma_f32_16x16x32_bf16'
MF16 = 'v_mfma_f32_16x16x16_bf16'

def resolve(ops, loop=True, cap=5, age=None):
    out = []
    seq = 0; last = {}; done = -1; nm = 0; at = []
    for it in range(2 if loop else 1):
        out = []
        for o in ops:
            if o[0] == 'r':
                for r in o[2]: last[r] = seq
                seq += 1; out.append(o[1]); at.append(nm)
            elif o[0] == 'm':
                nd = max([last.get(r, -1) for r in o[2]])
                if nd > done:
                    n = min(seq - 1 - nd, cap)
                    if age: n = min(n, sum(1 for x in at if x > nm - age))
                    out.append(f's_waitcnt lgkmcnt({n})'); done = seq - 1 - n
                out.append(o[1])
                if 'mfma' in o[1]: nm += 1
            elif o[0] == 'w0':
                out.append('s_waitcnt lgkmcnt(0)'); done = seq - 1
            else: out.append(o[1])
    return '\n'.join(out)
def R(b, n): return list(range(b, b+n))

class G:
    def __init__(s, o):
        s.o = o; s.a = Asm(); s.nts = 0
    def ts(s, i):
        if s.o.prof: s.a(s.tst(i))
    def tsl(s, lvl):
        if s.o.prof and s.o.x_early == lvl:
            s.a(f'{s.o.clk} s[98:99]\n s_add_u32 m0, s66, 3\n s_waitcnt lgkmcnt(0)\n s_movreld_b32 s80, s98')
    def tse(s, i, cond=None):
        if s.o.prof and s.o.x_early == 1:
            s.nts += 1
            if cond is not None: s.a(f's_cmp_lg_u32 s66, {cond}\n s_cbranch_scc1 L_tse{s.nts}')
            s.a(f'{s.o.clk} s[98:99]\n s_waitcnt lgkmcnt(0)\n s_mov_b32 s{80+i}, s98\n L_tse{s.nts}:')
    def tst(s, i):
        if s.o.prof and s.o.tsel:
            if i not in s.o.tsel: return ''
            k = 80 + 2*s.o.tsel.index(i)
            return f'{s.o.clk} s[{k}:{k+1}]'
        if s.o.x_early and (9 if s.o.x_early == 1 else 5) <= i <= 14: return ''
        return f'{s.o.clk} s[98:99]\n s_waitcnt lgkmcnt(0)\n s_mov_b32 s{80+i}, s98' if s.o.prof else ''
    def ts_dump(s, n, part='b'):
        if not s.o.prof: return
        a = s.a
        a('s_waitcnt vmcnt(0)')
        s.ts(n-1)
        if s.o.meas:
            S, who = s.o.meas
            if (who == 'a') != (part == 'a'): return
            s.nts += 1; L = f'L_ms{s.nts}'
            if who == 'c': a('s_cmp_ge_u32 s3, 4\n s_cbranch_scc1 L_end')
            if who == 'h': a('s_cmp_lt_u32 s3, 4\n s_cbranch_scc1 L_end')
            a(f'''s_movk_i32 s36, 20000
            {L}:
            s_memrealtime s[6:7]
            s_waitcnt lgkmcnt(0)
            s_sub_u32 s6, s6, s{80 + 2*s.o.tsel.index(S)}
            s_cmp_ge_u32 s6, 2000
            s_cbranch_scc1 L_end
            s_sub_u32 s36, s36, 1
            s_cbranch_scc0 {L}''')
            return
        a(f's_lshl_b32 s4, s2, 3\n s_add_u32 s4, s4, s3\n s_lshl_b32 s4, s4, 6\n s_add_u32 s4, s4, {WS_TS}\n s_mov_b64 exec, 1\n v_mov_b32 v1, 0')
        a('s_waitcnt lgkmcnt(0)')
        for i in range(n):
            k = 80 + i if not s.o.tsel else (80 + 2*s.o.tsel.index(i) if i in s.o.tsel else 80)
            a(f'v_mov_b32 v2, s{k}\n buffer_store_dword v2, v1, s[24:27], s4 offen offset:{4*i}')
    def dma(s, ldsreg, ldsoff, kreg, koff, voff, srd):
        s.a(f's_add_u32 m0, {ldsreg}, {ldsoff}\n s_add_u32 s7, {kreg}, {koff}')
        if not s.o.x_nold: s.a(f'buffer_load_dwordx4 {voff}, {srd}, s7 offen lds')
    def srds(s):
        s.a('''s_mov_b32 s14, 1990656
        s_mov_b32 s15, s11
        s_mov_b32 s18, 663552
        s_mov_b32 s19, s11
        s_mov_b32 s22, 4718592
        s_mov_b32 s23, s11
        s_mov_b32 s26, 0x10000000
        s_mov_b32 s27, s11
        s_movk_i32 s30, 256
        s_mov_b32 s31, s11''')
    def prefetch(s, r=232):
        if not s.o.pre: return
        s.nts += 1; L = f'L_pc{s.nts}'
        s.a(f'''s_getpc_b64 s[36:37]
        {L}:
        s_sub_u32 s36, s36, {L}-L_top
        s_subb_u32 s37, s37, 0
        s_lshl_b32 s38, s3, 13
        v_lshl_add_u32 v{r}, v0, 7, s38
        v_min_u32 v{r}, L_last-L_top, v{r}
        global_load_dword v{r+1}, v{r}, s[36:37]''')
    def entry(s):
        a = s.a
        a(f'''L_top:
        s_cmpk_ge_u32 s2, {NWG}
        s_cbranch_scc1 L_end
        s_load_dwordx2 s[8:9], s[0:1], 40
        s_load_dwordx2 s[12:13], s[0:1], 48
        s_load_dwordx2 s[4:5], s[0:1], 0
        s_load_dwordx2 s[16:17], s[0:1], 56
        s_load_dwordx2 s[20:21], s[0:1], 64
        s_load_dwordx2 s[28:29], s[0:1], 72
        s_load_dwordx2 s[24:25], s[0:1], 80''')
        if s.o.prof: a(f'{s.o.clk} s[80:81]')
        a(f'''v_lshrrev_b32 v1, 6, v0
        v_and_b32 v0, 63, v0
        v_readfirstlane_b32 s3, v1
        s_mov_b32 s10, 2359296
        s_mov_b32 s11, 0x20000''')
        s.srds()
        a(f'''s_and_b32 s32, s2, 7
        s_lshl_b32 s32, s32, 1
        s_lshr_b32 s33, s2, 3
        s_cmp_ge_u32 s33, 18
        s_cbranch_scc1 L_A
        s_cmp_ge_u32 s33, 9
        s_cselect_b32 s6, 9, 0
        s_addc_u32 s32, s32, 0
        s_sub_u32 s33, s33, s6''')
        if s.o.bmap > 1:
            m = s.o.bmap; lg = m.bit_length() - 1
            a(f'''s_and_b32 s6, s2, {m-1}
            s_mul_i32 s6, s6, 18
            s_lshr_b32 s7, s2, 3
            s_add_u32 s6, s6, s7
            s_lshr_b32 s33, s6, {lg+1}
            s_and_b32 s6, s6, {2*m-1}
            s_and_b32 s7, s2, {7 & ~(m-1)}
            s_lshl_b32 s7, s7, 1
            s_add_u32 s32, s7, s6''')
        a(f'''s_cmp_lt_u32 s3, 4
        s_cbranch_scc1 L_Bc''')
        if not s.o.doB: a('s_endpgm')
    OS = [56, 57, 58, 59, 60, 61, 62, 63, 75]
    NCH = 5
    def b_loader(s):
        a = s.a; o = s.o
        if o.lprio: a('s_setprio 3')
        a(f'''s_sub_u32 s39, s3, 4
        v_and_b32 v1, 7, v0
        v_lshlrev_b32 v1, 4, v1
        v_bfe_u32 v2, v0, 3, 1
        v_bfe_u32 v3, v0, 4, 1
        v_lshrrev_b32 v4, 5, v0
        s_lshl_b32 s6, s39, 1
        v_lshl_add_u32 v5, v3, 3, v2
        v_add_u32 v5, s6, v5
        v_lshl_add_u32 v83, v4, 4, v5
        v_mul_u32_u24 v80, 2304, v83
        v_add_u32 v80, v80, v1
        v_lshl_add_u32 v6, v3, 2, v2
        v_lshl_add_u32 v6, v4, 4, v6
        s_and_b32 s34, s39, 1
        s_lshl_b32 s34, s34, 1
        s_lshr_b32 s35, s39, 1
        s_lshl_b32 s35, s35, 3
        s_add_u32 s34, s34, s35
        v_add_u32 v6, s34, v6
        v_mul_u32_u24 v82, 3456, v6
        s_lshl_b32 s35, s33, 7
        v_add3_u32 v82, v82, v1, s35
        v_add_u32 v6, s6, v2
        v_lshl_add_u32 v6, v6, 1, v3
        s_lshl_b32 s34, s32, 7
        s_sub_u32 s34, s34, 16
        s_max_i32 s34, s34, 0
        v_add_u32 v6, s34, v6
        v_mul_u32_u24 v81, 1152, v6
        v_add_u32 v81, v81, v1
        s_mul_i32 s63, s32, {128*1152}
        s_mul_i32 s34, s32, {o.rotc}
        s_mul_i32 s6, s33, {o.rotg}
        s_add_u32 s34, s34, s6
        s_mul_i32 s6, s34, 57
        s_lshr_b32 s6, s6, 9
        s_mul_i32 s6, s6, 9
        s_sub_u32 s34, s34, s6
        s_lshl_b32 s67, s34, 7
        s_add_u32 s68, s63, s67
        s_mul_i32 s69, s67, 1728
        s_mul_i32 s64, s39, 1056
        s_mul_i32 s65, s39, 544
        s_mov_b32 s66, 0
        s_waitcnt lgkmcnt(0)''')
        s.tse(9)
        a('L_ld:')
        for cw in range(4):
            s.dma('s64', L_X + cw*BL, 's68', (64*(cw >> 1) + (cw & 1))*1152, 'v80', 's[8:11]')
        a(f's_add_u32 m0, s65, {L_XH}\n s_mov_b32 exec_hi, 0')
        a(f'buffer_load_dwordx4 v81, s[8:11], s67 offen lds\n s_mov_b32 exec_hi, -1')
        for ks in range(2):
            for m in range(2):
                s.dma('s64', L_WQK + (2*ks+m)*BL, 's69', ks*32*3456 + m*1152, 'v82', 's[12:15]')
            s.dma('s64', L_WV + ks*BL, 's69', ks*32*3456 + 2304, 'v82', 's[12:15]')
        s.tse(11, 0); s.tse(12, 1)
        a(f'''s_add_u32 s67, s67, 128
        s_cmp_eq_u32 s67, 1152
        s_cselect_b32 s67, 0, s67
        s_add_u32 s68, s63, s67
        s_mul_i32 s69, s67, 1728
        s_add_u32 s64, s64, {SL}
        s_add_u32 s65, s65, {SL}
        s_cmp_ge_u32 s64, {3*SL}
        s_cselect_b32 s6, {3*SL}, 0
        s_sub_u32 s64, s64, s6
        s_sub_u32 s65, s65, s6
        s_add_u32 s66, s66, 1
        s_cmp_lt_u32 s66, 2
        s_cbranch_scc1 L_ld''')
        s.tsl(4)
        a('s_waitcnt vmcnt(11)')
        s.tsl(3)
        a('s_barrier')
        s.tsl(2)
        a('s_cmp_lt_u32 s66, 9\n s_cbranch_scc1 L_ld')
        a(f'''v_lshl_add_u32 v84, v4, 5, v83
        v_add_u32 v83, 16, v83
        v_mul_u32_u24 v83, 1152, v83
        v_mul_u32_u24 v84, 1152, v84
        v_add3_u32 v83, v83, v1, s35
        v_add3_u32 v84, v84, v1, s35
        s_add_u32 s69, s33, 4
        s_cmp_ge_u32 s69, 9
        s_cselect_b32 s6, 9, 0
        s_sub_u32 s69, s69, s6
        s_mul_i32 s69, s69, {64*1152}''')
        for p in range(5, 9): a(s.wo_dma(p))
        a(f's_setprio {o.cpr}\n s_branch L_const0\n L_cretA:')
        a('s_waitcnt vmcnt(4)\n s_add_u32 s66, s66, 1')
        s.tsl(3)
        a('s_barrier')
        s.tsl(2)
        if o.wpf:
            a(f's_mul_i32 s6, s39, 144\n v_add_u32 v8, s6, v0\n v_mul_u32_u24 v8, 1152, v8')
            for k in range(3): a(f's_add_u32 s6, s35, {48*1152*k}\n buffer_load_dword v9, v8, s[16:19], s6 offen')
        a(f'''s_lshl_b32 s67, s32, 4
        s_cmp_lg_u32 s3, 4
        s_cbranch_scc1 L_Bn0
        buffer_load_dword v249, off, s[28:31], s67 sc1
        L_Bn0:''')
        if o.wreg: s.wld(range(0, o.wsp[0]))
        a(f'''s_branch L_const1
        L_cretB:
        s_movk_i32 s5, {SPIN//8}
        s_waitcnt vmcnt({9 if o.wreg else 0})
        s_cmp_lg_u32 s3, 4
        s_cbranch_scc1 L_Bnd
        L_Bn:
        v_cmp_gt_u32 vcc, 6, v249
        s_cbranch_vccz L_Bnd
        s_sleep {o.slp}
        buffer_load_dword v249, off, s[28:31], s67 sc1
        s_sub_u32 s5, s5, 1
        s_waitcnt vmcnt(0)
        s_cbranch_scc0 L_Bn
        L_Bnd:''')
        a(f's_setprio {o.hpr}')
        s.ts(3)
        a('s_barrier')
        s.ts(4)
        ops = []; d = list(range(5))
        for k, y in enumerate(s.x_ops()):
            ops.append(y)
            if k >= 5 and (k-5) % o.xint == 0 and d: ops.append(('t', s.wo_dma(d.pop(0))))
        ops += [('t', s.wo_dma(p)) for p in d]
        a(resolve(ops, loop=False, cap=15))
        s.ts(5)
        a('s_mul_i32 s69, s33, %d\n s_branch L_BF' % (64*1152))
    def wwr(s, p): return f'ds_write_b128 v85, {vr(12+4*p if p < 17 else 4,4)} offset:{s.wo_off(p)}'
    def wld(s, r):
        for i in r:
            s.a(f's_add_u32 s34, s34, {64*1152}\n s_cmp_eq_u32 s34, s18\n s_cselect_b32 s34, 0, s34' if i else f's_mul_i32 s34, s33, {64*1152}\n v_add_u32 v85, s64, v248')
            s.a(f'buffer_load_dwordx4 {vr(48+4*i if i < 8 else 4,4)}, v84, s[16:19], s34 offen')
    def wo_dma(s, pos):
        step = f's_add_u32 s69, s69, {64*1152}\n s_cmp_eq_u32 s69, s18\n s_cselect_b32 s69, 0, s69\n' if pos != 9 else ''
        return f's_add_u32 m0, s64, {s.wo_off(pos)}\n {step} buffer_load_dwordx4 v{84 if pos >= 9 else 83}, s[16:19], s69 offen lds'
    def wo_off(s, pos):
        i = pos % 9
        return ((2*SL, TR) if pos < 9 else (0, SL))[i >= 5] + (i % 5)*BL
    def b_const(s):
        a = s.a
        def cut(k):
            if k == s.o.cutA: a('s_cmp_ge_u32 s3, 4\n s_cbranch_scc1 L_cretA\n L_const1:')
            j = k - s.o.cutA; w = s.o.wsp
            if s.o.wreg and 1 <= j < len(w) and w[j] > w[j-1]:
                a(f's_cmp_lt_u32 s3, 4\n s_cbranch_scc1 L_cw{j}'); s.wld(range(w[j-1], w[j])); a(f'L_cw{j}:')
            if k == s.NCH: a('s_cmp_ge_u32 s3, 4\n s_cbranch_scc1 L_cretB')
        a('L_const0:')
        a(f'''v_and_b32 v216, 15, v0
        v_lshrrev_b32 v217, 4, v0
        v_lshlrev_b32 v218, 2, v217
        v_and_b32 v219, 7, v0
        v_sub_u32 v219, v218, v219
        v_lshlrev_b32 v248, 4, v0
        v_lshlrev_b32 v255, 3, v0
        v_lshlrev_b32 v200, 7, v0
        s_mov_b32 s100, 0x00ff00ff
        s_mov_b32 s101, s100
        s_lshr_b32 s6, s3, 1
        s_or_b32 s6, s6, s32
        s_cmp_eq_u32 s6, 0
        s_cselect_b32 exec_lo, s100, 0
        s_mov_b32 exec_hi, 0
        v_mov_b32 v219, 64
        s_mov_b64 exec, -1
        v_mov_b32 v220, {fb(-1e30)}''')
        for i in range(4):
            a(f'''v_add_u32 v221, {i-1}, v219
            v_cmp_le_u32 vcc, 8, v221
            v_cndmask_b32 v{192+i}, 0, v220, vcc''')
        cut(1)
        a(f'''s_lshl_b32 s6, s33, 6
        s_add_u32 s7, s6, 17
        s_mul_i32 s7, s7, 3641
        s_lshr_b32 s7, s7, 16
        s_mul_i32 s7, s7, 18
        s_sub_u32 s6, s7, s6
        s_mov_b32 s7, s6''')
        for t in range(4):
            if t: a(f's_cmp_eq_u32 s6, {18-2*t}\n s_cselect_b32 s4, -16, 2\n s_add_u32 s7, s7, s4')
            a(f's_sub_u32 s4, s7, 2\n v_cmp_gt_i32 s[{40+4*t}:{41+4*t}], s7, v218\n v_cmp_gt_i32 s[{42+4*t}:{43+4*t}], s4, v218')
        cut(2)
        a(f'''s_and_b32 s70, s3, 3
        s_lshr_b32 s71, s3, 2
        s_lshl_b32 s72, s70, 1
        s_add_u32 s72, s72, s71
        s_lshl_b32 s6, s72, 11
        s_add_u32 s7, s6, {QS}
        v_add_u32 v202, s7, v255
        v_add_u32 v201, {KS-QS}, v202
        v_add_u32 v203, {VS-QS}, v202
        s_cmp_ge_u32 s3, 4
        s_cselect_b32 s4, 1, 3
        s_lshl_b32 s4, s4, 11
        s_sub_u32 s6, s6, s4
        s_add_u32 s4, s6, {KS+64}
        s_add_u32 s5, s6, {VS+256}
        s_lshl_b32 s6, s3, 6
        s_add_u32 s6, s6, {HS}
        s_lshl_b32 s7, s3, 8
        s_add_u32 s7, s7, {HS+2048}
        s_cmp_lt_u32 s3, 2
        s_cselect_b32 s4, s6, s4
        s_cselect_b32 s5, s7, s5
        v_add_u32 v204, s4, v255
        v_add_u32 v205, s5, v255
        s_not_b64 exec, s[100:101]
        v_subrev_u32 v204, 64, v201
        s_mov_b32 exec_lo, 0
        s_mov_b32 exec_hi, -1
        v_subrev_u32 v205, 0x100, v203
        s_mov_b32 exec_lo, -1''')
        for r in range(0, 6): a(f'v_mov_b32 v{s.PP+r}, 0')
        cut(3)
        a(f'''s_lshr_b32 s4, s70, 1
        s_and_b32 s6, s70, 1
        s_lshl_b32 s4, s4, 6
        s_add_u32 s4, s4, s6
        s_lshl_b32 s5, s71, 5
        s_add_u32 s4, s4, s5
        s_lshl_b32 s5, s32, 7
        s_add_u32 s4, s4, s5
        s_mul_i32 s4, s4, 2304
        s_lshl_b32 s5, s33, 7
        s_add_u32 s4, s4, s5
        s_add_u32 s73, s4, 1152
        v_lshrrev_b32 v221, 3, v0
        v_and_b32 v222, 0x70, v248
        v_mov_b32 v223, 4608
        v_mad_u32_u24 v254, v221, v223, v222
        s_lshl_b32 s4, s70, 12
        s_mul_i32 s5, s71, {KS-QS}
        s_sub_u32 s4, s4, s5
        s_add_u32 s4, s4, {KS}
        v_mul_u32_u24 v253, 144, v221
        v_add3_u32 v253, v253, v222, s4
        v_mul_u32_u24 v252, 144, v216
        v_lshl_add_u32 v252, v217, 3, v252
        v_add_u32 v252, s4, v252
        v_bfe_u32 v221, v0, 3, 2
        v_mul_u32_u24 v221, 1056, v221
        v_bfe_u32 v222, v0, 2, 1
        v_lshl_add_u32 v221, v222, 7, v221
        v_and_b32 v222, 3, v0
        v_lshl_add_u32 v207, v222, 3, v221
        v_lshrrev_b32 v222, 5, v0
        v_lshl_add_u32 v250, v222, 8, v207
        s_mul_i32 s4, s71, {TR-SL}
        s_add_u32 s4, s4, {SL}
        s_mul_i32 s5, s71, {2*SL}
        v_add_u32 v251, s4, v250
        v_add_u32 v250, s5, v250
        v_lshl_add_u32 v207, v222, 9, v207''')
        cut(4)
        a(f'''s_lshl_b32 s4, s32, 2
        s_add_u32 s4, s4, s70
        s_mul_i32 s4, s4, 36864
        s_add_u32 s4, s4, {WS_O+1024}
        s_lshl_b32 s6, s71, 10
        s_sub_u32 s4, s4, s6
        s_lshl_b32 s5, s33, 12
        s_add_u32 s{s.OS[0]}, s4, s5
        s_mul_i32 s6, s71, 3072
        s_add_u32 s74, s{s.OS[0]}, s6
        s_sub_u32 s74, s74, 1024
        s_add_u32 s5, s4, 36864''')
        for i in range(1, 9):
            a(f's_add_u32 s{s.OS[i]}, s{s.OS[i-1]}, 4096\n v_mov_b32 v{s.PP+5+i}, 0\n s_cmp_eq_u32 s{s.OS[i]}, s5\n s_cselect_b32 s{s.OS[i]}, s4, s{s.OS[i]}')
        a(f'''s_mul_i32 s4, s32, 9
        s_add_u32 s4, s4, s33
        s_lshl_b32 s4, s4, 14
        s_lshl_b32 s5, s72, 10
        s_add_u32 s4, s4, s5
        s_add_u32 s76, s4, {WS_XC}
        s_add_u32 s77, s76, 8192
        s_cmp_eq_u32 s33, 0
        s_cselect_b32 s4, 0, 8192
        s_sub_u32 s78, s76, s4
        s_cmp_eq_u32 s33, 8
        s_cselect_b32 s4, 0, 8192
        s_add_u32 s79, s77, s4
        s_lshl_b32 s4, s70, 12
        s_mul_i32 s5, s71, {KS-QS}
        s_add_u32 s71, s4, s5
        s_add_u32 s71, s71, {QS}
        s_sub_u32 s72, s4, s5
        s_add_u32 s72, s72, {KS}
        s_mul_i32 s4, s70, 3072
        s_add_u32 s4, s4, {QS-5*BL}
        s_sub_u32 s68, s71, s4
        s_sub_u32 s65, s72, s4
        s_mov_b32 s70, {fb(math.log2(math.e)/math.sqrt(18))}''')
        for r in range(14, 20): a(f'v_mov_b32 v{s.PP+r}, 0')
        s.ts(1)
        cut(s.NCH)
    AV, HV, XB, WV_, AQ, AK, HK, WQ, ALT, XB2 = 8, 40, 44, 212, 88, 120, 152, 156, 220, 224
    def frags(s, mode):
        F = []
        for m, acc in ((0, s.AQ), (1, s.AK)):
            for i in range(2):
                F.append([s.WQ + 8*m + 4*i, 4+i, lambda ks, m=m: L_WQK + (2*ks+m)*BL,
                          [(acc + 8*t + 4*i, t) for t in range(4)] + ([(s.HK, 4)] if m == 1 and i == 0 else []), 0])
        if 'v' in mode:
            for i in range(2):
                F.append([s.WV_ + 4*i, 4+i, lambda ks: L_WV + ks*BL, [(s.AV + 8*t + 4*i, t) for t in range(4)] + ([(s.HV, 4)] if i == 0 else []), 1])
        return F
    def rd_w(s, f, ks, reg=None):
        reg = reg or f[0]
        return [('r', f'ds_read_b64_tr_b16 {vr(reg+2*h,2)}, v{f[1]} offset:{f[2](ks)+256*h}', R(reg+2*h, 2)) for h in range(2)]
    def rd_x(s, ks, b=None, ar=2, off=0):
        b = b or s.XB + 20*ks
        return [('r', f'ds_read_b128 {vr(b+4*t,4)}, v{ar if t < 4 else ar+1} offset:{off+((t>>1)*2*BL+512*(t&1) if t < 4 else 0)+64*ks}', R(b+4*t, 4)) for t in range(5)]
    def mm(s, f, ks, reg=None, xb=None):
        r = []; reg = reg or f[0]; xb = xb or s.XB + 20*ks
        for acc, t in f[3]:
            x = xb + 4*t
            A, B = (x, reg) if f[4] else (reg, x)
            r.append(('m', f'{MF} {vr(acc,4)}, {vr(A,4)}, {vr(B,4)}, {vr(acc,4)}', R(x, 4) + R(reg, 4)))
        return r
    def stg(s, b, areg, off):
        return [('t', f'v_cvt_pk_bf16_f32 v{b}, v{b}, v{b+1}'), ('t', f'v_cvt_pk_bf16_f32 v{b+1}, v{b+2}, v{b+3}'), ('r', f'ds_write_b64 v{areg}, {vr(b,2)} offset:{off}', [])]
    def stage(s, mode, extra):
        F = s.frags(mode); ops = []; n = len(F)
        sal = [('t', t) for t in ['s_add_u32 s36, s36, 1', 's_cmp_eq_u32 s36, 3', 's_cselect_b32 s36, 0, s36', f's_cselect_b32 s38, s37, {SL}'] + extra]
        hi = s.rd_x(1); lo = s.rd_w(F[-1], 1, s.ALT)
        def gap():
            if sal: ops.append(sal.pop(0))
            if hi: ops.append(hi.pop(0))
            elif lo: ops.append(lo.pop(0))
        for i, f in enumerate(F):
            for m in s.mm(f, 0): ops.append(m); gap()
            if i < n-1: hi += s.rd_w(f, 1)
        assert not hi and not lo
        hi = [('t', f'v_add_u32 v{r}, s38, v{r}') for r in (4, 2, 3, 5)]
        for i, f in enumerate(F):
            if i == 1:
                assert not hi
                ops.extend([('w0',), ('t', 's_barrier')])
                hi = s.rd_w(F[0], 0) + s.rd_x(0); lo = s.rd_w(F[-1], 0)
            for m in s.mm(f, 1, s.ALT if i == n-1 else None): ops.append(m); gap()
            if 1 <= i < n-1: hi += s.rd_w(f, 0)
        assert not hi and not lo, (hi, lo)
        if s.o.x_nomm: ops = [x for x in ops if x[0] != 'm']
        if s.o.x_nord: ops = [x for x in ops if x[0] != 'r']
        return ops
    def tail(s):
        o = s.o
        F = s.frags('qkv'); q0, q1, k0, k1, v0, v1 = F
        M = []; rd = []; st = []
        def grp(ms):
            M.extend(ms); return len(M) - 1
        XS = [s.XB, s.XB+20, s.XB2]; WS = [s.WV_, s.WQ, s.WQ+8]
        def vrd(j, after):
            sl, ks = (j >> 1) - 1, j & 1
            x = s.rd_x(ks, XS[j % 3], 6, SL*sl) if j >= 2 else []
            w = []
            for i in range(2):
                f = [0, (210 if j >= 2 else 4) + i, (lambda ks: SL*sl + ks*BL) if j >= 2 else v0[2]]
                w.append(s.rd_w(f, ks, WS[j % 3] + 4*i))
            for y in w[0] + x + w[1]: rd.append((after, y))
        for y in s.rd_x(1): rd.append((0, y))
        e = grp(s.mm(q0, 0)); rd += [(e, y) for y in s.rd_w(q0, 1)]
        e = grp(s.mm(q1, 0)); rd += [(e, y) for y in s.rd_w(q1, 1)]
        e = grp(s.mm(k0, 0)); vrd(0, 0); rd += [(e, y) for y in s.rd_w(k0, 1)] + [(0, y) for y in s.rd_w(k1, 1, s.ALT)]
        def staged(f, ms, areg, off):
            for (acc, t), m in zip(f[3], ms):
                M.append(m)
                for y in (s.stg(acc, areg, off + (4*(t >> 1) + (t & 1))*2048) if t < 4 else s.stg(acc, 206, 2048 if f[4] else 0)): st.append((len(M) + 1, y))
        staged(q0, s.mm(q0, 1), 84, 0); staged(q1, s.mm(q1, 1), 85, 0)
        vrd(1, len(M) - 1)
        grp(s.mm(k1, 0))
        staged(k0, s.mm(k0, 1), 84, KS-QS); staged(k1, s.mm(k1, 1, s.ALT), 85, KS-QS)
        nq = len(rd)
        if o.prof: st.append((0, ('t', s.tst(3))))
        st.append((('d', o.bdel, nq), ('w0',))); st.append((0, ('t', 's_barrier')))
        if o.prof: st.append((0, ('t', s.tst(4))))
        xo = s.x_ops()
        for k, y in enumerate(xo): st.append((('d', 4, 0) if k == 6 else 0, y))
        if o.prof: st.append((0, ('t', s.tst(5))))
        e = len(M) - 1
        for j in range(6):
            if j + 2 < 6: vrd(j+2, e)
            if j < 5:
                grp(s.mm(v0, 0, WS[j % 3], XS[j % 3])); e = grp(s.mm(v1, 0, WS[j % 3] + 4, XS[j % 3]))
            else:
                staged(v0, s.mm(v0, 0, WS[j % 3], XS[j % 3]), 86, 0); staged(v1, s.mm(v1, 0, WS[j % 3] + 4, XS[j % 3]), 87, 0)
        dl = []
        for c, y in rd:
            dl.append(min(g for g, m in enumerate(M) if g > c and set(y[2]) & set(m[2])) - o.lead)
        for k in range(len(dl)-2, -1, -1): dl[k] = min(dl[k], dl[k+1] - 1)
        ops = []; nrd = 0; lastg = 0
        def ok(c, g):
            if isinstance(c, tuple): return g >= lastg + c[1] and nrd >= c[2]
            return g >= c
        for g, m in enumerate(M):
            ops.append(m); n = 0
            waitbar = st and st[0][1][0] == 'w0' and nrd >= nq
            if rd and rd[0][0] <= g and dl[nrd] <= g: ops.append(rd.pop(0)[1]); nrd += 1; n += 1
            k = 0
            while st and k < o.nf and ok(st[0][0], g):
                y = st.pop(0)[1]; ops.append(y); lastg = g
                if not (y[0] == 'w0' or y[1].startswith(('s_b', 's_mem')) or not y[1]): k += 1
            if n + k == 0 and rd and rd[0][0] <= g and not waitbar: ops.append(rd.pop(0)[1]); nrd += 1
        assert not rd
        ops += [y for c, y in st]
        s.check_order(ops)
        return ops
    def check_order(s, ops):
        pend = {}
        for y in ops:
            if y[0] == 'r':
                for r in y[2]:
                    assert not pend.get(r), ('overwritten before use', y)
                    pend[r] = True
            elif y[0] == 'm':
                for r in y[2]: pend[r] = False
    def b_compute(s):
        a = s.a; o = s.o
        a('L_Bc:')
        if not o.doB: a('s_endpgm')
        s.prefetch()
        a(f'''v_bfe_u32 v6, v0, 1, 2
        v_and_b32 v7, 1, v0
        v_bfe_u32 v4, v0, 3, 1
        v_lshl_add_u32 v7, v4, 1, v7
        v_and_b32 v4, 0x30, v0
        v_lshl_add_u32 v7, v7, 7, v4
        s_and_b32 s6, s3, 1
        s_mul_i32 s6, s6, {BL}
        v_mul_u32_u24 v2, 1056, v6
        v_add3_u32 v2, v2, v7, s6
        v_mul_u32_u24 v3, 544, v6
        v_add_u32 v3, v3, v7
        v_add_u32 v3, {L_XH}, v3
        v_mov_b32 v6, v2
        v_mov_b32 v7, v3''')
        for r in list(range(8, 44)) + list(range(88, 156)) + [83, 84]: a(f'v_mov_b32 v{r}, 0')
        a('s_mov_b32 s34, 0\n s_waitcnt lgkmcnt(0)')
        s.b_const()
        a(f'''s_lshl_b32 s6, s3, 5
        v_add_u32 v4, s6, v207
        s_xor_b32 s6, s6, 32
        v_add_u32 v5, s6, v207
        v_add_u32 v210, {L_WV}, v4
        v_add_u32 v211, {L_WV}, v5
        s_and_b32 s6, s3, 1
        s_lshl_b32 s7, s6, 12
        s_add_u32 s7, s7, {QS}
        s_lshl_b32 s4, s3, 9
        s_add_u32 s5, s7, s4
        v_add_u32 v84, s5, v255
        s_add_u32 s5, s4, {HS}
        v_add_u32 v206, s5, v255
        s_xor_b32 s4, s4, 512
        s_add_u32 s5, s7, s4
        v_add_u32 v85, s5, v255
        v_add_u32 v86, {VS-QS}, v84
        v_add_u32 v87, {VS-QS}, v85
        s_mov_b32 s36, 0
        s_mov_b32 s37, {-2*SL & 0xffffffff}
        s_mov_b32 s35, 0''')
        a('s_barrier')
        s.ts(2)
        F = s.frags('qkv')
        l1 = s.stage('qkv', ['s_add_u32 s35, s35, 1', 's_cmp_lt_u32 s35, 6'])
        for y in l1[l1.index(('w0',)):]:
            if y[0] == 'r': a(y[1])
        a('.p2align 3\n L_Bl1:')
        a(resolve(l1, cap=15, age=6))
        a('s_cbranch_scc1 L_Bl1')
        a('.p2align 3\n L_Bl2:')
        l2 = s.stage('qk', ['s_add_u32 s35, s35, 1', 's_cmp_lt_u32 s35, 8'])
        a(resolve(l2, cap=15, age=6))
        a('s_cbranch_scc1 L_Bl2\n s_waitcnt vmcnt(0)')
        a(resolve(l2 + [('t', '@@')] + s.tail(), loop=False, cap=15, age=5).split('@@')[1])
        a('s_waitcnt lgkmcnt(0)\n s_barrier')
        s.vreads()
        if o.cinb == 0: a(s.inl())
    QR, KC, KP, QM, LL, TT, PP, MM, IN, VV, OF = 88, 96, 104, 112, 128, 148, 172, 160, 216, 224, 240
    def Lr(s, sl): return {0: 128, 4: 132, 1: 136, 2: 140, 3: 144}[sl]
    def inl(s): return f'buffer_load_dwordx4 {vr(s.IN,4)}, v248, s[24:27], s78 offen sc1\n buffer_load_dwordx4 {vr(s.IN+4,4)}, v248, s[24:27], s79 offen sc1'
    def reld(s, so, off):
        return f's_mov_b64 exec, 0xff\n buffer_load_dword v255, v200, s[24:27], {so} offen offset:{off} sc1\n s_mov_b64 exec, -1'
    def vreads(s):
        for t in (1, 2, 0, 3):
            s.a(f'ds_read_b64 {vr(s.VV+4*t,2)}, v203 offset:{512*t}\n ds_read_b64 {vr(s.VV+4*t+2,2)}, v205 offset:{512*t}')
    def qmask(s, t, hi):
        r = []
        for h in range(2):
            m = f's[{40+4*t+2*h}:{41+4*t+2*h}]'; q = f'v{s.QR+2*t+h}'
            r.append(('m', f'v_cndmask_b32 v{s.QM+4*t+2*hi+h}, {q}, 0, {m}' if hi else f'v_cndmask_b32 v{s.QM+4*t+h}, 0, {q}, {m}', [s.QR+2*t+h]))
        return r
    def merge(s, L, T, n):
        r = [('t', 's_mov_b64 exec, s[100:101]')]
        if s.o.m64: r += [('t', f'v_mov_b64 {vr(L+2*i,2)}, {vr(T+2*i,2)}') for i in range(n//2)]
        else: r += [('t', f'v_mov_b32 v{L+i}, v{T+i}') for i in range(n)]
        return [('t', '\n'.join(y[1] for y in r + [('t', 's_mov_b64 exec, -1')]))]
    def x_ops(s):
        r = []
        for d, ar in ((s.QR, 202), (s.KC, 201), (s.KP, 204)):
            for j in range(2): r.append(('r', f'ds_read2st64_b64 {vr(d+4*j,4)}, v{ar} offset0:{2*j} offset1:{2*j+1}', R(d+4*j, 4)))
        r += s.qmask(0, 0) + s.qmask(3, 1)
        for j, (sl, k, q) in enumerate(((0, 0, s.QM), (4, 6, s.QM+14))):
            r.append(('m', f'{MF16} {vr(s.Lr(sl),4)}, {vr(s.KC+k,2)}, {vr(q,2)}, v[192:195]', R(s.KC+k, 2)))
        for j, (sl, k, q) in enumerate(((0, 0, s.QM), (4, 6, s.QM+14))):
            r.append(('m', f'{MF16} {vr(s.TT+4*j,4)}, {vr(s.KP+k,2)}, {vr(q,2)}, v[192:195]', R(s.KP+k, 2)))
        r += s.qmask(0, 1) + s.qmask(1, 0) + s.qmask(1, 1)
        r += s.merge(128, s.TT, 8)
        for j in range(2):
            r.append(('t', f'v_min_u32 v{128+4*j}, -2, v{128+4*j}'))
            r.append(('t', f'buffer_store_dwordx4 {vr(128+4*j,4)}, v248, s[24:27], s{76+j} offen {s.o.xsf}'))
        if s.o.ore & 4: r += [('t', s.reld('s76', 0)), ('t', s.reld('s77', 0))]
        r += s.qmask(2, 0) + s.qmask(2, 1) + s.qmask(3, 0)
        return r
    def bfly(s, n, op, mid):
        a = s.a; b, c, d, t = [f'v{s.MM+i}' for i in range(4)]
        if n == 3:
            a(f'''v_mov_b32 {t}, {d}
            v_permlane32_swap_b32 {b}, {c}
            v_permlane32_swap_b32 {d}, {t}
            {op} {b}, {b}, {c}
            {op} {d}, {d}, {t}
            v_permlane16_swap_b32 {b}, {d}
            {op} {b}, {b}, {d}
            {mid(d, b)}
            {mid(b, b)}
            v_permlane16_swap_b32 {b}, {d}
            v_mov_b32 {c}, {b}
            v_permlane32_swap_b32 {b}, {c}''')
        else:
            a(f'''v_permlane32_swap_b32 {b}, {c}
            {op} {t}, {b}, {c}
            {op} {b}, {b}, {c}
            v_permlane16_swap_b32 {b}, {t}
            {op} {b}, {b}, {t}
            {mid(c, b)}
            {mid(b, b)}
            v_permlane32_swap_b32 {b}, {c}''')
    def softmax(s, slots, mid=''):
        a = s.a; n = len(slots); pk = s.o.pk
        rev = list(enumerate(slots))[::-1]
        for j, sl in enumerate(slots):
            L = s.Lr(sl); a(f'v_max3_f32 v{s.MM+j}, v{L}, v{L+1}, v{L+2}')
        for j, sl in enumerate(slots):
            L = s.Lr(sl); a(f'v_max_f32 v{s.MM+j}, v{s.MM+j}, v{L+3}')
        s.bfly(n, 'v_max_f32', lambda d, x: f'v_mul_f32 {d}, s70, {x}')
        a(mid)
        for j, sl in rev:
            L = s.Lr(sl); mp = vr((s.MM+j) & ~1, 2); b = j & 1
            if pk:
                for i in (0, 2): a(f'v_pk_fma_f32 {vr(L+i,2)}, {vr(L+i,2)}, s[70:71], {mp} op_sel:[0,0,{b}] op_sel_hi:[1,0,{b}] neg_lo:[0,0,1] neg_hi:[0,0,1]')
            else:
                for i in range(4): a(f'v_fma_f32 v{L+i}, v{L+i}, s70, -v{s.MM+j}')
            for i in range(4): a(f'v_exp_f32 v{L+i}, v{L+i}')
        for j, sl in rev:
            L = s.Lr(sl); T = s.TT + 2*j
            a(f'v_pk_add_f32 {vr(T,2)}, {vr(L,2)}, {vr(L+2,2)}' if pk else f'v_add_f32 v{T}, v{L}, v{L+1}\n v_add_f32 v{T+1}, v{L+2}, v{L+3}')
        for j, sl in rev:
            a(f'v_add_f32 v{s.MM+j}, v{s.TT+2*j}, v{s.TT+2*j+1}')
        s.bfly(n, 'v_add_f32', lambda d, x: f'v_rcp_f32 {d}, {x}')
        for j, sl in rev:
            L = s.Lr(sl); mp = vr((s.MM+j) & ~1, 2); b = j & 1
            if pk:
                for i in (0, 2): a(f'v_pk_mul_f32 {vr(L+i,2)}, {vr(L+i,2)}, {mp} op_sel:[0,{b}] op_sel_hi:[1,{b}]')
            else:
                for i in range(4): a(f'v_mul_f32 v{L+i}, v{L+i}, v{s.MM+j}')
        for half in range(2):
            a('s_mov_b64 exec, s[100:101]' if half else 's_not_b64 exec, s[100:101]')
            for j, sl in rev:
                L = s.Lr(sl); P = s.PP + 4*sl + 2*half
                for h in range(2): a(f'v_cvt_pk_bf16_f32 v{P+h}, v{L+2*h}, v{L+2*h+1}')
        a('s_mov_b64 exec, -1')
    def b_attn(s):
        a = s.a; o = s.o
        a('L_BF:')
        s.ts(6)
        for sl in (1, 2, 3):
            a(f'{MF} {vr(s.TT+4*sl-4,4)}, {vr(s.KP+2*sl-2,4)}, {vr(s.QM+4*sl-2,4)}, v[192:195]')
            a(f'{MF} {vr(s.Lr(sl),4)}, {vr(s.KC+2*sl-2,4)}, {vr(s.QM+4*sl-2,4)}, v[192:195]')
        for y in s.merge(136, s.TT, 12): a(y[1])
        s.softmax((1, 2, 3), ('s_cmp_ge_u32 s3, 4\n s_cbranch_scc1 L_Bi\n' + s.inl() + '\n L_Bi:') if o.cinb == 1 else '')
        s.ts(7)
        a('s_cmp_lt_u32 s3, 4\n s_cbranch_scc1 L_Bw')
        if o.hinb: a(s.inl())
        a(f's_waitcnt vmcnt({2*o.hinb})\n s_barrier')
        if o.hp2 is not None: a(f's_setprio {o.hp2}')
        s.vreads()
        if not o.hinb: a(s.inl())
        a('L_Bw:')
        s.ts(8)
        O = 88
        def pv(t, hi): a(f'{MF} {vr(O+8*t+4*hi,4)}, {vr(s.VV+4*t,4)}, {vr(s.PP+4*(t+hi),4)}, 0')
        def ocvt(ts, d):
            for k, t in enumerate(ts):
                for h in range(2): a(f'v_cvt_pk_bf16_f32 v{d+2*k+h}, v{O+8*t+4+2*h}, v{O+8*t+4+2*h+1}')
            for k, t in enumerate(ts):
                for h in range(2): a(f's_mov_b64 exec, s[{40+4*t+2*h}:{41+4*t+2*h}]\n v_cvt_pk_bf16_f32 v{d+2*k+h}, v{O+8*t+2*h}, v{O+8*t+2*h+1}')
            a(f's_mov_b64 exec, -1\n v_min_u32 v{d}, -2, v{d}')
        a('s_waitcnt lgkmcnt(4)')
        for t, hi in ((1, 1), (2, 1), (1, 0), (2, 0)): pv(t, hi)
        a('s_waitcnt lgkmcnt(0)')
        pv(0, 1); pv(3, 0)
        ocvt((1, 2), s.D1)
        a(f'buffer_store_dwordx4 {vr(s.D1,4)}, v248, s[24:27], s74 offen {o.hsf}')
        if o.ore & 1: a(s.reld('s74', 0))
        a('s_cmp_lt_u32 s3, 4\n s_cbranch_scc1 L_Bw2')
        for p in range(9, 18 - o.wlate): a(s.wwr(p) if o.wreg else s.wo_dma(p))
        I = s.IN
        a(f'''s_waitcnt vmcnt({(1 if o.wreg else 10) + (o.ore & 1)})
        s_branch L_Bw3
        L_Bw2:
        {f'v_add_u32 v255, s68, v248; ds_write_b128 v255, {vr(s.D1,4)}; {"s_waitcnt lgkmcnt(0)" if o.bw == 1 else ""}'.replace(';', chr(10)) if o.plds else ''}
        {'s_barrier' if o.bw in (1, 3) else ''}
        s_waitcnt vmcnt({1 + (o.ore & 1)})
        L_Bw3:
        s_movk_i32 s5, {SPIN}
        L_By:
        v_max_u32 v{s.TT}, v{I}, v{I+4}
        v_cmp_eq_u32 vcc, -1, v{s.TT}
        s_cbranch_vccz L_Byd
        {s.inl()}
        s_sub_u32 s5, s5, 1
        s_waitcnt vmcnt(0)
        s_cbranch_scc0 L_By
        L_Byd:''')
        s.ts(9)
        if o.pk:
            for i in range(0, 8, 2): a(f'v_pk_add_f32 {vr(128+i,2)}, {vr(128+i,2)}, {vr(I+i,2)}')
        else:
            for i in range(8): a(f'v_add_f32 v{128+i}, v{128+i}, v{I+i}')
        s.softmax((0, 4), 's_cmp_lt_u32 s3, 4\n s_cbranch_scc1 L_Bw4\n s_waitcnt lgkmcnt(0)\n s_barrier\n L_Bw4:' if o.bw == 3 else '')
        pv(3, 1); pv(0, 0)
        ocvt((0, 3), s.D2)
        a(f'buffer_store_dwordx4 {vr(s.D2,4)}, v248, s[24:27], s74 offen offset:1024 {o.hsf}')
        if o.ore & 2: a(s.reld('s74', 1024))
    D1, D2 = 8, 44
    def b2(s):
        a = s.a; o = s.o
        W = 88; AC = {0: [232, 236, 240, 244], 1: [0, 4, 80, 84]}; D = (s.D1, s.D2); T = 16
        def rd(i):
            return [('r', f'ds_read_b64_tr_b16 {vr(W+16*i+4*c+2*h,2)}, v{250 + (i >= 5)} offset:{(i % 5)*BL + 32*c + 512*h}', R(W+16*i+4*c+2*h, 2)) for c in range(4) for h in range(2)]
        def mm(b, i):
            return [('m', f'{MF} {vr(AC[b][c],4)}, {vr(W+16*i+4*c,4)}, {vr(D[b]+4*i,4)}, {vr(AC[b][c],4) if i else 0}', R(W+16*i+4*c, 4)) for c in range(4)]
        def lds(b, ps): return '\n'.join(f'buffer_load_dwordx4 {vr(D[b]+4*i,4)}, v248, s[24:27], s{s.OS[i]} offen offset:{2048*(1-b)} sc1' for i in ps)
        def batch(b):
            if o.plds: return f's_cmp_ge_u32 s3, 4\n {lds(b, range(1, 9))}'
            return f's_cmp_ge_u32 s3, 4\n s_cbranch_scc{1-b} L_Bb{b}\n {lds(b, [0])}\n L_Bb{b}:\n {lds(b, range(1, 9))}'
        retry = []
        def chk(b, k, n):
            d = [D[b]+4*max(i, 1 if o.plds else 0) for i in range(3*k, 3*k+3)]; lab = f'L_Bk{b}{k}'
            retry.append(f'{lab}r:\n s_sub_u32 s5, s5, 1\n s_cmp_lt_i32 s5, 0\n s_cbranch_scc1 {lab}d\n {lds(b, range(max(3*k, 1 if o.plds else 0), 9))}\n s_waitcnt vmcnt({0 if b == 0 and k >= o.b2at else 6-3*k})\n s_branch {lab}')
            return ('t', f's_waitcnt vmcnt({n})\n {lab}:\n v_max3_u32 v249, v{d[0]}, v{d[1]}, v{d[2]}\n v_cmp_eq_u32 vcc, -1, v249\n s_cbranch_vccnz {lab}r\n {lab}d:')
        def give(b):
            return ('t', f's_cmp_ge_u32 s3, 4\n s_cbranch_scc{1-b} L_Bg{b}\n' + '\n'.join(f'ds_write_b128 v250, {vr(AC[b][c],4)} offset:{1024*c}' for c in range(4)) + f'\n L_Bg{b}:')
        s.ts(10)
        if o.plds:
            assert o.bw in (0, 1, 2)
            a(f's_cmp_lt_u32 s3, 4\n s_cbranch_scc1 L_Bp0\n v_add_u32 v255, s68, v248\n ds_write_b128 v255, {vr(s.D2,4)}')
            if o.bw == 1 and o.plds == 2: a('s_waitcnt lgkmcnt(0)\n s_barrier')
            a('L_Bp0:')
        if o.bw == 2: a('s_waitcnt lgkmcnt(0)\n s_barrier')
        a(batch(0))
        if o.bw == 1 and o.plds != 2: a('s_cbranch_scc0 L_Bb2\n' + '\n'.join(s.wwr(p) for p in range(18 - o.wlate, 18)) + '\n s_waitcnt lgkmcnt(0)\n s_barrier\n L_Bb2:')
        if o.plds and o.bw: a(f'v_add_u32 v255, s65, v248\n s_cbranch_scc1 L_Bp1\n ds_read_b128 {vr(s.D1,4)}, v255\n s_branch L_Bp2\n L_Bp1:\n ds_read_b128 {vr(s.D2,4)}, v255\n L_Bp2:')
        a(f's_movk_i32 s5, {SPIN}\n v_add_u32 v255, s65, v248\n s_cbranch_scc1 L_Bb2\n s_waitcnt lgkmcnt(0)\n s_barrier\n ds_read_b128 {vr(s.D1,4)}, v255\n L_Bb2:' if o.bw == 0 else f's_movk_i32 s5, {SPIN}')
        s.ts(11)
        ops = []
        for i in range(9): ops += rd(i)
        ops.append(('t', ('s_cbranch_scc0 L_Bb3\n s_waitcnt ' + ('lgkmcnt(15)' if o.wreg else 'vmcnt(9)') + f'\n s_barrier\n ds_read_b128 {vr(s.D2,4)}, v255\n L_Bb3:\n' if o.bw == 0 else '') + 'v_add_u32 v250, s71, v248\n v_add_u32 v251, s72, v248'))
        ops.append(('t', s.tst(12)))
        for k in range(4):
            if k == o.b2at: ops.append(('t', batch(1)))
            if k == 3: break
            ops.append(chk(0, k, 6-3*k + (8 if k >= o.b2at else 0)))
            for i in range(3*k, 3*k+3): ops += mm(0, i)
        ops.append(('t', s.tst(13)))
        if o.bw == 0: ops.append(('w0',))
        for k in range(3):
            ops.append(chk(1, k, 6-3*k))
            for i in range(3*k, 3*k+3): ops += mm(1, i)
            if k == 0: ops.append(give(0))
        ops.append(give(1))
        a(resolve(ops, loop=False, cap=8))
        s.ts(14)
        a('s_waitcnt lgkmcnt(0)\n s_barrier')
        for c in range(4): a(f'ds_read_b128 {vr(T+4*c,4)}, v251 offset:{1024*c}')
        a('s_cbranch_scc1 L_Bf0')
        for b in (1, 0):
            for c in range(4):
                a(f's_waitcnt lgkmcnt({3-c})')
                for j in range(4): a(f'v_add_f32 v{T+4*c+j}, v{T+4*c+j}, v{AC[b][c]+j}')
            a('s_branch L_Bf1\n L_Bf0:' if b else 'L_Bf1:')
        for c in range(4):
            for h in range(2): a(f'v_cvt_pk_bf16_f32 v{T+4*c+h}, v{T+4*c+2*h}, v{T+4*c+2*h+1}')
            a(f'ds_write_b64 v252, {vr(T+4*c,2)} offset:{32*c}')
        a(f'''s_waitcnt lgkmcnt(0)
        ds_read_b128 v[8:11], v253
        ds_read_b128 v[12:15], v253 offset:{8*144}
        s_add_u32 s4, s73, {16*2304}
        s_waitcnt lgkmcnt(1)
        buffer_store_dwordx4 v[8:11], v254, s[20:23], s73 offen {s.o.osf}
        s_waitcnt lgkmcnt(0)
        buffer_store_dwordx4 v[12:15], v254, s[20:23], s4 offen {s.o.osf}''')
        s.ts_dump(16)
        a('s_endpgm')
        for t in retry: a(t)
    def a_part(s):
        a = s.a; o = s.o
        a('L_A:')
        if not o.doA: a('s_endpgm'); return
        import genA
        genA.a_part(s)
    def build(s):
        s.entry(); s.b_loader(); s.b_compute(); s.b_attn(); s.b2(); s.a_part()
        s.a('L_end:\n L_last:\n s_endpgm')
        return single_file(haz.fix(s.a.text()), NWG, 512, LDS_BYTES)
def gen(**kw):
    o = Opt()
    for k, v in kw.items(): setattr(o, k, v)
    return G(o).build()
if __name__ == '__main__':
    kw = {}
    for x in sys.argv[2:]:
        k, v = x.split('='); kw[k] = eval(v)
    open(sys.argv[1], 'w').write(gen(**kw))
```

```python
from gen import *
AST = 4*BL
def a_part(s):
    a = s.a; o = s.o
    a(f'''s_sub_u32 s33, s33, 18
    s_mul_i32 s40, s32, 6
    s_add_u32 s40, s40, s33
    s_cmp_ge_u32 s33, 6
    s_cselect_b32 s6, 6, 0
    s_addc_u32 s32, s32, 0
    s_sub_u32 s33, s33, s6
    s_mul_i32 s34, s33, 3
    s_lshr_b32 s34, s34, 1
    s_mul_i32 s34, s34, {o.rota}
    s_cmp_lt_u32 s3, 4
    s_cbranch_scc1 L_Ac''')
    a(f'''s_sub_u32 s39, s3, 4
    v_and_b32 v1, 7, v0
    v_lshlrev_b32 v1, 4, v1
    v_bfe_u32 v2, v0, 3, 1
    v_bfe_u32 v3, v0, 4, 1
    v_lshrrev_b32 v4, 5, v0
    v_lshl_add_u32 v2, v3, 4, v2
    v_lshl_add_u32 v2, v4, 2, v2
    s_and_b32 s6, s39, 1
    s_lshl_b32 s6, s6, 1
    s_lshr_b32 s7, s39, 1
    s_lshl_b32 s7, s7, 3
    s_add_u32 s6, s6, s7
    v_add_u32 v2, s6, v2
    v_mul_u32_u24 v2, {32*1152}, v2
    v_add_u32 v2, v2, v1
    s_mul_i32 s63, s32, 2304
    s_mul_i32 s64, s39, 1056
    s_mov_b32 s66, 0
    s_waitcnt lgkmcnt(0)
    s_mov_b32 s8, s4
    s_mov_b32 s9, s5''')

    def stage(lab, n):
        a('s_lshl_b32 s68, s34, 7\n s_add_u32 s68, s68, s63')
        for b in range(4):
            s.dma('s64', b*BL, 's68', (1024*(b & 1) + (b >> 1))*1152, 'v2', 's[8:11]', o.lda)
        a(f'''s_add_u32 s34, s34, 1
        s_cmp_eq_u32 s34, 9
        s_cselect_b32 s34, 0, s34
        s_add_u32 s64, s64, {AST}
        s_add_u32 s66, s66, 1
        s_cmp_lt_u32 s66, {n}
        s_cbranch_scc1 {lab}''')
    def dmas():
        if o.adel: a('s_barrier')
        a('L_Ald:')
        stage('L_Ald', 9)
    if not o.apre: dmas()
    a(f'''v_lshlrev_b32 v5, 4, v0
    v_mov_b32 v8, -1
    v_mov_b32 v9, -1
    v_mov_b32 v10, -1
    v_mov_b32 v11, -1
    s_mul_i32 s6, s40, 24576
    s_mul_i32 s7, s39, 6144
    s_add_u32 s6, s6, s7
    v_lshrrev_b32 v6, 4, v0
    v_mul_u32_u24 v6, 147456, v6
    v_and_b32 v7, 0xf0, v5
    v_add_u32 v6, v6, v7''')
    a(f's_mul_i32 s50, s40, 768\n s_mul_i32 s7, s39, {8*73728}\n s_add_u32 s50, s50, s7')
    P = []
    for base in (WS_XC, WS_O):
        for h in range(2):
            for k in range(3): P.append(f's_add_u32 s7, s6, {base + 3072*h}\n buffer_store_dwordx4 v[8:11], v5, s[24:27], s7 offen offset:{1024*k} {o.psf}')
    for cl in range(2):
        for k in range(3): P.append(f's_add_u32 s7, s50, {WS_U + 73728*cl}\n buffer_store_dwordx4 v[8:11], v6, s[24:27], s7 offen offset:{256*k} sc1')
    n = 0; b = 0
    if o.nopois: P = {1: [], 2: P[:12], 3: P[12:], 4: P[12:] + P[:12], 5: P[6:]}[o.nopois]
    if o.apre:
        for y in P[:o.apre]: a(y)
        P = P[o.apre:]
        dmas()
    for y in P[:o.apost]: a(y)
    n = o.apost
    while n < len(P):
        a(f's_waitcnt vmcnt({32-4*b+n})\n s_barrier')
        for y in P[n:n+o.aper]: a(y)
        n = min(len(P), n + o.aper); b += 1
    a('buffer_load_dword v12, off, s[28:31], 0 sc1'); n += 1
    while b < o.aend:
        a(f's_waitcnt vmcnt({32-4*b+n})\n s_barrier'); b += 1
    a('s_waitcnt vmcnt(0)\n s_barrier'); b += 1
    assert b <= 9
    a(f'''s_cmp_lg_u32 s3, 4
    s_cbranch_scc1 L_end
    s_movk_i32 s5, {SPIN//8}
    L_Ald3:
    v_cmp_le_i32 vcc, 0, v12
    s_cbranch_vccz L_Ald4
    s_sleep {o.slp}
    buffer_load_dword v12, off, s[28:31], 0 sc1
    s_sub_u32 s5, s5, 1
    s_waitcnt vmcnt(0)
    s_cbranch_scc0 L_Ald3
    L_Ald4:
    s_lshl_b32 s6, s40, 7
    s_add_u32 s6, s6, {WS_F}
    v_mov_b32 v13, v12
    v_mov_b32 v14, v12
    v_mov_b32 v15, v12
    s_mov_b64 exec, 0xff
    buffer_store_dwordx4 v[12:15], v5, s[24:27], s6 offen sc1''')
    for k in range(9 - b): a('s_barrier')
    a('s_endpgm')
    ACC, HID, XB, FF = 8, 72, 144, 208
    a('L_Ac:')
    s.prefetch(250)
    if not o.apf: a('s_cmp_eq_u32 s3, 3\n s_cbranch_scc1 L_end')
    else:
        a(f'''s_cmp_lg_u32 s3, 3
        s_cbranch_scc1 L_Ac0
        s_lshr_b32 s6, s2, 3
        s_sub_u32 s6, s6, 18
        s_mul_i32 s6, s6, {432*128}
        v_lshlrev_b32 v1, 7, v0
        s_waitcnt lgkmcnt(0)''')
        for k in range(o.apf - 1): a('s_barrier')
        a('s_lshl_b32 s7, s40, 13\n buffer_load_dword v2, v1, s[16:19], s7 offen')
        if o.tch:
            a(f'v_lshlrev_b32 v3, 16, v0\n s_lshl_b32 s7, s40, 7')
            for base in (WS_U, WS_O, WS_XC): a(f's_add_u32 s6, s7, {base}\n buffer_load_dword v2, v3, s[24:27], s6 offen')
            a('buffer_load_dword v2, v3, s[20:23], s7 offen')
        for k in range(o.apf2): a('s_barrier')
        for k in range(7 if o.apf2 else 0):
            a('buffer_load_dword v2, v1, s[16:19], s6 offen\n s_add_u32 s6, s6, 8192')
        a('s_endpgm\n L_Ac0:')
    a(f'''v_and_b32 v240, 15, v0
    v_lshrrev_b32 v241, 4, v0
    s_mul_i32 s41, s33, 3
    s_add_u32 s41, s41, s3
    s_lshl_b32 s6, s41, 4
    v_add_u32 v242, s6, v240
    v_mul_u32_u24 v243, 911, v242
    v_lshrrev_b32 v243, 16, v243
    v_mul_u32_u24 v244, 287, v243
    v_lshlrev_b32 v245, 2, v242
    v_sub_u32 v244, v245, v244
    v_cvt_f32_u32 v245, v244
    v_mul_f32 v245, {fb(1/576)}, v245
    v_and_b32 v246, 1, v244
    v_mul_u32_u24 v246, 0x8000, v246
    v_lshl_or_b32 v246, v246, 16, v246
    s_lshl_b32 s6, s34, 6
    v_lshl_add_u32 v247, v241, 3, s6
    v_cvt_f32_u32 v247, v247''')
    T = XB
    for i in range(9):
        if o.adel == i + 1: a('s_barrier')
        a(f'v_mul_f32 v{T}, v247, v245\n v_add_f32 v247, {fb(32.0)}, v247\n v_fract_f32 v{T}, v{T}')
        for j in range(1, 8): a(f'v_add_f32 v{T+j}, v{T+j-1}, v245')
        for j in range(8): a(f'v_cos_f32 v{T+8+j}, v{T+j}')
        for j in range(8): a(f'v_sin_f32 v{T+j}, -v{T+j}')
        for h in range(4): a(f'v_cvt_pk_bf16_f32 v{HID+8*i+h}, v{T+8+2*h}, v{T+9+2*h}')
        for h in range(4): a(f'v_cvt_pk_bf16_f32 v{HID+8*i+4+h}, v{T+2*h}, v{T+1+2*h}')
    a('s_cmp_lg_u32 s41, 0\n s_cbranch_scc1 L_Ac1\n s_mov_b32 exec_lo, 0x10001\n s_mov_b32 exec_hi, 0x10001\n s_mov_b32 s6, 0xbf803f80')
    for i in range(9):
        for h in range(4): a(f'v_mov_b32 v{HID+8*i+4+h}, s6')
    a('s_mov_b64 exec, -1\n L_Ac1:')
    a(f'''v_lshrrev_b32 v1, 1, v240
    v_cvt_f32_u32 v1, v1
    v_mul_f32 v1, {fb(1/64)}, v1
    v_and_b32 v2, 1, v240
    v_cvt_f32_u32 v2, v2
    v_mul_f32 v2, {fb(0.25)}, v2
    v_lshlrev_b32 v3, 3, v241
    v_cvt_f32_u32 v3, v3
    v_add_f32 v4, {fb(32.0)}, v3
    v_cmp_eq_u32 vcc, 1, v240
    v_cndmask_b32 v5, v1, 0.5, vcc
    v_cndmask_b32 v6, v2, 0, vcc''')
    for m in range(4):
        w, ph = ('v5', 'v6') if m == 0 else ('v1', 'v2')
        if m: a(f'v_add_f32 v1, {fb(0.125)}, v1')
        for q in range(2):
            a(f'v_fma_f32 v{T}, v{3+q}, {w}, {ph}')
            for j in range(1, 8): a(f'v_add_f32 v{T+j}, v{T+j-1}, {w}')
            for j in range(8): a(f'v_cos_f32 v{T+j}, v{T+j}')
            for h in range(4): a(f'v_cvt_pk_bf16_f32 v{FF+8*m+4*q+h}, v{T+2*h}, v{T+1+2*h}')
    a(f'''v_bfe_u32 v6, v0, 1, 2
    v_and_b32 v7, 1, v0
    v_bfe_u32 v4, v0, 3, 1
    v_lshl_add_u32 v7, v4, 1, v7
    v_and_b32 v4, 0x30, v0
    v_lshl_add_u32 v7, v7, 7, v4
    v_mul_u32_u24 v2, 1056, v6
    v_add_u32 v2, v2, v7
    v_add_u32 v3, {3*AST}, v2
    v_add_u32 v4, {6*AST}, v2
    s_waitcnt lgkmcnt(0)''')
    s.ts(1)
    a('s_barrier')
    s.ts(2)
    def rdx(ks):
        st = ks >> 1
        return [('r', f'ds_read_b128 {vr(XB+32*(ks&1)+4*t,4)}, v{2+st//3} offset:{(st%3)*AST+(t>>1)*BL+(t&1)*512+(ks&1)*64}', R(XB+32*(ks&1)+4*t, 4)) for t in range(8)]
    ops = rdx(0)
    for ks in range(18):
        pend = []
        if ks < 17:
            if ks & 1: ops.append(('t', 's_barrier'))
            pend += rdx(ks+1)
        if 1 <= ks <= 9: pend += [('t', f'v_xor_b32 v{HID+8*(ks-1)+h}, v246, v{HID+8*(ks-1)+h}') for h in range(8)]
        for t in range(8):
            for ab in range(2):
                x = XB+32*(ks&1)+4*t; acc = ACC + 32*ab + 4*t
                ops.append(('m', f'{MF} {vr(acc,4)}, {vr(x,4)}, {vr(HID+8*(ks%9)+4*ab,4)}, {vr(acc,4) if ks else 0}', R(x, 4)))
                if pend: ops.append(pend.pop(0))
        ops += pend
    a(resolve(ops, loop=False, cap=4))
    s.ts(3)
    Z, U = XB, HID
    a(f'''s_mul_i32 s6, s32, 4608
    v_mul_u32_u24 v5, 147456, v241
    v_lshl_add_u32 v5, v242, 4, v5
    v_add_u32 v5, s6, v5''')
    for k in range(8):
        for h in range(4): a(f'v_cvt_pk_bf16_f32 v{Z+4*k+h}, v{ACC+8*k+2*h}, v{ACC+8*k+2*h+1}')
    for m in range(4):
        for q in range(2):
            for ab in range(2):
                for s2 in range(2):
                    u = U + 16*m + 8*ab + 4*s2
                    a(f'{MF} {vr(u,4)}, {vr(FF+8*m+4*q,4)}, {vr(Z+16*ab+8*s2+4*q,4)}, {vr(u,4) if q else 0}')
        for mm in ([m-1] if m else []) + ([3] if m == 3 else []):
            for cl in range(2):
                g = ACC + 8*mm + 4*cl
                for ab in range(2):
                    for ri in range(2):
                        u = U + 16*mm + 8*ab + 2*cl + ri
                        a(f'v_cvt_pk_bf16_f32 v{g+2*ab+ri}, v{u}, v{u+4}')
                a(f'v_min_u32 v{g}, -2, v{g}\n s_mov_b32 s6, {WS_U + (8*mm+cl)*73728}\n buffer_store_dwordx4 {vr(g,4)}, v5, s[24:27], s6 offen sc1')
    fl = 'buffer_load_dword v249, off, s[28:31], 0 sc1\n buffer_load_dword v250, v248, s[24:27], s53 offen sc1\n buffer_load_dword v251, v248, s[24:27], s54 offen sc1'
    a(f'v_lshlrev_b32 v248, 7, v0\n s_mov_b32 s53, {WS_F}\n s_mov_b32 s54, {WS_F+4096}\n' + fl)
    s.ts(4)
    CF, UD, AC2, AD = 72, 136, 8, 216
    CS = 200
    a(f'''s_mul_i32 s42, s40, 43
    s_lshr_b32 s42, s42, 7
    s_mul_i32 s6, s42, 3
    s_sub_u32 s43, s40, s6
    s_mul_i32 s43, s43, 3
    s_add_u32 s43, s43, s3
    v_lshlrev_b32 v3, 3, v241
    v_cvt_f32_u32 v3, v3
    s_mov_b32 s44, 0x80008000''')
    def trig(cl):
        a(f'v_lshl_add_u32 v1, v240, 6, {cl}\n v_cvt_f32_u32 v1, v1\n v_mul_f32 v1, {fb(1/2048)}, v1')
        for tt in range(2):
            if tt: a('v_add_f32 v1, 0.5, v1')
            a(f'v_mul_f32 v{UD}, v3, v1')
            for j in range(1, 8): a(f'v_add_f32 v{UD+j}, v{UD+j-1}, v1')
            for j in range(8): a(f'v_cos_f32 v{UD+8+j}, v{UD+j}')
            for j in range(8): a(f'v_sin_f32 v{UD+j}, v{UD+j}')
            for q in range(4): a(f'v_cvt_pk_bf16_f32 v{CS+8*tt+q}, v{UD+8+2*q}, v{UD+9+2*q}')
            for q in range(4): a(f'v_cvt_pk_bf16_f32 v{CS+8*tt+4+q}, v{UD+2*q}, v{UD+1+2*q}')
    trig('s42')
    for tt in range(2):
        for q in range(4):
            c = CS+8*tt+q; sn = c+4; M = CF + 16*tt + 4*q; N = M + 32
            a(f'''v_mov_b32 v{M}, v{c}
            v_mov_b32 v{M+1}, v{sn}
            v_mov_b32 v{M+2}, v{sn}
            v_xor_b32 v{M+3}, s44, v{c}
            v_mov_b32 v{N}, v{c}
            v_mov_b32 v{N+1}, v{sn}
            v_xor_b32 v{N+2}, s44, v{sn}
            v_mov_b32 v{N+3}, v{c}''')
    a('s_mov_b32 s45, s42\n s_cmp_lg_u32 s42, 0\n s_cbranch_scc1 L_Ac2\n s_mov_b32 s45, 32')
    trig('32')
    for tt in range(2):
        for q in range(4):
            c = CS+8*tt+q; sn = c+4; M = CF + 16*tt + 4*q; N = M + 32
            a(f'''v_mov_b32 v{M+1}, 0
            v_mov_b32 v{M+3}, 0
            v_mov_b32 v{N}, 0
            v_mov_b32 v{N+1}, v{c}
            v_mov_b32 v{N+2}, 0
            v_xor_b32 v{N+3}, s44, v{sn}''')
    a('L_Ac2:')
    a(f'''s_lshl_b32 s6, s43, 6
    v_lshl_add_u32 v1, v240, 2, s6
    v_mul_u32_u24 v2, 18432, v241
    s_movk_i32 s7, 288
    v_cmp_gt_u32 s[46:47], s7, v1
    v_cmp_eq_u32 s[48:49], s7, v1
    v_cmp_eq_u32 s[50:51], 0, v1''')
    for j in range(4):
        a(f'''v_add_u32 v3, {j}, v1
        v_sub_u32 v4, 576, v3
        v_cndmask_b32 v3, v4, v3, s[46:47]''')
        if j == 0: a('v_cndmask_b32 v3, v3, 0, s[48:49]')
        a(f'''v_and_b32 v4, 3, v3
        v_lshrrev_b32 v3, 2, v3
        v_mul_u32_u24 v4, 72, v4
        v_add_u32 v3, v3, v4
        v_lshl_add_u32 v{232+j}, v3, 4, v2''')
    a(f'''s_or_b64 s[50:51], s[50:51], s[48:49]
    v_lshlrev_b32 v1, 1, v1
    v_lshlrev_b32 v2, 8, v241
    v_add_u32 v3, s42, v2
    v_sub_u32 v4, 2048, v3
    v_cndmask_b32 v3, v4, v3, s[46:47]
    v_add_u32 v5, s45, v2
    v_sub_u32 v4, 2048, v5
    v_cndmask_b32 v5, v5, v4, s[46:47]
    v_mov_b32 v6, {64*2304}
    v_mov_b32 v7, {-64*2304 & 0xffffffff}
    v_cndmask_b32 v6, v7, v6, s[46:47]
    v_lshlrev_b32 v7, 4, v6
    s_movk_i32 s6, 2304
    v_mad_u32_u24 v{AD}, v3, s6, v1
    v_mad_u32_u24 v{AD+8}, v5, s6, v1''')
    for i in range(1, 4): a(f'v_add_u32 v{AD+i}, v{AD+i-1}, v6\n v_sub_u32 v{AD+8+i}, v{AD+8+i-1}, v6')
    for i in range(4): a(f'v_add_u32 v{AD+4+i}, v{AD+i}, v7\n v_sub_u32 v{AD+12+i}, v{AD+8+i}, v7')
    a(f'''v_and_b32 v3, 2047, v3
    v_mad_u32_u24 v{AD}, v3, s6, v1
    s_mul_i32 s52, s42, 73728
    s_movk_i32 s5, {SPIN//8}''')
    for q in range(4): a(f's_add_u32 s{56+q}, s52, {WS_U + q*4608}')
    s.ts(5)
    a(f'''s_waitcnt vmcnt(0)
    L_An:
    v_cmp_ne_u32 vcc, v250, v249
    v_cmp_ne_u32 s[6:7], v251, v249
    s_or_b64 vcc, vcc, s[6:7]
    v_cmp_le_i32 s[6:7], 0, v249
    s_or_b64 vcc, vcc, s[6:7]
    s_cbranch_scc0 L_And
    s_sleep {o.slp}
    {fl}
    s_sub_u32 s5, s5, 1
    s_waitcnt vmcnt(0)
    s_cbranch_scc0 L_An
    L_And:
    s_movk_i32 s5, {SPIN}''')
    s.ts(6)
    order = [1, 2, 3, 0]
    ld = lambda q: '\n'.join(f'buffer_load_dwordx4 {vr(UD+16*q+4*j,4)}, v{232+j}, s[24:27], s{56+q} offen sc1' for j in range(4))
    for q in range(4): a(ld(q))
    retry = []
    for q in range(4):
        u = UD + 16*q
        a(f's_waitcnt vmcnt({12-4*q})\n L_Ak{q}:\n v_max3_u32 v1, v{u}, v{u+4}, v{u+8}\n v_max_u32 v1, v1, v{u+12}\n v_cmp_eq_u32 vcc, -1, v1\n s_cbranch_vccnz L_Ak{q}r\n L_Ak{q}d:')
        retry.append(f'L_Ak{q}r:\n s_sub_u32 s5, s5, 1\n s_cmp_lt_i32 s5, 0\n s_cbranch_scc1 L_Ak{q}d\n' + '\n'.join(ld(k) for k in range(q, 4)) + f'\n s_waitcnt vmcnt({12-4*q})\n s_branch L_Ak{q}')
        if q == 0: s.ts(9)
        u = UD + 16*q
        a(f'''v_cndmask_b32 v{u}, v{u}, v{u+2}, s[48:49]
        v_cndmask_b32 v{u+1}, v{u+1}, v{u+3}, s[48:49]
        v_cndmask_b32 v{u+2}, v{u+2}, 0, s[50:51]
        v_cndmask_b32 v{u+3}, v{u+3}, 0, s[50:51]''')
        for st in range(4):
            for j in order:
                acc = AC2 + 16*st + 4*j
                a(f'{MF} {vr(acc,4)}, {vr(CF+16*st+4*q,4)}, {vr(u+4*j,4)}, {vr(acc,4) if q else 0}')
    s.ts(7)
    for st in range(4):
        for i in range(4):
            b = AC2 + 16*st + i; d = UD + 8*st + 2*i
            a(f'v_cvt_pk_bf16_f32 v{d}, v{b}, v{b+4}\n v_cvt_pk_bf16_f32 v{d+1}, v{b+8}, v{b+12}')
            a(f'buffer_store_dwordx2 {vr(d,2)}, v{AD+4*st+i}, s[20:23], 0 offen {o.osf}')
    s.ts(8)
    s.ts_dump(16, 'a')
    a('s_endpgm')
    for r in retry: a(r)
```

```python
import sys, struct, math
sys.path.insert(0, 'exp')
from asmlib import *
import haz
def fb(x): return hex(struct.unpack('<I', struct.pack('<f', x))[0])
import os
WSB = int(os.environ.get('WSB', '0'), 0)
WS_U, WS_O, WS_XC, WS_TS = WSB, WSB+0x400000, WSB+0x800000, 0xD00000
WS_F = WSB + 0xC00000
SL = 44416; L_X = 0; L_WV = 16896; L_XH = 25344; L_WQK = 27520; BL = 4224
QS = L_WQK; KS = SL + L_WQK; VS = 2*SL + L_WQK
HS = 3*SL; TR = HS + 4096; LDS_BYTES = TR + 4*BL
NWG = 240
SPIN = 30000
class Opt:
    rots = 0; aph = 0; apx = 0; apw0 = 1728; meas = None; nocnt = 0; tch = 0; hb0 = (0, 0); b0r = 8; b1s = 0; b1r = 4; hoist = 2; gb = 24; fin = 0; apre = 0; apost = 0; swap = 0; ldx = ''; ldw = ''; lda = ''; wlate = 0; xsf = "sc1"; hinb = 0; plds = 2; wsp = (3, 5, 7, 9); ore = 0; wreg = 1; bw = 1; hp2 = None; b2at = 2; aend = 7; slp = 8; adel = 0; nopois = 0; apf2 = 0; apf = 1; rotc = 1; rotg = 1; bmap = 1; tsel = None
    prof = False; clk = 's_memrealtime'; doA = True; doB = True; pre = True; hold = 2; osf = 'sc0 sc1'
    x_early = 0; x_nold = False; x_nomm = False; x_nord = False; rota = 1
    tsel = None; pk = 0; m64 = 1; lprio = 1; cinb = 1; wpf = 0; hsf = 'sc1'; psf = 'sc1'; clean = 0; cutA = 1; cpr = 1; xint = 5; nf = 3; lead = 7; bdel = 3; hpr = 1; apos = 9; aper = 3
MF = 'v_mfma_f32_16x16x32_bf16'
MF16 = 'v_mfma_f32_16x16x16_bf16'

def resolve(ops, loop=True, cap=5, age=None):
    out = []
    seq = 0; last = {}; done = -1; nm = 0; at = []
    for it in range(2 if loop else 1):
        out = []
        for o in ops:
            if o[0] == 'r':
                for r in o[2]: last[r] = seq
                seq += 1; out.append(o[1]); at.append(nm)
            elif o[0] == 'm':
                nd = max([last.get(r, -1) for r in o[2]])
                if nd > done:
                    n = min(seq - 1 - nd, cap)
                    if age: n = min(n, sum(1 for x in at if x > nm - age))
                    out.append(f's_waitcnt lgkmcnt({n})'); done = seq - 1 - n
                out.append(o[1])
                if 'mfma' in o[1]: nm += 1
            elif o[0] == 'w0':
                out.append('s_waitcnt lgkmcnt(0)'); done = seq - 1
            else: out.append(o[1])
    return '\n'.join(out)
def R(b, n): return list(range(b, b+n))

class G:
    def __init__(s, o):
        s.o = o; s.a = Asm(); s.nts = 0
    def ts(s, i):
        if s.o.prof: s.a(s.tst(i))
    def tsl(s, lvl):
        if s.o.prof and s.o.x_early == lvl:
            s.a(f'{s.o.clk} s[98:99]\n s_add_u32 m0, s66, 3\n s_waitcnt lgkmcnt(0)\n s_movreld_b32 s80, s98')
    def tse(s, i, cond=None):
        if s.o.prof and s.o.x_early == 1:
            s.nts += 1
            if cond is not None: s.a(f's_cmp_lg_u32 s66, {cond}\n s_cbranch_scc1 L_tse{s.nts}')
            s.a(f'{s.o.clk} s[98:99]\n s_waitcnt lgkmcnt(0)\n s_mov_b32 s{80+i}, s98\n L_tse{s.nts}:')
    def tst(s, i):
        if s.o.prof and s.o.tsel:
            if i not in s.o.tsel: return ''
            k = 80 + 2*s.o.tsel.index(i)
            return f'{s.o.clk} s[{k}:{k+1}]'
        if i > 15: return ''
        if s.o.x_early and (9 if s.o.x_early == 1 else 5) <= i <= 14: return ''
        return f'{s.o.clk} s[98:99]\n s_waitcnt lgkmcnt(0)\n s_mov_b32 s{80+i}, s98' if s.o.prof else ''
    def ts_dump(s, n, part='b'):
        if not s.o.prof: return
        a = s.a
        a('s_waitcnt vmcnt(0)')
        s.ts(n-1)
        if s.o.meas:
            S, who = s.o.meas
            if (who == 'a') != (part == 'a'): return
            s.nts += 1; L = f'L_ms{s.nts}'
            if who == 'c': a('s_cmp_ge_u32 s3, 4\n s_cbranch_scc1 L_end')
            if who == 'h': a('s_cmp_lt_u32 s3, 4\n s_cbranch_scc1 L_end')
            a(f'''s_movk_i32 s36, 20000
            {L}:
            s_memrealtime s[6:7]
            s_waitcnt lgkmcnt(0)
            s_sub_u32 s6, s6, s{80 + 2*s.o.tsel.index(S)}
            s_cmp_ge_u32 s6, 2000
            s_cbranch_scc1 L_end
            s_sub_u32 s36, s36, 1
            s_cbranch_scc0 {L}''')
            return
        a(f's_lshl_b32 s4, s2, 3\n s_add_u32 s4, s4, s3\n s_lshl_b32 s4, s4, 6\n s_add_u32 s4, s4, {WS_TS}\n s_mov_b64 exec, 1\n v_mov_b32 v1, 0')
        a('s_waitcnt lgkmcnt(0)')
        for i in range(n):
            k = 80 + i if not s.o.tsel else (80 + 2*s.o.tsel.index(i) if i in s.o.tsel else 80)
            a(f'v_mov_b32 v2, s{k}\n buffer_store_dword v2, v1, s[24:27], s4 offen offset:{4*i}')
    def dma(s, ldsreg, ldsoff, kreg, koff, voff, srd, fl=''):
        s.a(f's_add_u32 m0, {ldsreg}, {ldsoff}\n s_add_u32 s7, {kreg}, {koff}')
        if not s.o.x_nold: s.a(f'buffer_load_dwordx4 {voff}, {srd}, s7 offen {fl} lds')
    def srds(s):
        s.a('''s_mov_b32 s14, 1990656
        s_mov_b32 s15, s11
        s_mov_b32 s18, 663552
        s_mov_b32 s19, s11
        s_mov_b32 s22, 4718592
        s_mov_b32 s23, s11
        s_mov_b32 s26, 0x10000000
        s_mov_b32 s27, s11
        s_movk_i32 s30, 256
        s_mov_b32 s31, s11''')
    def prefetch(s, r=232):
        if not s.o.pre: return
        s.nts += 1; L = f'L_pc{s.nts}'
        s.a(f'''s_getpc_b64 s[36:37]
        {L}:
        s_sub_u32 s36, s36, {L}-L_top
        s_subb_u32 s37, s37, 0
        s_lshl_b32 s38, s3, 13
        v_lshl_add_u32 v{r}, v0, 7, s38
        v_min_u32 v{r}, L_last-L_top, v{r}
        global_load_dword v{r+1}, v{r}, s[36:37]''')
    def entry(s):
        a = s.a
        a(f'''L_top:
        s_cmpk_ge_u32 s2, {NWG}
        s_cbranch_scc1 L_end
        s_load_dwordx2 s[8:9], s[0:1], 40
        s_load_dwordx2 s[12:13], s[0:1], 48
        s_load_dwordx2 s[4:5], s[0:1], 0
        s_load_dwordx2 s[16:17], s[0:1], 56
        s_load_dwordx2 s[20:21], s[0:1], 64
        s_load_dwordx2 s[28:29], s[0:1], 72
        s_load_dwordx2 s[24:25], s[0:1], 80''')
        if s.o.prof: a(f'{s.o.clk} s[80:81]')
        a(f'''v_lshrrev_b32 v1, 6, v0
        v_and_b32 v0, 63, v0
        v_readfirstlane_b32 s3, v1
        s_mov_b32 s10, 2359296
        s_mov_b32 s11, 0x20000''')
        s.srds()
        a(f'''s_and_b32 s32, s2, 7
        s_lshl_b32 s32, s32, 1
        s_lshr_b32 s33, s2, 3
        s_cmp_ge_u32 s33, 18
        s_cbranch_scc1 L_A
        s_cmp_ge_u32 s33, 9
        s_cselect_b32 s6, 9, 0
        s_addc_u32 s32, s32, 0
        s_sub_u32 s33, s33, s6''')
        if s.o.swap: a('s_xor_b32 s3, s3, 4')
        if s.o.bmap > 1:
            m = s.o.bmap; lg = m.bit_length() - 1
            a(f'''s_and_b32 s6, s2, {m-1}
            s_mul_i32 s6, s6, 18
            s_lshr_b32 s7, s2, 3
            s_add_u32 s6, s6, s7
            s_lshr_b32 s33, s6, {lg+1}
            s_and_b32 s6, s6, {2*m-1}
            s_and_b32 s7, s2, {7 & ~(m-1)}
            s_lshl_b32 s7, s7, 1
            s_add_u32 s32, s7, s6''')
        a(f'''s_cmp_lt_u32 s3, 4
        s_cbranch_scc1 L_Bc''')
        if not s.o.doB: a('s_endpgm')
    OS = [56, 57, 58, 59, 60, 61, 62, 63, 75]
    NCH = 5
    def b_loader(s):
        a = s.a; o = s.o
        if o.lprio: a('s_setprio 3')
        a(f'''s_sub_u32 s39, s3, 4
        v_and_b32 v1, 7, v0
        v_lshlrev_b32 v1, 4, v1
        v_bfe_u32 v2, v0, 3, 1
        v_bfe_u32 v3, v0, 4, 1
        v_lshrrev_b32 v4, 5, v0
        s_lshl_b32 s6, s39, 1
        v_lshl_add_u32 v5, v3, 3, v2
        v_add_u32 v5, s6, v5
        v_lshl_add_u32 v83, v4, 4, v5
        v_mul_u32_u24 v80, 2304, v83
        v_add_u32 v80, v80, v1
        v_lshl_add_u32 v6, v3, 2, v2
        v_lshl_add_u32 v6, v4, 4, v6
        s_and_b32 s34, s39, 1
        s_lshl_b32 s34, s34, 1
        s_lshr_b32 s35, s39, 1
        s_lshl_b32 s35, s35, 3
        s_add_u32 s34, s34, s35
        v_add_u32 v6, s34, v6
        v_mul_u32_u24 v82, 3456, v6
        s_lshl_b32 s35, s33, 7
        v_add3_u32 v82, v82, v1, s35
        v_add_u32 v6, s6, v2
        v_lshl_add_u32 v6, v6, 1, v3
        s_lshl_b32 s34, s32, 7
        s_sub_u32 s34, s34, 16
        s_max_i32 s34, s34, 0
        v_add_u32 v6, s34, v6
        v_mul_u32_u24 v81, 1152, v6
        v_add_u32 v81, v81, v1
        s_mul_i32 s63, s32, {128*1152}
        {f's_lshr_b32 s34, s32, {o.rots}' if o.rots else ''}
        s_mul_i32 s34, {'s34' if o.rots else 's32'}, {o.rotc}
        s_mul_i32 s6, s33, {o.rotg}
        s_add_u32 s34, s34, s6
        s_mul_i32 s6, s34, 57
        s_lshr_b32 s6, s6, 9
        s_mul_i32 s6, s6, 9
        s_sub_u32 s34, s34, s6
        s_lshl_b32 s67, s34, 7
        s_add_u32 s68, s63, s67
        s_mul_i32 s69, s67, 1728
        s_mul_i32 s64, s39, 1056
        s_mul_i32 s65, s39, 544
        s_mov_b32 s66, 0
        s_waitcnt lgkmcnt(0)''')
        s.tse(9)
        a('L_ld:')
        for cw in range(4):
            s.dma('s64', L_X + cw*BL, 's68', (64*(cw >> 1) + (cw & 1))*1152, 'v80', 's[8:11]', o.ldx)
        a(f's_add_u32 m0, s65, {L_XH}\n s_mov_b32 exec_hi, 0')
        a(f'buffer_load_dwordx4 v81, s[8:11], s67 offen lds\n s_mov_b32 exec_hi, -1')
        for ks in range(2):
            for m in range(2):
                s.dma('s64', L_WQK + (2*ks+m)*BL, 's69', ks*32*3456 + m*1152, 'v82', 's[12:15]', o.ldw)
            s.dma('s64', L_WV + ks*BL, 's69', ks*32*3456 + 2304, 'v82', 's[12:15]', o.ldw)
        s.tse(11, 0); s.tse(12, 1)
        a(f'''s_add_u32 s67, s67, 128
        s_cmp_eq_u32 s67, 1152
        s_cselect_b32 s67, 0, s67
        s_add_u32 s68, s63, s67
        s_mul_i32 s69, s67, 1728
        s_add_u32 s64, s64, {SL}
        s_add_u32 s65, s65, {SL}
        s_cmp_ge_u32 s64, {3*SL}
        s_cselect_b32 s6, {3*SL}, 0
        s_sub_u32 s64, s64, s6
        s_sub_u32 s65, s65, s6
        s_add_u32 s66, s66, 1
        s_cmp_lt_u32 s66, 2
        s_cbranch_scc1 L_ld''')
        s.tsl(4)
        a('s_waitcnt vmcnt(11)')
        s.tsl(3)
        a('s_barrier')
        s.tsl(2)
        a('s_cmp_lt_u32 s66, 9\n s_cbranch_scc1 L_ld')
        a(f'''v_lshl_add_u32 v84, v4, 5, v83
        v_add_u32 v83, 16, v83
        v_mul_u32_u24 v83, 1152, v83
        v_mul_u32_u24 v84, 1152, v84
        v_add3_u32 v83, v83, v1, s35
        v_add3_u32 v84, v84, v1, s35
        s_add_u32 s69, s33, 4
        s_cmp_ge_u32 s69, 9
        s_cselect_b32 s6, 9, 0
        s_sub_u32 s69, s69, s6
        s_mul_i32 s69, s69, {64*1152}''')
        for p in range(5, 9): a(s.wo_dma(p))
        a(f's_setprio {o.cpr}\n s_branch L_const0\n L_cretA:')
        a('s_waitcnt vmcnt(4)\n s_add_u32 s66, s66, 1')
        s.tsl(3)
        a('s_barrier')
        s.tsl(2)
        if o.wpf:
            a(f's_mul_i32 s6, s39, 144\n v_add_u32 v8, s6, v0\n v_mul_u32_u24 v8, 1152, v8')
            for k in range(3): a(f's_add_u32 s6, s35, {48*1152*k}\n buffer_load_dword v9, v8, s[16:19], s6 offen')
        fl = 's_mov_b64 exec, 0x3f\n buffer_load_dword v249, off, s[28:31], 0 sc1\n buffer_load_dword v87, v200, s[24:27], s67 offen sc1'
        a(f'''s_mul_i32 s67, s32, 768
        s_add_u32 s67, s67, {WS_F}
        s_cmp_lg_u32 s3, 4
        s_cbranch_scc1 L_Bn0
        {fl}
        s_mov_b64 exec, -1
        L_Bn0:''')
        if o.wreg: s.wld(range(0, o.wsp[0]))
        a(f'''s_branch L_const1
        L_cretB:
        s_movk_i32 s5, {SPIN//8}
        s_waitcnt vmcnt({9 if o.wreg else 0})
        s_cmp_lg_u32 s3, 4
        s_cbranch_scc1 L_Bnd
        s_mov_b64 exec, 0x3f
        L_Bn:
        v_cmp_ne_u32 vcc, v87, v249
        v_cmp_le_i32 s[6:7], 0, v249
        s_or_b64 vcc, vcc, s[6:7]
        s_cbranch_scc0 L_Bnd
        s_sleep {o.slp}
        {fl}
        s_sub_u32 s5, s5, 1
        s_waitcnt vmcnt(0)
        s_cbranch_scc0 L_Bn
        L_Bnd:
        s_mov_b64 exec, -1''')
        a(f's_setprio {o.hpr}')
        s.ts(3)
        a('s_barrier')
        s.ts(4)
        ops = []; d = list(range(5))
        for k, y in enumerate(s.x_ops()):
            ops.append(y)
            if k >= 5 and (k-5) % o.xint == 0 and d: ops.append(('t', s.wo_dma(d.pop(0))))
        ops += [('t', s.wo_dma(p)) for p in d]
        a(resolve(ops, loop=False, cap=15))
        s.ts(5)
        a('s_mul_i32 s69, s33, %d\n s_branch L_BF' % (64*1152))
    def wwr(s, p): return f'ds_write_b128 v85, {vr(12+4*p if p < 17 else 4,4)} offset:{s.wo_off(p)}'
    def wld(s, r):
        for i in r:
            s.a(f's_add_u32 s34, s34, {64*1152}\n s_cmp_eq_u32 s34, s18\n s_cselect_b32 s34, 0, s34' if i else f's_mul_i32 s34, s33, {64*1152}\n v_add_u32 v85, s64, v248')
            s.a(f'buffer_load_dwordx4 {vr(48+4*i if i < 8 else 4,4)}, v84, s[16:19], s34 offen')
    def wo_dma(s, pos):
        step = f's_add_u32 s69, s69, {64*1152}\n s_cmp_eq_u32 s69, s18\n s_cselect_b32 s69, 0, s69\n' if pos != 9 else ''
        return f's_add_u32 m0, s64, {s.wo_off(pos)}\n {step} buffer_load_dwordx4 v{84 if pos >= 9 else 83}, s[16:19], s69 offen lds'
    def wo_off(s, pos):
        i = pos % 9
        return ((2*SL, TR) if pos < 9 else (0, SL))[i >= 5] + (i % 5)*BL
    def b_const(s):
        a = s.a
        def cut(k):
            if k == s.o.cutA: a('s_cmp_ge_u32 s3, 4\n s_cbranch_scc1 L_cretA\n L_const1:')
            j = k - s.o.cutA; w = s.o.wsp
            if s.o.wreg and 1 <= j < len(w) and w[j] > w[j-1]:
                a(f's_cmp_lt_u32 s3, 4\n s_cbranch_scc1 L_cw{j}'); s.wld(range(w[j-1], w[j])); a(f'L_cw{j}:')
            if k == s.NCH: a('s_cmp_ge_u32 s3, 4\n s_cbranch_scc1 L_cretB')
        a('L_const0:')
        a(f'''v_and_b32 v216, 15, v0
        v_lshrrev_b32 v217, 4, v0
        v_lshlrev_b32 v218, 2, v217
        v_and_b32 v219, 7, v0
        v_sub_u32 v219, v218, v219
        v_lshlrev_b32 v248, 4, v0
        v_lshlrev_b32 v255, 3, v0
        v_lshlrev_b32 v200, 7, v0
        s_mov_b32 s100, 0x00ff00ff
        s_mov_b32 s101, s100
        s_lshr_b32 s6, s3, 1
        s_or_b32 s6, s6, s32
        s_cmp_eq_u32 s6, 0
        s_cselect_b32 exec_lo, s100, 0
        s_mov_b32 exec_hi, 0
        v_mov_b32 v219, 64
        s_mov_b64 exec, -1
        v_mov_b32 v220, {fb(-1e30)}''')
        for i in range(4):
            a(f'''v_add_u32 v221, {i-1}, v219
            v_cmp_le_u32 vcc, 8, v221
            v_cndmask_b32 v{192+i}, 0, v220, vcc''')
        cut(1)
        a(f'''s_lshl_b32 s6, s33, 6
        s_add_u32 s7, s6, 17
        s_mul_i32 s7, s7, 3641
        s_lshr_b32 s7, s7, 16
        s_mul_i32 s7, s7, 18
        s_sub_u32 s6, s7, s6
        s_mov_b32 s7, s6''')
        for t in range(4):
            if t: a(f's_cmp_eq_u32 s6, {18-2*t}\n s_cselect_b32 s4, -16, 2\n s_add_u32 s7, s7, s4')
            a(f's_sub_u32 s4, s7, 2\n v_cmp_gt_i32 s[{40+4*t}:{41+4*t}], s7, v218\n v_cmp_gt_i32 s[{42+4*t}:{43+4*t}], s4, v218')
        cut(2)
        a(f'''s_and_b32 s70, s3, 3
        s_lshr_b32 s71, s3, 2
        s_lshl_b32 s72, s70, 1
        s_add_u32 s72, s72, s71
        s_lshl_b32 s6, s72, 11
        s_add_u32 s7, s6, {QS}
        v_add_u32 v202, s7, v255
        v_add_u32 v201, {KS-QS}, v202
        v_add_u32 v203, {VS-QS}, v202
        s_cmp_ge_u32 s3, 4
        s_cselect_b32 s4, 1, 3
        s_lshl_b32 s4, s4, 11
        s_sub_u32 s6, s6, s4
        s_add_u32 s4, s6, {KS+64}
        s_add_u32 s5, s6, {VS+256}
        s_lshl_b32 s6, s3, 6
        s_add_u32 s6, s6, {HS}
        s_lshl_b32 s7, s3, 8
        s_add_u32 s7, s7, {HS+2048}
        s_cmp_lt_u32 s3, 2
        s_cselect_b32 s4, s6, s4
        s_cselect_b32 s5, s7, s5
        v_add_u32 v204, s4, v255
        v_add_u32 v205, s5, v255
        s_not_b64 exec, s[100:101]
        v_subrev_u32 v204, 64, v201
        s_mov_b32 exec_lo, 0
        s_mov_b32 exec_hi, -1
        v_subrev_u32 v205, 0x100, v203
        s_mov_b32 exec_lo, -1''')
        for r in range(0, 6): a(f'v_mov_b32 v{s.PP+r}, 0')
        cut(3)
        a(f'''s_lshr_b32 s4, s70, 1
        s_and_b32 s6, s70, 1
        s_lshl_b32 s4, s4, 6
        s_add_u32 s4, s4, s6
        s_lshl_b32 s5, s71, 5
        s_add_u32 s4, s4, s5
        s_lshl_b32 s5, s32, 7
        s_add_u32 s4, s4, s5
        s_mul_i32 s4, s4, 2304
        s_lshl_b32 s5, s33, 7
        s_add_u32 s4, s4, s5
        s_add_u32 s73, s4, 1152
        v_lshrrev_b32 v221, 3, v0
        v_and_b32 v222, 0x70, v248
        v_mov_b32 v223, 4608
        v_mad_u32_u24 v254, v221, v223, v222
        s_lshl_b32 s4, s70, 12
        s_mul_i32 s5, s71, {KS-QS}
        s_sub_u32 s4, s4, s5
        s_add_u32 s4, s4, {KS}
        v_mul_u32_u24 v253, 144, v221
        v_add3_u32 v253, v253, v222, s4
        v_mul_u32_u24 v252, 144, v216
        v_lshl_add_u32 v252, v217, 3, v252
        v_add_u32 v252, s4, v252
        v_bfe_u32 v221, v0, 3, 2
        v_mul_u32_u24 v221, 1056, v221
        v_bfe_u32 v222, v0, 2, 1
        v_lshl_add_u32 v221, v222, 7, v221
        v_and_b32 v222, 3, v0
        v_lshl_add_u32 v207, v222, 3, v221
        v_lshrrev_b32 v222, 5, v0
        v_lshl_add_u32 v250, v222, 8, v207
        s_mul_i32 s4, s71, {TR-SL}
        s_add_u32 s4, s4, {SL}
        s_mul_i32 s5, s71, {2*SL}
        v_add_u32 v251, s4, v250
        v_add_u32 v250, s5, v250
        v_lshl_add_u32 v207, v222, 9, v207''')
        cut(4)
        a(f'''s_lshl_b32 s4, s32, 2
        s_add_u32 s4, s4, s70
        s_mul_i32 s4, s4, 36864
        s_add_u32 s4, s4, {WS_O+18432}
        s_mul_i32 s6, s71, 18432
        s_sub_u32 s4, s4, s6
        s_lshl_b32 s5, s33, 10
        s_add_u32 s{s.OS[0]}, s4, s5
        s_mul_i32 s6, s71, 27648
        s_add_u32 s74, s{s.OS[0]}, s6
        s_sub_u32 s74, s74, 18432
        s_add_u32 s12, s24, 9216
        s_addc_u32 s13, s25, 0
        s_sub_u32 s14, s26, 9216
        s_add_u32 s5, s4, 9216''')
        for i in range(1, 9):
            a(f's_add_u32 s{s.OS[i]}, s{s.OS[i-1]}, 1024\n v_mov_b32 v{s.PP+5+i}, 0\n s_cmp_eq_u32 s{s.OS[i]}, s5\n s_cselect_b32 s{s.OS[i]}, s4, s{s.OS[i]}')
        a(f'''s_mul_i32 s4, s32, 9
        s_add_u32 s4, s4, s33
        s_lshl_b32 s4, s4, 14
        s_lshl_b32 s5, s72, 10
        s_add_u32 s4, s4, s5
        s_add_u32 s76, s4, {WS_XC}
        s_add_u32 s77, s76, 8192
        s_cmp_eq_u32 s33, 0
        s_cselect_b32 s4, 0, 8192
        s_sub_u32 s78, s76, s4
        s_cmp_eq_u32 s33, 8
        s_cselect_b32 s4, 0, 8192
        s_add_u32 s79, s77, s4
        s_lshl_b32 s4, s70, 12
        s_mul_i32 s5, s71, {KS-QS}
        s_add_u32 s71, s4, s5
        s_add_u32 s71, s71, {QS}
        s_sub_u32 s72, s4, s5
        s_add_u32 s72, s72, {KS}
        s_mul_i32 s4, s70, 3072
        s_add_u32 s4, s4, {QS-5*BL}
        s_sub_u32 s68, s71, s4
        s_sub_u32 s65, s72, s4
        s_mov_b32 s70, {fb(math.log2(math.e)/math.sqrt(18))}''')
        for r in range(14, 20): a(f'v_mov_b32 v{s.PP+r}, 0')
        s.ts(1)
        cut(s.NCH)
    AV, HV, XB, WV_, AQ, AK, HK, WQ, ALT, XB2 = 8, 40, 44, 212, 88, 120, 152, 156, 220, 224
    def frags(s, mode):
        F = []
        for m, acc in ((0, s.AQ), (1, s.AK)):
            for i in range(2):
                F.append([s.WQ + 8*m + 4*i, 4+i, lambda ks, m=m: L_WQK + (2*ks+m)*BL,
                          [(acc + 8*t + 4*i, t) for t in range(4)] + ([(s.HK, 4)] if m == 1 and i == 0 else []), 0])
        if 'v' in mode:
            for i in range(2):
                F.append([s.WV_ + 4*i, 4+i, lambda ks: L_WV + ks*BL, [(s.AV + 8*t + 4*i, t) for t in range(4)] + ([(s.HV, 4)] if i == 0 else []), 1])
        return F
    def rd_w(s, f, ks, reg=None):
        reg = reg or f[0]
        return [('r', f'ds_read_b64_tr_b16 {vr(reg+2*h,2)}, v{f[1]} offset:{f[2](ks)+256*h}', R(reg+2*h, 2)) for h in range(2)]
    def rd_x(s, ks, b=None, ar=2, off=0):
        b = b or s.XB + 20*ks
        return [('r', f'ds_read_b128 {vr(b+4*t,4)}, v{ar if t < 4 else ar+1} offset:{off+((t>>1)*2*BL+512*(t&1) if t < 4 else 0)+64*ks}', R(b+4*t, 4)) for t in range(5)]
    def mm(s, f, ks, reg=None, xb=None):
        r = []; reg = reg or f[0]; xb = xb or s.XB + 20*ks
        for acc, t in f[3]:
            x = xb + 4*t
            A, B = (x, reg) if f[4] else (reg, x)
            r.append(('m', f'{MF} {vr(acc,4)}, {vr(A,4)}, {vr(B,4)}, {vr(acc,4)}', R(x, 4) + R(reg, 4)))
        return r
    def stg(s, b, areg, off):
        return [('t', f'v_cvt_pk_bf16_f32 v{b}, v{b}, v{b+1}'), ('t', f'v_cvt_pk_bf16_f32 v{b+1}, v{b+2}, v{b+3}'), ('r', f'ds_write_b64 v{areg}, {vr(b,2)} offset:{off}', [])]
    def stage(s, mode, extra):
        F = s.frags(mode); ops = []; n = len(F)
        sal = [('t', t) for t in ['s_add_u32 s36, s36, 1', 's_cmp_eq_u32 s36, 3', 's_cselect_b32 s36, 0, s36', f's_cselect_b32 s38, s37, {SL}'] + extra]
        hi = s.rd_x(1); lo = s.rd_w(F[-1], 1, s.ALT)
        def gap():
            if sal: ops.append(sal.pop(0))
            if hi: ops.append(hi.pop(0))
            elif lo: ops.append(lo.pop(0))
        for i, f in enumerate(F):
            for m in s.mm(f, 0): ops.append(m); gap()
            if i < n-1: hi += s.rd_w(f, 1)
        assert not hi and not lo
        hi = [('t', f'v_add_u32 v{r}, s38, v{r}') for r in (4, 2, 3, 5)]
        for i, f in enumerate(F):
            if i == 1:
                assert not hi
                ops.extend([('w0',), ('t', 's_barrier')])
                hi = s.rd_w(F[0], 0) + s.rd_x(0); lo = s.rd_w(F[-1], 0)
            for m in s.mm(f, 1, s.ALT if i == n-1 else None): ops.append(m); gap()
            if 1 <= i < n-1: hi += s.rd_w(f, 0)
        assert not hi and not lo, (hi, lo)
        if s.o.x_nomm: ops = [x for x in ops if x[0] != 'm']
        if s.o.x_nord: ops = [x for x in ops if x[0] != 'r']
        return ops
    def tail(s):
        o = s.o
        F = s.frags('qkv'); q0, q1, k0, k1, v0, v1 = F
        M = []; rd = []; st = []
        def grp(ms):
            M.extend(ms); return len(M) - 1
        XS = [s.XB, s.XB+20, s.XB2]; WS = [s.WV_, s.WQ, s.WQ+8]
        def vrd(j, after):
            sl, ks = (j >> 1) - 1, j & 1
            x = s.rd_x(ks, XS[j % 3], 6, SL*sl) if j >= 2 else []
            w = []
            for i in range(2):
                f = [0, (210 if j >= 2 else 4) + i, (lambda ks: SL*sl + ks*BL) if j >= 2 else v0[2]]
                w.append(s.rd_w(f, ks, WS[j % 3] + 4*i))
            for y in w[0] + x + w[1]: rd.append((after, y))
        for y in s.rd_x(1): rd.append((0, y))
        e = grp(s.mm(q0, 0)); rd += [(e, y) for y in s.rd_w(q0, 1)]
        e = grp(s.mm(q1, 0)); rd += [(e, y) for y in s.rd_w(q1, 1)]
        e = grp(s.mm(k0, 0)); vrd(0, 0); rd += [(e, y) for y in s.rd_w(k0, 1)] + [(0, y) for y in s.rd_w(k1, 1, s.ALT)]
        def staged(f, ms, areg, off):
            for (acc, t), m in zip(f[3], ms):
                M.append(m)
                for y in (s.stg(acc, areg, off + (4*(t >> 1) + (t & 1))*2048) if t < 4 else s.stg(acc, 206, 2048 if f[4] else 0)): st.append((len(M) + 1, y))
        staged(q0, s.mm(q0, 1), 84, 0); staged(q1, s.mm(q1, 1), 85, 0)
        vrd(1, len(M) - 1)
        grp(s.mm(k1, 0))
        staged(k0, s.mm(k0, 1), 84, KS-QS); staged(k1, s.mm(k1, 1, s.ALT), 85, KS-QS)
        nq = len(rd)
        if o.prof: st.append((0, ('t', s.tst(3))))
        st.append((('d', o.bdel, nq), ('w0',))); st.append((0, ('t', 's_barrier')))
        if o.prof: st.append((0, ('t', s.tst(4))))
        xo = s.x_ops()
        for k, y in enumerate(xo): st.append((('d', 4, 0) if k == 6 else 0, y))
        if o.prof: st.append((0, ('t', s.tst(5))))
        e = len(M) - 1
        for j in range(6):
            if j + 2 < 6: vrd(j+2, e)
            if j < 5:
                grp(s.mm(v0, 0, WS[j % 3], XS[j % 3])); e = grp(s.mm(v1, 0, WS[j % 3] + 4, XS[j % 3]))
            else:
                staged(v0, s.mm(v0, 0, WS[j % 3], XS[j % 3]), 86, 0); staged(v1, s.mm(v1, 0, WS[j % 3] + 4, XS[j % 3]), 87, 0)
        dl = []
        for c, y in rd:
            dl.append(min(g for g, m in enumerate(M) if g > c and set(y[2]) & set(m[2])) - o.lead)
        for k in range(len(dl)-2, -1, -1): dl[k] = min(dl[k], dl[k+1] - 1)
        ops = []; nrd = 0; lastg = 0
        def ok(c, g):
            if isinstance(c, tuple): return g >= lastg + c[1] and nrd >= c[2]
            return g >= c
        for g, m in enumerate(M):
            ops.append(m); n = 0
            waitbar = st and st[0][1][0] == 'w0' and nrd >= nq
            if rd and rd[0][0] <= g and dl[nrd] <= g: ops.append(rd.pop(0)[1]); nrd += 1; n += 1
            k = 0
            while st and k < o.nf and ok(st[0][0], g):
                y = st.pop(0)[1]; ops.append(y); lastg = g
                if not (y[0] == 'w0' or y[1].startswith(('s_b', 's_mem')) or not y[1]): k += 1
            if n + k == 0 and rd and rd[0][0] <= g and not waitbar: ops.append(rd.pop(0)[1]); nrd += 1
        assert not rd
        ops += [y for c, y in st]
        s.check_order(ops)
        return ops
    def check_order(s, ops):
        pend = {}
        for y in ops:
            if y[0] == 'r':
                for r in y[2]:
                    assert not pend.get(r), ('overwritten before use', y)
                    pend[r] = True
            elif y[0] == 'm':
                for r in y[2]: pend[r] = False
    def b_compute(s):
        a = s.a; o = s.o
        a('L_Bc:')
        if not o.doB: a('s_endpgm')
        s.prefetch()
        a(f'''v_bfe_u32 v6, v0, 1, 2
        v_and_b32 v7, 1, v0
        v_bfe_u32 v4, v0, 3, 1
        v_lshl_add_u32 v7, v4, 1, v7
        v_and_b32 v4, 0x30, v0
        v_lshl_add_u32 v7, v7, 7, v4
        s_and_b32 s6, s3, 1
        s_mul_i32 s6, s6, {BL}
        v_mul_u32_u24 v2, 1056, v6
        v_add3_u32 v2, v2, v7, s6
        v_mul_u32_u24 v3, 544, v6
        v_add_u32 v3, v3, v7
        v_add_u32 v3, {L_XH}, v3
        v_mov_b32 v6, v2
        v_mov_b32 v7, v3''')
        for r in list(range(8, 44)) + list(range(88, 156)) + [83, 84]: a(f'v_mov_b32 v{r}, 0')
        a('''s_mov_b32 s34, 0
        s_memrealtime s[6:7]
        s_or_b32 s35, s2, s3
        s_waitcnt lgkmcnt(0)
        s_cbranch_scc1 L_Bc2
        s_or_b32 s6, s6, 0x80000000
        v_mov_b32 v1, s6
        s_mov_b64 exec, 1
        buffer_store_dword v1, off, s[28:31], 0 sc1
        s_mov_b64 exec, -1
        L_Bc2:''')
        s.b_const()
        a(f'''s_lshl_b32 s6, s3, 5
        v_add_u32 v4, s6, v207
        s_xor_b32 s6, s6, 32
        v_add_u32 v5, s6, v207
        v_add_u32 v210, {L_WV}, v4
        v_add_u32 v211, {L_WV}, v5
        s_and_b32 s6, s3, 1
        s_lshl_b32 s7, s6, 12
        s_add_u32 s7, s7, {QS}
        s_lshl_b32 s4, s3, 9
        s_add_u32 s5, s7, s4
        v_add_u32 v84, s5, v255
        s_add_u32 s5, s4, {HS}
        v_add_u32 v206, s5, v255
        s_xor_b32 s4, s4, 512
        s_add_u32 s5, s7, s4
        v_add_u32 v85, s5, v255
        v_add_u32 v86, {VS-QS}, v84
        v_add_u32 v87, {VS-QS}, v85
        s_mov_b32 s36, 0
        s_mov_b32 s37, {-2*SL & 0xffffffff}
        s_mov_b32 s35, 0''')
        a('s_barrier')
        s.ts(2)
        F = s.frags('qkv')
        l1 = s.stage('qkv', ['s_add_u32 s35, s35, 1', 's_cmp_lt_u32 s35, 6'])
        for y in l1[l1.index(('w0',)):]:
            if y[0] == 'r': a(y[1])
        a('.p2align 3\n L_Bl1:')
        a(resolve(l1, cap=15, age=6))
        a('s_cbranch_scc1 L_Bl1')
        a('.p2align 3\n L_Bl2:')
        l2 = s.stage('qk', ['s_add_u32 s35, s35, 1', 's_cmp_lt_u32 s35, 8'])
        a(resolve(l2, cap=15, age=6))
        a('s_cbranch_scc1 L_Bl2\n s_waitcnt vmcnt(0)')
        a(resolve(l2 + [('t', '@@')] + s.tail(), loop=False, cap=15, age=5).split('@@')[1])
        a('s_waitcnt lgkmcnt(0)\n s_barrier')
        s.vreads()
        if o.cinb == 0: a(s.inl())
    QR, KC, KP, QM, LL, TT, PP, MM, IN, VV, OF = 88, 96, 104, 112, 128, 148, 172, 160, 216, 224, 240
    def Lr(s, sl): return {0: 128, 4: 132, 1: 136, 2: 140, 3: 144}[sl]
    def inl(s): return f'buffer_load_dwordx4 {vr(s.IN,4)}, v248, s[24:27], s78 offen sc1\n buffer_load_dwordx4 {vr(s.IN+4,4)}, v248, s[24:27], s79 offen sc1'
    def reld(s, so, off):
        return f's_mov_b64 exec, 0xff\n buffer_load_dword v255, v200, s[24:27], {so} offen offset:{off} sc1\n s_mov_b64 exec, -1'
    def vreads(s):
        for t in (1, 2, 0, 3):
            s.a(f'ds_read_b64 {vr(s.VV+4*t,2)}, v203 offset:{512*t}\n ds_read_b64 {vr(s.VV+4*t+2,2)}, v205 offset:{512*t}')
    def qmask(s, t, hi):
        r = []
        for h in range(2):
            m = f's[{40+4*t+2*h}:{41+4*t+2*h}]'; q = f'v{s.QR+2*t+h}'
            r.append(('m', f'v_cndmask_b32 v{s.QM+4*t+2*hi+h}, {q}, 0, {m}' if hi else f'v_cndmask_b32 v{s.QM+4*t+h}, 0, {q}, {m}', [s.QR+2*t+h]))
        return r
    def merge(s, L, T, n):
        r = [('t', 's_mov_b64 exec, s[100:101]')]
        if s.o.m64: r += [('t', f'v_mov_b64 {vr(L+2*i,2)}, {vr(T+2*i,2)}') for i in range(n//2)]
        else: r += [('t', f'v_mov_b32 v{L+i}, v{T+i}') for i in range(n)]
        return [('t', '\n'.join(y[1] for y in r + [('t', 's_mov_b64 exec, -1')]))]
    def x_ops(s):
        r = []
        for d, ar in ((s.QR, 202), (s.KC, 201), (s.KP, 204)):
            for j in range(2): r.append(('r', f'ds_read2st64_b64 {vr(d+4*j,4)}, v{ar} offset0:{2*j} offset1:{2*j+1}', R(d+4*j, 4)))
        r += s.qmask(0, 0) + s.qmask(3, 1)
        for j, (sl, k, q) in enumerate(((0, 0, s.QM), (4, 6, s.QM+14))):
            r.append(('m', f'{MF16} {vr(s.Lr(sl),4)}, {vr(s.KC+k,2)}, {vr(q,2)}, v[192:195]', R(s.KC+k, 2)))
        for j, (sl, k, q) in enumerate(((0, 0, s.QM), (4, 6, s.QM+14))):
            r.append(('m', f'{MF16} {vr(s.TT+4*j,4)}, {vr(s.KP+k,2)}, {vr(q,2)}, v[192:195]', R(s.KP+k, 2)))
        r += s.qmask(0, 1) + s.qmask(1, 0) + s.qmask(1, 1)
        r += s.merge(128, s.TT, 8)
        for j in range(2):
            r.append(('t', f'v_min_u32 v{128+4*j}, -2, v{128+4*j}'))
            r.append(('t', f'buffer_store_dwordx4 {vr(128+4*j,4)}, v248, s[24:27], s{76+j} offen {s.o.xsf}'))
        if s.o.ore & 4: r += [('t', s.reld('s76', 0)), ('t', s.reld('s77', 0))]
        r += s.qmask(2, 0) + s.qmask(2, 1) + s.qmask(3, 0)
        return r
    def bfly(s, n, op, mid):
        a = s.a; b, c, d, t = [f'v{s.MM+i}' for i in range(4)]
        if n == 3:
            a(f'''v_mov_b32 {t}, {d}
            v_permlane32_swap_b32 {b}, {c}
            v_permlane32_swap_b32 {d}, {t}
            {op} {b}, {b}, {c}
            {op} {d}, {d}, {t}
            v_permlane16_swap_b32 {b}, {d}
            {op} {b}, {b}, {d}
            {mid(d, b)}
            {mid(b, b)}
            v_permlane16_swap_b32 {b}, {d}
            v_mov_b32 {c}, {b}
            v_permlane32_swap_b32 {b}, {c}''')
        else:
            a(f'''v_permlane32_swap_b32 {b}, {c}
            {op} {t}, {b}, {c}
            {op} {b}, {b}, {c}
            v_permlane16_swap_b32 {b}, {t}
            {op} {b}, {b}, {t}
            {mid(c, b)}
            {mid(b, b)}
            v_permlane32_swap_b32 {b}, {c}''')
    def softmax(s, slots, mid='', mid2=''):
        a = s.a; n = len(slots); pk = s.o.pk
        rev = list(enumerate(slots))[::-1]
        for j, sl in enumerate(slots):
            L = s.Lr(sl); a(f'v_max3_f32 v{s.MM+j}, v{L}, v{L+1}, v{L+2}')
        for j, sl in enumerate(slots):
            L = s.Lr(sl); a(f'v_max_f32 v{s.MM+j}, v{s.MM+j}, v{L+3}')
        s.bfly(n, 'v_max_f32', lambda d, x: f'v_mul_f32 {d}, s70, {x}')
        a(mid)
        for j, sl in rev:
            L = s.Lr(sl); mp = vr((s.MM+j) & ~1, 2); b = j & 1
            if pk:
                for i in (0, 2): a(f'v_pk_fma_f32 {vr(L+i,2)}, {vr(L+i,2)}, s[70:71], {mp} op_sel:[0,0,{b}] op_sel_hi:[1,0,{b}] neg_lo:[0,0,1] neg_hi:[0,0,1]')
            else:
                for i in range(4): a(f'v_fma_f32 v{L+i}, v{L+i}, s70, -v{s.MM+j}')
            for i in range(4): a(f'v_exp_f32 v{L+i}, v{L+i}')
        a(mid2)
        for j, sl in rev:
            L = s.Lr(sl); T = s.TT + 2*j
            a(f'v_pk_add_f32 {vr(T,2)}, {vr(L,2)}, {vr(L+2,2)}' if pk else f'v_add_f32 v{T}, v{L}, v{L+1}\n v_add_f32 v{T+1}, v{L+2}, v{L+3}')
        for j, sl in rev:
            a(f'v_add_f32 v{s.MM+j}, v{s.TT+2*j}, v{s.TT+2*j+1}')
        s.bfly(n, 'v_add_f32', lambda d, x: f'v_rcp_f32 {d}, {x}')
        for j, sl in rev:
            L = s.Lr(sl); mp = vr((s.MM+j) & ~1, 2); b = j & 1
            if pk:
                for i in (0, 2): a(f'v_pk_mul_f32 {vr(L+i,2)}, {vr(L+i,2)}, {mp} op_sel:[0,{b}] op_sel_hi:[1,{b}]')
            else:
                for i in range(4): a(f'v_mul_f32 v{L+i}, v{L+i}, v{s.MM+j}')
        for half in range(2):
            a('s_mov_b64 exec, s[100:101]' if half else 's_not_b64 exec, s[100:101]')
            for j, sl in rev:
                L = s.Lr(sl); P = s.PP + 4*sl + 2*half
                for h in range(2): a(f'v_cvt_pk_bf16_f32 v{P+h}, v{L+2*h}, v{L+2*h+1}')
        a('s_mov_b64 exec, -1')
    def b_attn(s):
        a = s.a; o = s.o
        a('L_BF:')
        s.ts(6)
        for sl in (1, 2, 3):
            a(f'{MF} {vr(s.TT+4*sl-4,4)}, {vr(s.KP+2*sl-2,4)}, {vr(s.QM+4*sl-2,4)}, v[192:195]')
            a(f'{MF} {vr(s.Lr(sl),4)}, {vr(s.KC+2*sl-2,4)}, {vr(s.QM+4*sl-2,4)}, v[192:195]')
        for y in s.merge(136, s.TT, 12): a(y[1])
        s.softmax((1, 2, 3), ('s_cmp_ge_u32 s3, 4\n s_cbranch_scc1 L_Bi\n' + s.inl() + '\n L_Bi:') if o.cinb == 1 else '')
        s.ts(7)
        a('s_cmp_lt_u32 s3, 4\n s_cbranch_scc1 L_Bw')
        if o.hinb: a(s.inl())
        a(f's_waitcnt vmcnt({2*o.hinb})\n s_barrier')
        if o.hp2 is not None: a(f's_setprio {o.hp2}')
        s.vreads()
        if not o.hinb: a(s.inl())
        a('L_Bw:')
        s.ts(8)
        O = 88
        def pv(t, hi): a(f'{MF} {vr(O+8*t+4*hi,4)}, {vr(s.VV+4*t,4)}, {vr(s.PP+4*(t+hi),4)}, 0')
        def ocvt(ts, d):
            for k, t in enumerate(ts):
                for h in range(2): a(f'v_cvt_pk_bf16_f32 v{d+2*k+h}, v{O+8*t+4+2*h}, v{O+8*t+4+2*h+1}')
            for k, t in enumerate(ts):
                for h in range(2): a(f's_mov_b64 exec, s[{40+4*t+2*h}:{41+4*t+2*h}]\n v_cvt_pk_bf16_f32 v{d+2*k+h}, v{O+8*t+2*h}, v{O+8*t+2*h+1}')
            a(f's_mov_b64 exec, -1\n v_min_u32 v{d}, -2, v{d}')
        a('s_waitcnt lgkmcnt(4)')
        for t, hi in ((1, 1), (2, 1), (1, 0), (2, 0)): pv(t, hi)
        a('s_waitcnt lgkmcnt(0)')
        pv(0, 1); pv(3, 0)
        ocvt((1, 2), s.D1)
        a(f'buffer_store_dwordx4 {vr(s.D1,4)}, v248, s[24:27], s74 offen {o.hsf}')
        if o.ore & 1: a(s.reld('s74', 0))
        a('s_cmp_lt_u32 s3, 4\n s_cbranch_scc1 L_Bw2')
        for p in range(9, 18 - o.wlate): a(s.wwr(p) if o.wreg else s.wo_dma(p))
        I = s.IN
        a(f'''s_waitcnt vmcnt({(1 if o.wreg else 10) + (o.ore & 1)})
        s_branch L_Bw3
        L_Bw2:
        {f'v_add_u32 v255, s68, v248; ds_write_b128 v255, {vr(s.D1,4)}; {"s_waitcnt lgkmcnt(0)" if o.bw == 1 else ""}'.replace(';', chr(10)) if o.plds else ''}
        {'s_barrier' if o.bw in (1, 3) else ''}
        s_waitcnt vmcnt({1 + (o.ore & 1)})
        L_Bw3:
        s_movk_i32 s5, {SPIN}
        L_By:
        v_max_u32 v{s.TT}, v{I}, v{I+4}
        v_cmp_eq_u32 vcc, -1, v{s.TT}
        s_cbranch_vccz L_Byd
        {s.inl()}
        s_sub_u32 s5, s5, 1
        s_waitcnt vmcnt(0)
        s_cbranch_scc0 L_By
        L_Byd:''')
        s.ts(9)
        if o.pk:
            for i in range(0, 8, 2): a(f'v_pk_add_f32 {vr(128+i,2)}, {vr(128+i,2)}, {vr(I+i,2)}')
        else:
            for i in range(8): a(f'v_add_f32 v{128+i}, v{128+i}, v{I+i}')
        e = lambda k, r: f's_cmp_lt_u32 s3, 4\n s_cbranch_scc1 L_Be{k}\n' + s.olds(0, r) + f'\n L_Be{k}:' if len(r) else ''
        n1, n2 = o.hb0
        s.softmax((0, 4), e(0, range(1, 1+n1)), e(1, range(1+n1, 1+n1+n2)))
        pv(3, 1); pv(0, 0)
        ocvt((0, 3), s.D2)
        a(f's_add_u32 s74, s74, 18432\n buffer_store_dwordx4 {vr(s.D2,4)}, v248, s[24:27], s74 offen {o.hsf}')
        if o.ore & 2: a(s.reld('s74', 1024))
    D1, D2 = 8, 44
    def olds(s, b, ps): return '\n'.join(f'buffer_load_dwordx4 {vr((s.D1, s.D2)[b]+4*i,4)}, v248, s[{12+12*b}:{15+12*b}], s{s.OS[i]} offen sc1' for i in ps)
    def b2(s):
        a = s.a; o = s.o
        W = 88; AC = {0: [232, 236, 240, 244], 1: [0, 4, 80, 84]}; D = (s.D1, s.D2); T = 16
        def rd(i):
            return [('r', f'ds_read_b64_tr_b16 {vr(W+16*i+4*c+2*h,2)}, v{250 + (i >= 5)} offset:{(i % 5)*BL + 32*c + 512*h}', R(W+16*i+4*c+2*h, 2)) for c in range(4) for h in range(2)]
        def mm(b, i):
            return [('m', f'{MF} {vr(AC[b][c],4)}, {vr(W+16*i+4*c,4)}, {vr(D[b]+4*i,4)}, {vr(AC[b][c],4) if i else 0}', R(W+16*i+4*c, 4)) for c in range(4)]
        lds = s.olds
        def lds_(b, ps): return '\n'.join(f'buffer_load_dwordx4 {vr(D[b]+4*i,4)}, v248, s[{12+12*b}:{15+12*b}], s{s.OS[i]} offen sc1' for i in ps)
        retry = []
        def chk(b, k, n, sfx=''):
            d = [D[b]+4*max(i, 1) for i in range(3*k, 3*k+3)]; lab = f'L_Bk{b}{k}{sfx}'
            retry.append(f'{lab}r:\n s_sub_u32 s5, s5, 1\n s_cmp_lt_i32 s5, 0\n s_cbranch_scc1 {lab}d\n {lds(b, range(max(3*k, 1), 9))}\n s_waitcnt vmcnt({6-3*k if b else 0})\n v_max3_u32 v249, v{d[0]}, v{d[1]}, v{d[2]}\n v_cmp_eq_u32 vcc, -1, v249\n s_cbranch_vccnz {lab}r\n s_branch {lab}d')
            return [('t', f's_waitcnt vmcnt({n})\n v_max3_u32 v249, v{d[0]}, v{d[1]}, v{d[2]}'), ('t', 'v_cmp_eq_u32 vcc, -1, v249'), ('t', f's_cbranch_vccnz {lab}r\n {lab}d:')]
        def run(M, fill):
            r = list(fill.get(-1, []))
            for j, m in enumerate(M): r += [m] + fill.get(j, [])
            return r
        def put(fill, j, ops, step=1):
            for y in ops: fill.setdefault(j, []).append(y); j += step
        s.ts(10)
        a(f'''s_cmp_lt_u32 s3, 4
        s_cbranch_scc1 L_Bp0
        v_add_u32 v255, s68, v248
        ds_write_b128 v255, {vr(s.D2,4)}
        v_add_u32 v255, s65, v248''')
        for p in range(18 - o.wlate, 18): a(s.wwr(p))
        a(f'''s_waitcnt lgkmcnt(0)
        s_barrier
        ds_read_b128 {vr(s.D2,4)}, v255
        s_branch L_Bp1
        L_Bp0:
        v_add_u32 v255, s65, v248
        ds_read_b128 {vr(s.D1,4)}, v255
        {lds(0, range(1, 1+sum(o.hb0)))}
        L_Bp1:
        s_movk_i32 s5, {SPIN}''')
        s.ts(11)
        ops = []; pl = list(range(1+sum(o.hb0), 9))
        for i in range(9):
            for j, y in enumerate(rd(i)):
                if pl and (8*i + j) % o.b0r == 0: ops.append(('t', lds(0, [pl.pop(0)])))
                ops.append(y)
        assert not pl
        ops.append(('t', 'v_add_u32 v250, s71, v248\n v_add_u32 v251, s72, v248'))
        ops.append(('t', s.tst(12)))
        M = sum((mm(0, i) for i in range(9)), []); fill = {}
        at = [o.b1s + o.b1r*j for j in range(8)]; assert at[-1] <= 32
        h = o.hoist
        for k in range(3):
            j = 12*k - 1 - (h if k else 0)
            put(fill, j, chk(0, k, 6-3*k + sum(x < j for x in at)), 1 if k and h else 0)
        for j in range(8): put(fill, at[j], [('t', lds(1, [j+1]))])
        put(fill, 35 - h, chk(1, 0, 6), 1 if h else 0)
        ops += run(M, fill)
        ops.append(('t', s.tst(13)))
        a(resolve(ops, loop=False, cap=8))
        a('s_cmp_ge_u32 s3, 4\n s_cbranch_scc1 L_Bf0')
        for b in (1, 0):
            M = sum((mm(1, i) for i in range(9)), []); fill = {}
            for k in (1, 2): put(fill, 12*k - 1 - h, chk(1, k, 6-3*k, 'ch'[1-b]), 1 if h else 0)
            gv = [('t', f'ds_write_b128 v250, {vr(AC[1-b][c],4)} offset:{1024*c}') for c in range(4)]
            tk = [('t', f'ds_read_b128 {vr(T+4*c,4)}, v251 offset:{1024*c}') for c in range(4)]
            bar = [('t', 's_waitcnt lgkmcnt(0)\n s_barrier')]
            if b: put(fill, 0, gv, 2); put(fill, o.gb, bar + tk)
            else: put(fill, 35, [('t', s.tst(14))] + gv + bar + tk, 0)
            a('\n'.join(y[1] for y in run(M, fill)))
            s.ts(14 if b else (11 if o.fin else 99))
            a('s_waitcnt lgkmcnt(0)')
            for c in range(4):
                for j in range(4): a(f'v_add_f32 v{T+4*c+j}, v{T+4*c+j}, v{AC[b][c]+j}')
                for h2 in range(2): a(f'v_cvt_pk_bf16_f32 v{T+4*c+h2}, v{T+4*c+2*h2}, v{T+4*c+2*h2+1}')
                a(f'ds_write_b64 v252, {vr(T+4*c,2)} offset:{32*c}')
            a('s_branch L_Bf1\n L_Bf0:' if b else 'L_Bf1:')
        a(f'''s_waitcnt lgkmcnt(0)
        ds_read_b128 v[8:11], v253
        ds_read_b128 v[12:15], v253 offset:{8*144}
        s_add_u32 s4, s73, {16*2304}
        s_waitcnt lgkmcnt(1)
        buffer_store_dwordx4 v[8:11], v254, s[20:23], s73 offen {s.o.osf}
        s_waitcnt lgkmcnt(0)
        buffer_store_dwordx4 v[12:15], v254, s[20:23], s4 offen {s.o.osf}''')
        if o.fin: s.ts(12)
        s.ts_dump(16)
        a('s_endpgm')
        for t in retry: a(t)
    def a_part(s):
        a = s.a; o = s.o
        a('L_A:')
        if not o.doA: a('s_endpgm'); return
        import genA
        genA.a_part(s)
    def build(s):
        s.entry(); s.b_loader(); s.b_compute(); s.b_attn(); s.b2(); s.a_part()
        s.a('L_end:\n L_last:\n s_endpgm')
        txt = s.a.text()
        if s.o.nocnt & 1: txt = '\n'.join(l for l in txt.split('\n') if 'buffer_atomic' not in l)
        if s.o.nocnt & 2: txt = '\n'.join(('v_mov_b32 v249, 6' if 'buffer_load_dword v249' in l else l) for l in txt.split('\n'))
        return single_file(haz.fix(txt), NWG, 512, LDS_BYTES)
def gen(**kw):
    o = Opt()
    for k, v in kw.items(): setattr(o, k, v)
    return G(o).build()
if __name__ == '__main__':
    kw = {}
    for x in sys.argv[2:]:
        k, v = x.split('='); kw[k] = eval(v)
    open(sys.argv[1], 'w').write(gen(**kw))
```

```python
from gen import *
AST = 4*BL
def a_part(s):
    a = s.a; o = s.o
    a(f'''s_sub_u32 s33, s33, 18
    s_mul_i32 s40, s32, 6
    s_add_u32 s40, s40, s33
    s_cmp_ge_u32 s33, 6
    s_cselect_b32 s6, 6, 0
    s_addc_u32 s32, s32, 0
    s_sub_u32 s33, s33, s6
    s_mul_i32 s34, s33, 3
    s_lshr_b32 s34, s34, 1
    s_mul_i32 s34, s34, {o.rota}
    s_cmp_lt_u32 s3, 4
    s_cbranch_scc1 L_Ac''')
    a(f'''s_sub_u32 s39, s3, 4
    v_and_b32 v1, 7, v0
    v_lshlrev_b32 v1, 4, v1
    v_bfe_u32 v2, v0, 3, 1
    v_bfe_u32 v3, v0, 4, 1
    v_lshrrev_b32 v4, 5, v0
    v_lshl_add_u32 v2, v3, 4, v2
    v_lshl_add_u32 v2, v4, 2, v2
    s_and_b32 s6, s39, 1
    s_lshl_b32 s6, s6, 1
    s_lshr_b32 s7, s39, 1
    s_lshl_b32 s7, s7, 3
    s_add_u32 s6, s6, s7
    v_add_u32 v2, s6, v2
    v_mul_u32_u24 v2, {32*1152}, v2
    v_add_u32 v2, v2, v1
    s_mul_i32 s63, s32, 2304
    s_mul_i32 s64, s39, 1056
    s_mov_b32 s66, 0
    s_waitcnt lgkmcnt(0)
    s_mov_b32 s8, s4
    s_mov_b32 s9, s5''')

    def stage(lab, n):
        a('s_lshl_b32 s68, s34, 7\n s_add_u32 s68, s68, s63')
        for b in range(4):
            s.dma('s64', b*BL, 's68', (1024*(b & 1) + (b >> 1))*1152, 'v2', 's[8:11]', o.lda)
        a(f'''s_add_u32 s34, s34, 1
        s_cmp_eq_u32 s34, 9
        s_cselect_b32 s34, 0, s34
        s_add_u32 s64, s64, {AST}
        s_add_u32 s66, s66, 1
        s_cmp_lt_u32 s66, {n}
        s_cbranch_scc1 {lab}''')
    def dmas():
        if o.adel: a('s_barrier')
        a('L_Ald:')
        stage('L_Ald', 9)
    if not o.apre: dmas()
    a(f'''v_lshlrev_b32 v5, 4, v0
    v_mov_b32 v8, -1
    v_mov_b32 v9, -1
    v_mov_b32 v10, -1
    v_mov_b32 v11, -1
    s_mul_i32 s6, s40, 24576
    s_mul_i32 s7, s39, 6144
    s_add_u32 s6, s6, s7
    v_lshrrev_b32 v6, 4, v0
    v_mul_u32_u24 v6, 147456, v6
    v_and_b32 v7, 0xf0, v5
    v_add_u32 v6, v6, v7''')
    a(f's_mul_i32 s50, s40, 768\n s_mul_i32 s7, s39, {8*73728}\n s_add_u32 s50, s50, s7')
    P = []
    for base in (WS_XC, WS_O):
        for h in range(2):
            for k in range(3): P.append(f's_add_u32 s7, s6, {base + 3072*h}\n buffer_store_dwordx4 v[8:11], v5, s[24:27], s7 offen offset:{1024*k} {o.psf}')
    for cl in range(2):
        for k in range(3): P.append(f's_add_u32 s7, s50, {WS_U + 73728*cl}\n buffer_store_dwordx4 v[8:11], v6, s[24:27], s7 offen offset:{256*k} sc1')
    n = 0; b = 0
    if o.nopois: P = {1: [], 2: P[:12], 3: P[12:], 4: P[12:] + P[:12], 5: P[6:]}[o.nopois]
    if o.apre:
        for y in P[:o.apre]: a(y)
        P = P[o.apre:]
        dmas()
    for y in P[:o.apost]: a(y)
    n = o.apost
    while n < len(P):
        a(f's_waitcnt vmcnt({32-4*b+n})\n s_barrier')
        for y in P[n:n+o.aper]: a(y)
        n = min(len(P), n + o.aper); b += 1
    a('buffer_load_dword v12, off, s[28:31], 0 sc1'); n += 1
    while b < o.aend:
        a(f's_waitcnt vmcnt({32-4*b+n})\n s_barrier'); b += 1
    a('s_waitcnt vmcnt(0)\n s_barrier'); b += 1
    assert b <= 9
    a(f'''s_cmp_lg_u32 s3, 4
    s_cbranch_scc1 L_end
    s_movk_i32 s5, {SPIN//8}
    L_Ald3:
    v_cmp_le_i32 vcc, 0, v12
    s_cbranch_vccz L_Ald4
    s_sleep {o.slp}
    buffer_load_dword v12, off, s[28:31], 0 sc1
    s_sub_u32 s5, s5, 1
    s_waitcnt vmcnt(0)
    s_cbranch_scc0 L_Ald3
    L_Ald4:
    s_lshl_b32 s6, s40, 7
    s_add_u32 s6, s6, {WS_F}
    v_mov_b32 v13, v12
    v_mov_b32 v14, v12
    v_mov_b32 v15, v12
    s_mov_b64 exec, 0xff
    buffer_store_dwordx4 v[12:15], v5, s[24:27], s6 offen sc1''')
    for k in range(9 - b): a('s_barrier')
    a('s_endpgm')
    ACC, HID, XB, FF = 8, 72, 144, 208
    a('L_Ac:')
    s.prefetch(250)
    if not o.apf: a('s_cmp_eq_u32 s3, 3\n s_cbranch_scc1 L_end')
    else:
        a(f'''s_cmp_lg_u32 s3, 3
        s_cbranch_scc1 L_Ac0
        s_lshr_b32 s6, s2, 3
        s_sub_u32 s6, s6, 18
        s_mul_i32 s6, s6, {432*128}
        v_lshlrev_b32 v1, 7, v0
        s_waitcnt lgkmcnt(0)''')
        for k in range(o.apf - 1): a('s_barrier')
        if o.apx:
            a(f'''s_lshl_b32 s7, s40, 13
            s_add_u32 s50, s7, {o.apw0*128}
            v_mul_u32_u24 v3, 1152, v0
            s_lshr_b32 s51, s2, 3
            s_sub_u32 s51, s51, 18
            s_and_b32 s52, s51, 3
            s_and_b32 s53, s2, 7
            s_lshl_b32 s53, s53, 2
            s_add_u32 s52, s52, s53
            s_mul_i32 s52, s52, {64*1152}
            s_lshr_b32 s51, s51, 2
            s_lshl_b32 s51, s51, 7
            s_add_u32 s51, s51, s52''')
            for i in range(3):
                for h in range(0, 128, 128 >> o.aph):
                    if o.apx & 1: a(f'buffer_load_dword v2, v1, s[12:15], s50 offen offset:{h}')
                    if o.apx & 2: a(f'buffer_load_dword v2, v3, s[8:11], s51 offen offset:{384*i+h}')
                a(f's_add_u32 s50, s50, {6144*128}')
        a('s_lshl_b32 s7, s40, 13\n buffer_load_dword v2, v1, s[16:19], s7 offen')
        for h in range(128 >> o.aph, 128, 128 >> o.aph): a(f'buffer_load_dword v2, v1, s[16:19], s7 offen offset:{h}')
        if o.tch:
            a(f'v_lshlrev_b32 v3, 16, v0\n s_lshl_b32 s7, s40, 7')
            for base in (WS_U, WS_O, WS_XC): a(f's_add_u32 s6, s7, {base}\n buffer_load_dword v2, v3, s[24:27], s6 offen')
            a('buffer_load_dword v2, v3, s[20:23], s7 offen')
        for k in range(o.apf2): a('s_barrier')
        for k in range(7 if o.apf2 else 0):
            a('buffer_load_dword v2, v1, s[16:19], s6 offen\n s_add_u32 s6, s6, 8192')
        a('s_endpgm\n L_Ac0:')
    a(f'''v_and_b32 v240, 15, v0
    v_lshrrev_b32 v241, 4, v0
    s_mul_i32 s41, s33, 3
    s_add_u32 s41, s41, s3
    s_lshl_b32 s6, s41, 4
    v_add_u32 v242, s6, v240
    v_mul_u32_u24 v243, 911, v242
    v_lshrrev_b32 v243, 16, v243
    v_mul_u32_u24 v244, 287, v243
    v_lshlrev_b32 v245, 2, v242
    v_sub_u32 v244, v245, v244
    v_cvt_f32_u32 v245, v244
    v_mul_f32 v245, {fb(1/576)}, v245
    v_and_b32 v246, 1, v244
    v_mul_u32_u24 v246, 0x8000, v246
    v_lshl_or_b32 v246, v246, 16, v246
    s_lshl_b32 s6, s34, 6
    v_lshl_add_u32 v247, v241, 3, s6
    v_cvt_f32_u32 v247, v247''')
    T = XB
    for i in range(9):
        if o.adel == i + 1: a('s_barrier')
        a(f'v_mul_f32 v{T}, v247, v245\n v_add_f32 v247, {fb(32.0)}, v247\n v_fract_f32 v{T}, v{T}')
        for j in range(1, 8): a(f'v_add_f32 v{T+j}, v{T+j-1}, v245')
        for j in range(8): a(f'v_cos_f32 v{T+8+j}, v{T+j}')
        for j in range(8): a(f'v_sin_f32 v{T+j}, -v{T+j}')
        for h in range(4): a(f'v_cvt_pk_bf16_f32 v{HID+8*i+h}, v{T+8+2*h}, v{T+9+2*h}')
        for h in range(4): a(f'v_cvt_pk_bf16_f32 v{HID+8*i+4+h}, v{T+2*h}, v{T+1+2*h}')
    a('s_cmp_lg_u32 s41, 0\n s_cbranch_scc1 L_Ac1\n s_mov_b32 exec_lo, 0x10001\n s_mov_b32 exec_hi, 0x10001\n s_mov_b32 s6, 0xbf803f80')
    for i in range(9):
        for h in range(4): a(f'v_mov_b32 v{HID+8*i+4+h}, s6')
    a('s_mov_b64 exec, -1\n L_Ac1:')
    a(f'''v_lshrrev_b32 v1, 1, v240
    v_cvt_f32_u32 v1, v1
    v_mul_f32 v1, {fb(1/64)}, v1
    v_and_b32 v2, 1, v240
    v_cvt_f32_u32 v2, v2
    v_mul_f32 v2, {fb(0.25)}, v2
    v_lshlrev_b32 v3, 3, v241
    v_cvt_f32_u32 v3, v3
    v_add_f32 v4, {fb(32.0)}, v3
    v_cmp_eq_u32 vcc, 1, v240
    v_cndmask_b32 v5, v1, 0.5, vcc
    v_cndmask_b32 v6, v2, 0, vcc''')
    for m in range(4):
        w, ph = ('v5', 'v6') if m == 0 else ('v1', 'v2')
        if m: a(f'v_add_f32 v1, {fb(0.125)}, v1')
        for q in range(2):
            a(f'v_fma_f32 v{T}, v{3+q}, {w}, {ph}')
            for j in range(1, 8): a(f'v_add_f32 v{T+j}, v{T+j-1}, {w}')
            for j in range(8): a(f'v_cos_f32 v{T+j}, v{T+j}')
            for h in range(4): a(f'v_cvt_pk_bf16_f32 v{FF+8*m+4*q+h}, v{T+2*h}, v{T+1+2*h}')
    a(f'''v_bfe_u32 v6, v0, 1, 2
    v_and_b32 v7, 1, v0
    v_bfe_u32 v4, v0, 3, 1
    v_lshl_add_u32 v7, v4, 1, v7
    v_and_b32 v4, 0x30, v0
    v_lshl_add_u32 v7, v7, 7, v4
    v_mul_u32_u24 v2, 1056, v6
    v_add_u32 v2, v2, v7
    v_add_u32 v3, {3*AST}, v2
    v_add_u32 v4, {6*AST}, v2
    s_waitcnt lgkmcnt(0)''')
    s.ts(1)
    a('s_barrier')
    s.ts(2)
    def rdx(ks):
        st = ks >> 1
        return [('r', f'ds_read_b128 {vr(XB+32*(ks&1)+4*t,4)}, v{2+st//3} offset:{(st%3)*AST+(t>>1)*BL+(t&1)*512+(ks&1)*64}', R(XB+32*(ks&1)+4*t, 4)) for t in range(8)]
    ops = rdx(0)
    for ks in range(18):
        pend = []
        if ks < 17:
            if ks & 1: ops.append(('t', 's_barrier'))
            pend += rdx(ks+1)
        if 1 <= ks <= 9: pend += [('t', f'v_xor_b32 v{HID+8*(ks-1)+h}, v246, v{HID+8*(ks-1)+h}') for h in range(8)]
        for t in range(8):
            for ab in range(2):
                x = XB+32*(ks&1)+4*t; acc = ACC + 32*ab + 4*t
                ops.append(('m', f'{MF} {vr(acc,4)}, {vr(x,4)}, {vr(HID+8*(ks%9)+4*ab,4)}, {vr(acc,4) if ks else 0}', R(x, 4)))
                if pend: ops.append(pend.pop(0))
        ops += pend
    a(resolve(ops, loop=False, cap=4))
    s.ts(3)
    Z, U = XB, HID
    a(f'''s_mul_i32 s6, s32, 4608
    v_mul_u32_u24 v5, 147456, v241
    v_lshl_add_u32 v5, v242, 4, v5
    v_add_u32 v5, s6, v5''')
    for k in range(8):
        for h in range(4): a(f'v_cvt_pk_bf16_f32 v{Z+4*k+h}, v{ACC+8*k+2*h}, v{ACC+8*k+2*h+1}')
    for m in range(4):
        for q in range(2):
            for ab in range(2):
                for s2 in range(2):
                    u = U + 16*m + 8*ab + 4*s2
                    a(f'{MF} {vr(u,4)}, {vr(FF+8*m+4*q,4)}, {vr(Z+16*ab+8*s2+4*q,4)}, {vr(u,4) if q else 0}')
        for mm in ([m-1] if m else []) + ([3] if m == 3 else []):
            for cl in range(2):
                g = ACC + 8*mm + 4*cl
                for ab in range(2):
                    for ri in range(2):
                        u = U + 16*mm + 8*ab + 2*cl + ri
                        a(f'v_cvt_pk_bf16_f32 v{g+2*ab+ri}, v{u}, v{u+4}')
                a(f'v_min_u32 v{g}, -2, v{g}\n s_mov_b32 s6, {WS_U + (8*mm+cl)*73728}\n buffer_store_dwordx4 {vr(g,4)}, v5, s[24:27], s6 offen sc1')
    fl = 'buffer_load_dword v249, off, s[28:31], 0 sc1\n buffer_load_dword v250, v248, s[24:27], s53 offen sc1\n buffer_load_dword v251, v248, s[24:27], s54 offen sc1'
    a(f'v_lshlrev_b32 v248, 7, v0\n s_mov_b32 s53, {WS_F}\n s_mov_b32 s54, {WS_F+4096}\n' + fl)
    s.ts(4)
    CF, UD, AC2, AD = 72, 136, 8, 216
    CS = 200
    a(f'''s_mul_i32 s42, s40, 43
    s_lshr_b32 s42, s42, 7
    s_mul_i32 s6, s42, 3
    s_sub_u32 s43, s40, s6
    s_mul_i32 s43, s43, 3
    s_add_u32 s43, s43, s3
    v_lshlrev_b32 v3, 3, v241
    v_cvt_f32_u32 v3, v3
    s_mov_b32 s44, 0x80008000''')
    def trig(cl):
        a(f'v_lshl_add_u32 v1, v240, 6, {cl}\n v_cvt_f32_u32 v1, v1\n v_mul_f32 v1, {fb(1/2048)}, v1')
        for tt in range(2):
            if tt: a('v_add_f32 v1, 0.5, v1')
            a(f'v_mul_f32 v{UD}, v3, v1')
            for j in range(1, 8): a(f'v_add_f32 v{UD+j}, v{UD+j-1}, v1')
            for j in range(8): a(f'v_cos_f32 v{UD+8+j}, v{UD+j}')
            for j in range(8): a(f'v_sin_f32 v{UD+j}, v{UD+j}')
            for q in range(4): a(f'v_cvt_pk_bf16_f32 v{CS+8*tt+q}, v{UD+8+2*q}, v{UD+9+2*q}')
            for q in range(4): a(f'v_cvt_pk_bf16_f32 v{CS+8*tt+4+q}, v{UD+2*q}, v{UD+1+2*q}')
    trig('s42')
    for tt in range(2):
        for q in range(4):
            c = CS+8*tt+q; sn = c+4; M = CF + 16*tt + 4*q; N = M + 32
            a(f'''v_mov_b32 v{M}, v{c}
            v_mov_b32 v{M+1}, v{sn}
            v_mov_b32 v{M+2}, v{sn}
            v_xor_b32 v{M+3}, s44, v{c}
            v_mov_b32 v{N}, v{c}
            v_mov_b32 v{N+1}, v{sn}
            v_xor_b32 v{N+2}, s44, v{sn}
            v_mov_b32 v{N+3}, v{c}''')
    a('s_mov_b32 s45, s42\n s_cmp_lg_u32 s42, 0\n s_cbranch_scc1 L_Ac2\n s_mov_b32 s45, 32')
    trig('32')
    for tt in range(2):
        for q in range(4):
            c = CS+8*tt+q; sn = c+4; M = CF + 16*tt + 4*q; N = M + 32
            a(f'''v_mov_b32 v{M+1}, 0
            v_mov_b32 v{M+3}, 0
            v_mov_b32 v{N}, 0
            v_mov_b32 v{N+1}, v{c}
            v_mov_b32 v{N+2}, 0
            v_xor_b32 v{N+3}, s44, v{sn}''')
    a('L_Ac2:')
    a(f'''s_lshl_b32 s6, s43, 6
    v_lshl_add_u32 v1, v240, 2, s6
    v_mul_u32_u24 v2, 18432, v241
    s_movk_i32 s7, 288
    v_cmp_gt_u32 s[46:47], s7, v1
    v_cmp_eq_u32 s[48:49], s7, v1
    v_cmp_eq_u32 s[50:51], 0, v1''')
    for j in range(4):
        a(f'''v_add_u32 v3, {j}, v1
        v_sub_u32 v4, 576, v3
        v_cndmask_b32 v3, v4, v3, s[46:47]''')
        if j == 0: a('v_cndmask_b32 v3, v3, 0, s[48:49]')
        a(f'''v_and_b32 v4, 3, v3
        v_lshrrev_b32 v3, 2, v3
        v_mul_u32_u24 v4, 72, v4
        v_add_u32 v3, v3, v4
        v_lshl_add_u32 v{232+j}, v3, 4, v2''')
    a(f'''s_or_b64 s[50:51], s[50:51], s[48:49]
    v_lshlrev_b32 v1, 1, v1
    v_lshlrev_b32 v2, 8, v241
    v_add_u32 v3, s42, v2
    v_sub_u32 v4, 2048, v3
    v_cndmask_b32 v3, v4, v3, s[46:47]
    v_add_u32 v5, s45, v2
    v_sub_u32 v4, 2048, v5
    v_cndmask_b32 v5, v5, v4, s[46:47]
    v_mov_b32 v6, {64*2304}
    v_mov_b32 v7, {-64*2304 & 0xffffffff}
    v_cndmask_b32 v6, v7, v6, s[46:47]
    v_lshlrev_b32 v7, 4, v6
    s_movk_i32 s6, 2304
    v_mad_u32_u24 v{AD}, v3, s6, v1
    v_mad_u32_u24 v{AD+8}, v5, s6, v1''')
    for i in range(1, 4): a(f'v_add_u32 v{AD+i}, v{AD+i-1}, v6\n v_sub_u32 v{AD+8+i}, v{AD+8+i-1}, v6')
    for i in range(4): a(f'v_add_u32 v{AD+4+i}, v{AD+i}, v7\n v_sub_u32 v{AD+12+i}, v{AD+8+i}, v7')
    a(f'''v_and_b32 v3, 2047, v3
    v_mad_u32_u24 v{AD}, v3, s6, v1
    s_mul_i32 s52, s42, 73728
    s_movk_i32 s5, {SPIN//8}''')
    for q in range(4): a(f's_add_u32 s{56+q}, s52, {WS_U + q*4608}')
    s.ts(5)
    a(f'''s_waitcnt vmcnt(0)
    L_An:
    v_cmp_ne_u32 vcc, v250, v249
    v_cmp_ne_u32 s[6:7], v251, v249
    s_or_b64 vcc, vcc, s[6:7]
    v_cmp_le_i32 s[6:7], 0, v249
    s_or_b64 vcc, vcc, s[6:7]
    s_cbranch_scc0 L_And
    s_sleep {o.slp}
    {fl}
    s_sub_u32 s5, s5, 1
    s_waitcnt vmcnt(0)
    s_cbranch_scc0 L_An
    L_And:
    s_movk_i32 s5, {SPIN}''')
    s.ts(6)
    order = [1, 2, 3, 0]
    ld = lambda q: '\n'.join(f'buffer_load_dwordx4 {vr(UD+16*q+4*j,4)}, v{232+j}, s[24:27], s{56+q} offen sc1' for j in range(4))
    for q in range(4): a(ld(q))
    retry = []
    for q in range(4):
        u = UD + 16*q
        a(f's_waitcnt vmcnt({12-4*q})\n L_Ak{q}:\n v_max3_u32 v1, v{u}, v{u+4}, v{u+8}\n v_max_u32 v1, v1, v{u+12}\n v_cmp_eq_u32 vcc, -1, v1\n s_cbranch_vccnz L_Ak{q}r\n L_Ak{q}d:')
        retry.append(f'L_Ak{q}r:\n s_sub_u32 s5, s5, 1\n s_cmp_lt_i32 s5, 0\n s_cbranch_scc1 L_Ak{q}d\n' + '\n'.join(ld(k) for k in range(q, 4)) + f'\n s_waitcnt vmcnt({12-4*q})\n s_branch L_Ak{q}')
        if q == 0: s.ts(9)
        u = UD + 16*q
        a(f'''v_cndmask_b32 v{u}, v{u}, v{u+2}, s[48:49]
        v_cndmask_b32 v{u+1}, v{u+1}, v{u+3}, s[48:49]
        v_cndmask_b32 v{u+2}, v{u+2}, 0, s[50:51]
        v_cndmask_b32 v{u+3}, v{u+3}, 0, s[50:51]''')
        for st in range(4):
            for j in order:
                acc = AC2 + 16*st + 4*j
                a(f'{MF} {vr(acc,4)}, {vr(CF+16*st+4*q,4)}, {vr(u+4*j,4)}, {vr(acc,4) if q else 0}')
    s.ts(7)
    for st in range(4):
        for i in range(4):
            b = AC2 + 16*st + i; d = UD + 8*st + 2*i
            a(f'v_cvt_pk_bf16_f32 v{d}, v{b}, v{b+4}\n v_cvt_pk_bf16_f32 v{d+1}, v{b+8}, v{b+12}')
            a(f'buffer_store_dwordx2 {vr(d,2)}, v{AD+4*st+i}, s[20:23], 0 offen {o.osf}')
    s.ts(8)
    s.ts_dump(16, 'a')
    a('s_endpgm')
    for r in retry: a(r)
```
